```python
import torch

def _softmax(x, axis=-1):
    return torch.softmax(x, dim=axis)

def _gelu(x):
    return torch.nn.functional.gelu(x, approximate='tanh')

def _silu(x):
    return torch.nn.functional.silu(x)

def _sigmoid(x):
    return torch.sigmoid(x)

def _layernorm(x, axis=-1, eps=1e-05):
    m = x.mean(dim=axis, keepdim=True)
    v = x.var(dim=axis, keepdim=True, unbiased=False)
    return (x - m) / torch.sqrt(v + eps)

def _scatter_add(tgt, idx, src, axis=0):
    return tgt.clone().index_add_(axis, idx, src)

def _segment_sum(src, seg, n):
    out = torch.zeros((n,) + src.shape[1:], dtype=src.dtype)
    return out.index_add_(0, seg, src)

def _pad(x, pw):
    flat = tuple((v for pair in reversed(pw) for v in pair))
    return torch.nn.functional.pad(x, flat)
kernel_name = 'gated_mix__spectral_fnet__mixer_gmlp__prompt'

def setup_inputs():

    _w = lambda a: (lambda t: t.to(torch.bfloat16) if t.is_floating_point() else t)(torch.as_tensor(a))

    def _A_setup():
        B, S, D = (1, 2048, 448)
        ns = torch.arange(S)[:, None] * torch.arange(S)[None, :]
        nd = torch.arange(D)[:, None] * torch.arange(D)[None, :]
        Ws_re = torch.cos(-2.0 * torch.pi * ns / S).to(float)
        Ws_im = torch.sin(-2.0 * torch.pi * ns / S).to(float)
        Wd_re = torch.cos(-2.0 * torch.pi * nd / D).to(float)
        Wd_im = torch.sin(-2.0 * torch.pi * nd / D).to(float)
        return {'x': _w((lambda *s: torch.randn(*s, dtype=torch.bfloat16) * 0.05)(B, S, D)), 'dft_seq_re': _w(Ws_re), 'dft_seq_im': _w(Ws_im), 'dft_hid_re': _w(Wd_re), 'dft_hid_im': _w(Wd_im)}
    _A_in = _A_setup()

    def _B_setup():
        B, S, D, F = (1, 2048, 448, 1792)
        Fh = F // 2
        return {'x': _w((lambda *s: torch.randn(*s, dtype=torch.bfloat16) * 0.05)(B, S, D)), 'w_in': _w((lambda *s: torch.randn(*s, dtype=torch.bfloat16) * 0.8)(D, 2 * Fh)), 'w_sp': _w(0.01 * (lambda *s: torch.randn(*s, dtype=torch.bfloat16) * 0.8)(S, S)), 'b_sp': _w(1.0 + 0.01 * (lambda *s: torch.randn(*s, dtype=torch.bfloat16) * 0.8)(S)), 'w_out': _w((lambda *s: torch.randn(*s, dtype=torch.bfloat16) * 0.8)(Fh, D))}
    _B_in = _B_setup()
    return {'A_x': _A_in['x'], 'A_dft_seq_re': _A_in['dft_seq_re'], 'A_dft_seq_im': _A_in['dft_seq_im'], 'A_dft_hid_re': _A_in['dft_hid_re'], 'A_dft_hid_im': _A_in['dft_hid_im'], 'B_x': _B_in['x'], 'B_w_in': _B_in['w_in'], 'B_w_sp': _B_in['w_sp'], 'B_b_sp': _B_in['b_sp'], 'B_w_out': _B_in['w_out'], 'gate_w': _w((lambda *s: torch.randn(*s, dtype=torch.bfloat16) * 0.05)(448) * 16.0)}

def reference(A_x, A_dft_seq_re, A_dft_seq_im, A_dft_hid_re, A_dft_hid_im, B_x, B_w_in, B_w_sp, B_b_sp, B_w_out, gate_w):

    def _A_ref(x, dft_seq_re, dft_seq_im, dft_hid_re, dft_hid_im):
        a = torch.einsum('bsd,ed->bse', x, dft_hid_re)
        b = torch.einsum('bsd,ed->bse', x, dft_hid_im)
        y = torch.einsum('ts,bse->bte', dft_seq_re, a) - torch.einsum('ts,bse->bte', dft_seq_im, b)
        return y

    def _B_ref(x, w_in, w_sp, b_sp, w_out):
        B, S, D = x.shape
        F = w_in.shape[-1]
        Fh = F // 2
        z = _gelu(torch.einsum('bsd,df->bsf', x, w_in))
        z1 = z[..., :Fh].clone()
        z2 = _layernorm(z[..., Fh:], axis=-1)
        g = torch.einsum('ts,bsf->btf', w_sp, z2) + b_sp[None, :, None]
        return torch.einsum('bsf,fd->bsd', z1 * g, w_out)
    x = A_x
    g = _sigmoid((x * gate_w).sum(-1, keepdims=True))
    a = _A_ref(x, A_dft_seq_re, A_dft_seq_im, A_dft_hid_re, A_dft_hid_im)
    b = _B_ref(x, B_w_in, B_w_sp, B_b_sp, B_w_out)
    return g * a + (1 - g) * b
```

```python
class Asm:
    def __init__(self):
        self.lines = []
        self.uid = 0
    def __call__(self, s):
        for ln in s.strip("\n").split("\n"):
            self.lines.append("    " + ln.strip())
    def label(self, name):
        self.lines.append(name + ":")
    def raw(self, s):
        self.lines.append(s)
    def newlabel(self, base):
        self.uid += 1
        return f"L_{base}_{self.uid}"
    def text(self):
        return "\n".join(self.lines) + "\n"

def v(i, n=1):
    return f"v{i}" if n == 1 else f"v[{i}:{i+n-1}]"
def a(i, n=1):
    return f"a{i}" if n == 1 else f"a[{i}:{i+n-1}]"
def s(i, n=1):
    return f"s{i}" if n == 1 else f"s[{i}:{i+n-1}]"

def kernel_header(A, name):
    A.raw(f".globl {name}")
    A.raw(".p2align 8")
    A.raw(f".type {name},@function")
    A.label(name)

def kernel_desc(name, vgpr, sgpr, accum):
    return f""".amdhsa_kernel {name}
  .amdhsa_next_free_vgpr {vgpr}
  .amdhsa_next_free_sgpr {sgpr}
  .amdhsa_accum_offset {accum}
  .amdhsa_group_segment_fixed_size 0
  .amdhsa_kernarg_size 112
  .amdhsa_user_sgpr_count 2
  .amdhsa_user_sgpr_kernarg_segment_ptr 1
  .amdhsa_system_sgpr_workgroup_id_x 1
.end_amdhsa_kernel
"""

def interleave(main, fill, start=0, every=1, per=1):
    out = []
    fi = 0
    for idx, m in enumerate(main):
        out.append(m)
        if idx >= start and (idx - start) % every == 0:
            for _ in range(per):
                if fi < len(fill):
                    out.append(fill[fi]); fi += 1
    out.extend(fill[fi:])
    return out

import re
_TRANS = ("v_exp_f32", "v_log_f32", "v_rcp_f32", "v_rsq_f32", "v_sqrt_f32", "v_sin_f32", "v_cos_f32")
def _regs(tok):
    tok = tok.strip()
    m = re.fullmatch(r"([vsa])\[(\d+):(\d+)\]", tok)
    if m: return [(m.group(1), r) for r in range(int(m.group(2)), int(m.group(3)) + 1)]
    m = re.fullmatch(r"([vsa])(\d+)", tok)
    if m: return [(m.group(1), int(m.group(2)))]
    if tok == "vcc": return [("s", 106), ("s", 107)]
    if tok == "m0": return [("s", 124)]
    return []
def _parse(line):
    t = line.split(";")[0].strip()
    if not t or t.endswith(":") or t.startswith("."): return None
    parts = t.split(None, 1)
    op = parts[0]
    ops = []
    if len(parts) > 1:
        for x in parts[1].split(","):
            x = x.strip()
            if x: ops.append(x.split()[0])
    return op, ops, t
def _classify(op, ops, t):
    R = lambda xs: [r for x in xs for r in _regs(x.lstrip("-").strip("|"))]
    if op.startswith("v_mfma"):
        return dict(kind="mfma", wr=R(ops[:1]), rd=R(ops[1:3]), rc=R(ops[3:4]), passes=8 if "32x32" in op else 4)
    if op.startswith("v_permlane") and "swap" in op:
        return dict(kind="perm", wr=R(ops[:2]), rd=R(ops[:2]))
    if op.startswith("v_cmp"):
        return dict(kind="valu", wr=R(ops[:1]), rd=R(ops[1:]))
    if op.startswith("v_readfirstlane") or op.startswith("v_readlane"):
        return dict(kind="rdlane", wr=R(ops[:1]), rd=R(ops[1:]))
    if op.startswith("v_"):
        rd = R(ops[1:])
        if op.startswith("v_cndmask") and len(ops) == 3: rd += _regs("vcc")
        if op.startswith(("v_fmac", "v_mac", "v_dot2c")) or "dpp" in t or "bank_mask" in t: rd += R(ops[:1])
        k = "trans" if op.startswith(_TRANS) else "valu"
        return dict(kind=k, wr=R(ops[:1]), rd=rd, dpp=("row_" in t or "quad_perm" in t))
    if op.startswith(("buffer_store", "global_store")):
        wide = "x3" in op or "x4" in op
        data = R(ops[:1]) if op.startswith("buffer") else R(ops[1:2])
        return dict(kind="vmem", wr=[], rd=R(ops), wide=data if wide else [])
    if op.startswith(("buffer_load", "global_load")):
        if t.rstrip().endswith("lds") or " lds" in t:
            return dict(kind="vmem", wr=[], rd=R(ops) + _regs("m0"), lds=True)
        return dict(kind="vmem", wr=R(ops[:1]), rd=R(ops[1:]))
    if op.startswith(("buffer_atomic", "global_atomic")):
        return dict(kind="vmem", wr=[], rd=R(ops))
    if op.startswith("ds_read") or op.startswith("ds_bpermute") or op.startswith("ds_swizzle"):
        return dict(kind="ds", wr=R(ops[:1]), rd=R(ops[1:]))
    if op.startswith("ds_"):
        return dict(kind="ds", wr=[], rd=R(ops))
    if op.startswith("s_"):
        wr = [] if op.startswith(("s_cmp", "s_cbranch", "s_branch", "s_waitcnt", "s_barrier", "s_nop", "s_endpgm", "s_sleep", "s_setprio")) else R(ops[:1])
        return dict(kind="salu", wr=wr, rd=R(ops[1:]))
    return dict(kind="other", wr=[], rd=[])
def fix_hazards(lines, report=None):
    out = []
    hist = []
    pos = 0
    for ln in lines:
        p = _parse(ln)
        if p is None:
            out.append(ln); continue
        op, ops, t = p
        c = _classify(op, ops, t)
        need = 0
        rd = set(c.get("rd", [])); wr = set(c.get("wr", [])); rc = set(c.get("rc", []))
        k = c["kind"]
        isv = k in ("valu", "trans", "perm", "rdlane")
        for (hp, h) in hist:
            d = pos - hp - 1
            hw = set(h.get("wr", [])); hk = h["kind"]
            req = 0
            hv = hk in ("valu", "trans", "perm", "rdlane")
            hwv = {r for r in hw if r[0] != "s"}; hws = {r for r in hw if r[0] == "s"}
            if hv:
                if c.get("dpp") and hwv & rd: req = max(req, 2)
                if k == "perm" and hwv & rd: req = max(req, 2)
                if k == "mfma" and hwv & (rd | rc): req = max(req, 2)
                if k == "rdlane" and hwv & rd: req = max(req, 1)
                if hk == "trans" and isv and k != "trans" and hwv & rd: req = max(req, 1)
                if hk == "trans" and k in ("vmem", "ds") and hwv & rd: req = max(req, 1)
                if isv and hws & rd: req = max(req, 2)
                if k == "vmem" and hws & rd: req = max(req, 5)
            if hk == "mfma":
                big = 12 if h["passes"] == 8 else 8
                if k == "mfma":
                    if hw & rd: req = max(req, big)
                    if hw & rc and (hw != rc or h["passes"] != c["passes"]): req = max(req, big - 2)
                elif (isv or k in ("vmem", "ds")) and hw & (rd | wr): req = max(req, big)
                if isv and set(h.get("rc", [])) & wr: req = max(req, 7 if h["passes"] == 8 else 3)
            if hk == "vmem" and h.get("wide") and set(h["wide"]) & wr: req = max(req, 2)
            if hk == "salu" and ("s", 124) in hw and c.get("lds"): req = max(req, 1)
            if req > d: need = max(need, req - d)
        while need > 0:
            n = min(need, 8)
            out.append(f"    s_nop {n-1}")
            if report is not None: report.append((n, t))
            pos += n; need -= n
        out.append(ln)
        hist.append((pos, c))
        if op == "s_nop": pos += int(ops[0], 0) + 1
        else: pos += 1
        hist = [(hp, h) for (hp, h) in hist if pos - hp < 24]
    return out
```

```python
import os, struct
from asmlib import *
from k2 import WS_BT, WS_Z1, WS_WOT, WS_G, WS_ST, BT_BYTES, ZH_BYTES, WOT_BYTES, WS_DBG

K1_LDS = 163840
STAMP = os.environ.get("STAMP", "") == "1"
PUB_STEP = int(os.environ.get("K1_PUB", "11"))
PF = os.environ.get("K1_PF", "")

def f32(x): return "0x%08x" % struct.unpack("<I", struct.pack("<f", x))[0]
C0 = -2.0 * 0.7978845608028654 * 1.4426950408889634
C1 = C0 * 0.044715
LOG2E = 1.4426950408889634

def slot(ci): return (ci + 14) % 20

def gen_k1(A, name="k1_kernel"):
    kernel_header(A, name)
    Lend = A.newlabel("k1end")
    Lhelp = A.newlabel("k1help")
    SX, SW, SD, SBT, SZ1, SST, SDB = 24, 28, 32, 36, 40, 44, 48
    A(f"""
    s_cmp_ge_u32 s2, 256
    s_cbranch_scc1 {Lend}
    """)
    if STAMP: A("s_memrealtime s[80:81]")
    A(f"""
    s_load_dwordx2 s[4:5], s[0:1], 0
    s_load_dwordx4 s[8:11], s[0:1], 24
    s_load_dwordx2 s[12:13], s[0:1], 48
    s_load_dwordx4 s[16:19], s[0:1], 72
    s_load_dwordx4 s[20:23], s[0:1], 96
    s_and_b32 s52, s2, 7
    s_lshr_b32 s53, s2, 3
    v_lshrrev_b32 v1, 6, v0
    v_and_b32 v0, 63, v0
    v_readfirstlane_b32 s54, v1
    s_cmp_ge_u32 s53, 28
    s_cbranch_scc1 {Lhelp}
    s_mul_i32 s55, s53, 37
    s_lshr_b32 s55, s55, 8
    s_mul_i32 s56, s55, 7
    s_sub_u32 s56, s53, s56
    s_lshr_b32 s57, s52, 1
    s_lshl_b32 s57, s57, 2
    s_add_u32 s57, s57, s55
    s_and_b32 s59, s52, 1
    s_mul_i32 s58, s59, 7
    s_add_u32 s58, s58, s56
    """)
    VST, VSL = 2, 3
    VXA = [4, 5, 6, 7]
    VT2, VT1, VX0, VX1, VW, VD, VBT, VZ1 = 8, 9, 10, 11, 12, 13, 14, 15
    XF = 16
    WF = [128, 144]
    ACC2, ACC1, ACCA = 160, 176, 192
    T = 208
    VC1 = 255
    A(f"""
    v_lshrrev_b32 v{T}, 3, v0
    v_lshrrev_b32 v{T+1}, 2, v{T}
    v_lshlrev_b32 v{T+1}, 3, v{T+1}
    v_and_b32 v{T+2}, 3, v{T}
    v_add_u32 v{T+1}, v{T+1}, v{T+2}
    v_and_b32 v{T+2}, 7, v0
    v_lshrrev_b32 v{T+3}, 1, v{T}
    v_xor_b32 v{T+4}, v{T+2}, v{T+3}
    v_lshlrev_b32 v{T+4}, 4, v{T+4}
    s_lshr_b32 s60, s54, 1
    s_and_b32 s61, s54, 1
    s_lshl_b32 s62, s60, 5
    s_lshl_b32 s63, s61, 2
    s_add_u32 s62, s62, s63
    v_add_u32 v{T+5}, s62, v{T+1}
    v_mul_u32_u24 v{T+5}, 896, v{T+5}
    v_add_u32 v{VX0}, v{T+5}, v{T+4}
    v_xor_b32 v{T+6}, 64, v{T+4}
    v_add_u32 v{VX1}, v{T+5}, v{T+6}
    v_add_u32 v{VX1}, {16*896 - 1024}, v{VX1}
    s_lshl_b32 s62, s54, 3
    v_add_u32 v{T+5}, s62, v{T}
    v_mul_u32_u24 v{T+5}, 3584, v{T+5}
    v_and_b32 v{T+6}, 1, v{T+3}
    v_lshlrev_b32 v{T+6}, 2, v{T+6}
    v_xor_b32 v{T+6}, v{T+2}, v{T+6}
    v_lshl_add_u32 v{VW}, v{T+6}, 4, v{T+5}
    s_waitcnt lgkmcnt(0)
    s_mul_i32 s62, s57, {128*896}
    s_add_u32 s{SX}, s4, s62
    s_addc_u32 s{SX+1}, s5, 0
    s_mov_b32 s{SX+2}, {128*896}
    s_mov_b32 s{SX+3}, 0x20000
    s_mov_b32 s{SW}, s12
    s_mov_b32 s{SW+1}, s13
    s_mov_b32 s{SW+2}, {448*3584}
    s_mov_b32 s{SW+3}, 0x20000
    s_lshl_b32 s64, s54, 11
    s_lshl_b32 s65, s54, 10
    s_lshl_b32 s66, s58, 7
    s_add_u32 s67, s66, 1792
    s_mov_b32 s68, 0
    s_add_u32 s69, s65, {14*8192}
    s_mov_b32 s70, 6
    """)
    Li = A.newlabel("k1init")
    A.label(Li)
    A(f"""
    s_mov_b32 m0, s64
    s_add_u32 s64, s64, 16384
    buffer_load_dwordx4 v{VX0}, s[{SX}:{SX+3}], s68 offen lds
    buffer_load_dwordx4 v{VX1}, s[{SX}:{SX+3}], s68 offen offset:1024 lds
    s_mov_b32 m0, s69
    s_add_u32 s68, s68, 128
    buffer_load_dwordx4 v{VW}, s[{SW}:{SW+3}], s67 offen lds
    s_add_u32 s69, s69, 8192
    s_add_u32 s67, s67, {64*3584}
    s_sub_u32 s70, s70, 1
    s_cmp_lg_u32 s70, 0
    s_cbranch_scc1 {Li}
    s_mov_b32 m0, s64
    s_nop 0
    buffer_load_dwordx4 v{VX0}, s[{SX}:{SX+3}], s68 offen lds
    buffer_load_dwordx4 v{VX1}, s[{SX}:{SX+3}], s68 offen offset:1024 lds
    """)
    A(f"""
    s_lshr_b32 s62, s54, 2
    s_lshl_b32 s62, s62, 5
    s_lshl_b32 s63, s61, 4
    s_add_u32 s62, s62, s63
    s_and_b32 s63, s60, 1
    s_lshl_b32 s63, s63, 2
    s_add_u32 s62, s62, s63
    v_add_u32 v{T+5}, s62, v{T+1}
    v_mul_u32_u24 v{T+5}, 896, v{T+5}
    s_lshl_b32 s63, s61, 6
    v_xor_b32 v{T+6}, s63, v{T+4}
    v_add_u32 v{VD}, v{T+5}, v{T+6}
    s_cmp_eq_u32 s59, 0
    s_cselect_b32 s8, s8, s10
    s_cselect_b32 s9, s9, s11
    s_mul_i32 s62, s56, {64*896}
    s_add_u32 s{SD}, s8, s62
    s_addc_u32 s{SD+1}, s9, 0
    s_mov_b32 s{SD+2}, {64*896}
    s_mov_b32 s{SD+3}, 0x20000
    s_add_u32 s{SBT}, s22, {WS_BT}
    s_addc_u32 s{SBT+1}, s23, 0
    s_mov_b32 s{SBT+2}, {BT_BYTES}
    s_mov_b32 s{SBT+3}, 0x20000
    s_add_u32 s{SZ1}, s22, {WS_Z1}
    s_addc_u32 s{SZ1+1}, s23, 0
    s_mov_b32 s{SZ1+2}, {ZH_BYTES}
    s_mov_b32 s{SZ1+3}, 0x20000
    s_mul_i32 s62, s57, 28672
    s_add_u32 s62, s62, {WS_ST}
    s_add_u32 s{SST}, s22, s62
    s_addc_u32 s{SST+1}, s23, 0
    s_mov_b32 s{SST+2}, 28672
    s_mov_b32 s{SST+3}, 0x20000
    s_mov_b32 s{SDB}, s20
    s_mov_b32 s{SDB+1}, s21
    s_mov_b32 s{SDB+2}, 256
    s_mov_b32 s{SDB+3}, 0x20000
    s_mov_b32 s68, 0
    """)
    A(f"""
    v_and_b32 v{T}, 31, v0
    v_lshrrev_b32 v{T+1}, 5, v0
    v_bfe_u32 v{T+2}, v0, 1, 3
    v_xor_b32 v{T+2}, v{T+2}, v{T+1}
    v_lshlrev_b32 v{T+2}, 4, v{T+2}
    v_lshl_add_u32 v{T+2}, v{T}, 7, v{T+2}
    s_lshl_b32 s62, s60, 12
    v_add_u32 v{VXA[0]}, s62, v{T+2}
    v_xor_b32 v{VXA[1]}, 32, v{VXA[0]}
    v_xor_b32 v{VXA[2]}, 64, v{VXA[0]}
    v_xor_b32 v{VXA[3]}, 96, v{VXA[0]}
    v_bfe_u32 v{T+2}, v0, 2, 2
    v_lshl_add_u32 v{T+3}, v{T+1}, 3, v{T+2}
    v_lshlrev_b32 v{T+3}, 7, v{T+3}
    v_lshrrev_b32 v{T+2}, 1, v{T+2}
    v_xor_b32 v{T+2}, s61, v{T+2}
    v_lshl_add_u32 v{T+3}, v{T+2}, 6, v{T+3}
    v_bfe_u32 v{T+4}, v0, 4, 1
    v_and_b32 v{T+5}, 3, v0
    v_lshlrev_b32 v{T+6}, 5, v{T+4}
    v_lshl_add_u32 v{T+6}, v{T+5}, 3, v{T+6}
    v_add_u32 v{VT2}, v{T+3}, v{T+6}
    v_add_u32 v{VT2}, {14*8192}, v{VT2}
    v_lshrrev_b32 v{T+6}, 1, v{T+5}
    v_lshlrev_b32 v{T+6}, 5, v{T+6}
    v_lshl_add_u32 v{T+6}, v{T+4}, 4, v{T+6}
    v_and_b32 v{T+5}, 1, v{T+5}
    v_lshl_add_u32 v{T+6}, v{T+5}, 3, v{T+6}
    v_add_u32 v{VT1}, v{T+3}, v{T+6}
    """)
    def tile_off(dst, treg):
        return f"""
        s_mul_i32 s62, s{treg}, 37
        s_lshr_b32 s62, s62, 8
        s_mul_i32 s63, s62, 7
        s_sub_u32 s63, s{treg}, s63
        s_add_u32 s71, s63, 6
        s_cmp_ge_u32 s71, 7
        s_cselect_b32 s72, 7, 0
        s_sub_u32 s71, s71, s72
        s_bitcmp1_b32 s62, 0
        s_cselect_b32 s63, s71, s63
        s_mul_i32 s62, s62, {32*14336}
        s_lshl_b32 s63, s63, 10
        s_add_u32 s{dst}, s62, s63
        """
    A(f"""
    s_lshl_b32 s73, s58, 1
    s_add_u32 s73, s73, s61
    s_lshl_b32 s74, s73, 1
    """)
    A(tile_off(75, 74))
    A("s_add_u32 s74, s74, 1")
    A(tile_off(76, 74))
    A(f"""
    s_sub_u32 s76, s76, s75
    v_and_b32 v{T+5}, 15, v0
    v_lshl_add_u32 v{T+5}, v{T+1}, 4, v{T+5}
    v_lshlrev_b32 v{T+5}, 4, v{T+5}
    v_mul_lo_u32 v{T+6}, v{T+4}, s76
    v_add3_u32 v{VBT}, v{T+5}, v{T+6}, s75
    v_mul_u32_u24 v{T+6}, 28672, v{T+4}
    v_add_u32 v{VZ1}, v{T+5}, v{T+6}
    s_lshl_b32 s62, s57, 2
    s_add_u32 s62, s62, s60
    s_mul_i32 s75, s62, 7168
    s_add_u32 s76, s75, {8*32*14336}
    s_mul_i32 s77, s62, {2*28*1024}
    s_lshl_b32 s63, s73, 10
    s_add_u32 s77, s77, s63
    v_bfe_u32 v{T+5}, v0, 2, 2
    v_lshlrev_b32 v{T+5}, 6, v{T+5}
    v_lshl_add_u32 v{T+5}, v{T+1}, 5, v{T+5}
    v_lshl_add_u32 v{T+5}, v{T+4}, 4, v{T+5}
    s_lshl_b32 s62, s60, 8
    s_add_u32 s63, s63, s62
    v_add_u32 v{VST}, s63, v{T+5}
    v_lshrrev_b32 v{T+5}, 4, v0
    v_lshlrev_b32 v{T+5}, 10, v{T+5}
    v_and_b32 v{T+6}, 15, v0
    v_lshl_add_u32 v{T+5}, v{T+6}, 4, v{T+5}
    v_add_u32 v{VSL}, s62, v{T+5}
    v_mov_b32 v{VC1}, {f32(C1)}
    s_mov_b32 s78, 0x11111111
    s_mov_b32 s79, 0x11111111
    s_sub_u32 s73, s61, s60
    s_lshl_b32 s73, s73, 12
    """)

    def dma(ci):
        part, kc = divmod(ci, 7)
        r = [f"s_add_u32 m0, s65, {slot(ci)*8192}"]
        if part == 0:
            r += ["s_nop 0", f"buffer_load_dwordx4 v{VW}, s[{SW}:{SW+3}], s67 offen lds"]
        elif part == 1:
            r += ["s_nop 0", f"buffer_load_dwordx4 v{VW}, s[{SW}:{SW+3}], s66 offen lds", f"s_add_u32 s66, s66, {64*3584}"]
        else:
            r += ["s_nop 0", f"buffer_load_dwordx4 v{VD}, s[{SD}:{SD+3}], s68 offen lds", "s_add_u32 s68, s68, 128"]
        return r
    def reads(ci):
        part, kc = divmod(ci, 7)
        wf = WF[ci & 1]
        r = []
        for ks in range(4):
            if part == 0:
                r.append(f"ds_read_b128 {v(XF + 16*kc + 4*ks, 4)}, v{VXA[ks]} offset:{(kc & 3)*16384}")
            if part < 2:
                base = VT2 if part == 0 else VT1
                so = (ci * 8192 if ci < 6 else 0) if part == 0 else slot(ci) * 8192
                for hf in range(2):
                    r.append(f"ds_read_b64_tr_b16 {v(wf + 4*ks + 2*hf, 2)}, v{base} offset:{so + ks*2048 + hf*512}")
            else:
                r.append(f"ds_read_b128 {v(wf + 4*ks, 4)}, v{VXA[ks]} offset:{(slot(ci) - 8)*8192}")
        return r
    def mfmas(ci):
        part, kc = divmod(ci, 7)
        wf = WF[ci & 1]
        acc = (ACC2, ACC1, ACCA)[part]
        r = []
        for ks in range(4):
            xf = v(XF + 16*kc + 4*ks, 4); w = v(wf + 4*ks, 4)
            c = "0" if (kc == 0 and ks == 0) else v(acc, 16)
            a_, b_ = (w, xf) if part == 1 else (xf, w)
            r.append(f"v_mfma_f32_32x32x16_bf16 {v(acc,16)}, {a_}, {b_}, {c}")
        return r
    def gelu(acc, tmp):
        r = []
        for g in range(4):
            vs = [acc + 4*g + k for k in range(4)]
            ts = [tmp + (4*g + k) % 8 for k in range(4)]
            r += [f"v_mul_f32 v{t}, v{x}, v{x}" for x, t in zip(vs, ts)]
            r += [f"v_fmaak_f32 v{t}, v{VC1}, v{t}, {f32(C0)}" for t in ts]
            r += [f"v_mul_f32 v{t}, v{t}, v{x}" for x, t in zip(vs, ts)]
            r += [f"v_exp_f32 v{t}, v{t}" for t in ts]
            r += [f"v_add_f32 v{t}, 1.0, v{t}" for t in ts]
            r += [f"v_rcp_f32 v{t}, v{t}" for t in ts]
            r += [f"v_mul_f32 v{x}, v{x}, v{t}" for x, t in zip(vs, ts)]
        return r
    def reduce16(src, tmp):
        r = []
        d = "row_mask:0xf bank_mask:"
        for k in range(8):
            r.append(f"v_add_f32_dpp v{tmp+k}, v{src+k}, v{src+k} row_ror:8 {d}0x3")
        for k in range(8):
            r.append(f"v_add_f32_dpp v{tmp+k}, v{src+k+8}, v{src+k+8} row_ror:8 {d}0xc")
        for k in range(4):
            r.append(f"v_add_f32_dpp v{tmp+k}, v{tmp+k}, v{tmp+k} row_half_mirror {d}0x5")
        for k in range(4):
            r.append(f"v_add_f32_dpp v{tmp+k}, v{tmp+k+4}, v{tmp+k+4} row_half_mirror {d}0xa")
        for k in range(2):
            r.append(f"v_permlane16_swap_b32 v{tmp+k}, v{tmp+k+2}")
        for k in range(2):
            r.append(f"v_add_f32 v{tmp+k}, v{tmp+k}, v{tmp+k+2}")
        return r
    def quad(regs):
        r = []
        for qp in ("[1,0,3,2]", "[2,3,0,1]"):
            for x in regs:
                r.append(f"v_add_f32_dpp v{x}, v{x}, v{x} quad_perm:{qp} row_mask:0xf bank_mask:0xf")
        return r
    def pack_store(acc, order, out, vaddr, srd, so):
        r = []
        for half in range(2):
            ga, gb = order[half]
            o = out + 4*half
            r += [f"v_cvt_pk_bf16_f32 v{o}, v{acc+4*ga}, v{acc+4*ga+1}",
                  f"v_cvt_pk_bf16_f32 v{o+1}, v{acc+4*ga+2}, v{acc+4*ga+3}",
                  f"v_cvt_pk_bf16_f32 v{o+2}, v{acc+4*gb}, v{acc+4*gb+1}",
                  f"v_cvt_pk_bf16_f32 v{o+3}, v{acc+4*gb+2}, v{acc+4*gb+3}",
                  f"buffer_store_dwordx4 {v(o,4)}, v{vaddr}, s[{srd}:{srd+3}], s{so} offen offset:{512*half}"]
        return r
    SQ = T + 8
    RS = T + 24
    RQ = T + 32
    PK = T + 40
    F2 = gelu(ACC2, T)
    F2 += [f"v_mul_f32 v{SQ+k}, v{ACC2+k}, v{ACC2+k}" for k in range(16)]
    ra, rb_ = reduce16(ACC2, RS), reduce16(SQ, RQ)
    for x, y in zip(ra, rb_): F2 += [x, y]
    F2 += quad([RS, RQ, RS+1, RQ+1])
    F2 += [f"v_mov_b32 v{PK}, v{RS}", f"v_mov_b32 v{PK+1}, v{RQ}", f"v_mov_b32 v{PK+2}, v{RS+1}", f"v_mov_b32 v{PK+3}, v{RQ+1}"]
    F2 += [f"s_mov_b64 exec, s[78:79]\nbuffer_store_dwordx4 {v(PK,4)}, v{VST}, s[{SST}:{SST+3}], 0 offen sc1\ns_mov_b64 exec, -1"]
    F1 = gelu(ACC1, T) + pack_store(ACC1, ((0, 1), (2, 3)), T + 8, VZ1, SZ1, 77)

    waits = {0: 17, 1: 14, 2: 13, 3: 12, 4: 11, 5: 10, 6: 9, 7: 4, PUB_STEP: 0}
    def split(lst, n):
        k, m = divmod(len(lst), n)
        out, i = [], 0
        for g in range(n):
            e = i + k + (1 if g < m else 0)
            out.append(lst[i:e]); i = e
        return out
    n2 = 4 * (PUB_STEP - 8) - 1
    f2g = [[]] + split(F2, n2)
    f1g = [[]] + split(F1, 27)
    Lnf = A.newlabel("k1nf")
    for st in range(22):
        if st in waits:
            A(f"s_waitcnt vmcnt({waits[st]})")
            A("s_barrier")
            if STAMP and st == 0: A("s_memrealtime s[82:83]")
            if STAMP and st == 7: A("s_memrealtime s[84:85]")
        pre = []
        if 1 <= st <= 6: pre = dma(6 + 2*(st-1)) + dma(7 + 2*(st-1))
        if st == 7: pre = dma(18) + dma(19) + dma(20)
        if st == 4:
            for r in VXA: A(f"v_add_u32 v{r}, 0x10000, v{r}")
        if st == 6: A(f"v_add_u32 v{VT2}, {-14*8192 & 0xffffffff:#x}, v{VT2}")
        if st == 7:
            for r in VXA: A(f"v_add_u32 v{r}, s73, v{r}")
        if st == PUB_STEP:
            A(f"""
            s_cmp_lg_u32 s54, 0
            s_cbranch_scc1 {Lnf}
            s_lshl_b32 s62, s57, 4
            s_add_u32 s62, s62, s58
            v_mov_b32 v{PK}, 1
            v_mov_b32 v{PK+1}, s62
            s_mov_b64 exec, 1
            buffer_store_byte v{PK}, v{PK+1}, s[{SDB}:{SDB+3}], 0 offen sc1
            s_mov_b64 exec, -1
            """)
            A.label(Lnf)
        rd = reads(st) if st <= 20 else []
        mf = mfmas(st - 1) if st >= 1 else []
        if not mf:
            for x in rd + pre: A(x)
        else:
            rdg = split(rd, 3) + [[]]
            for g in range(4):
                A(mf[g])
                for x in rdg[g]: A(x)
                if g == 2:
                    for x in pre: A(x)
                gi = 4*(st - 8) + g
                if 0 <= gi < len(f2g):
                    for x in f2g[gi]: A(x)
                gi = 4*(st - 15) + g
                if 0 <= gi < len(f1g):
                    for x in f1g[gi]: A(x)
        if rd: A("s_waitcnt lgkmcnt(0)")
    if STAMP: A("s_memrealtime s[86:87]")
    Lp = A.newlabel("k1poll")
    Lok = A.newlabel("k1ok")
    A(f"""
    s_lshl_b32 s62, s57, 4
    v_mov_b32 v{T+20}, s62
    s_mov_b32 s70, 5000
    buffer_load_dwordx4 {v(T+16,4)}, v{T+20}, s[{SDB}:{SDB+3}], 0 offen sc1
    """)
    for x in pack_store(ACCA, ((0, 2), (1, 3)), T + 24, VBT, SBT, 76): A(x)
    for i in range(1, 7): A(f"s_movk_i32 s{62+i}, {4096*i}")
    A(f"s_waitcnt vmcnt(0)")
    A.label(Lp)
    A(f"""
    v_and_b32 v{T+16}, v{T+16}, v{T+17}
    v_or_b32 v{T+19}, 0x01010000, v{T+19}
    v_and_b32 v{T+16}, v{T+16}, v{T+18}
    v_and_b32 v{T+16}, v{T+16}, v{T+19}
    s_nop 0
    v_readfirstlane_b32 s62, v{T+16}
    s_cmp_eq_u32 s62, 0x01010101
    s_cbranch_scc1 {Lok}
    s_sleep 2
    buffer_load_dwordx4 {v(T+16,4)}, v{T+20}, s[{SDB}:{SDB+3}], 0 offen sc1
    s_sub_u32 s70, s70, 1
    s_cmp_lg_u32 s70, 0
    s_waitcnt vmcnt(0)
    s_cbranch_scc1 {Lp}
    """)
    A.label(Lok)
    LD = 16
    for i in range(7):
        so = "0" if i == 0 else f"s{62+i}"
        A(f"buffer_load_dwordx4 {v(LD+4*i,4)}, v{VSL}, s[{SST}:{SST+3}], {so} offen sc1")
    A(f"""
    v_and_b32 v{T}, 15, v0
    v_bfe_u32 v{T+1}, v0, 4, 1
    v_lshlrev_b32 v{T}, 4, v{T}
    v_lshl_add_u32 v{T}, v{T+1}, 3, v{T}
    s_lshl_b32 s62, s54, 8
    s_add_u32 s62, s62, {15*8192}
    v_add_u32 v{T}, s62, v{T}
    v_lshrrev_b32 v{T+1}, 5, v0
    v_lshlrev_b32 v{T+1}, 5, v{T+1}
    v_add_u32 v{T+1}, s62, v{T+1}
    """)
    for i in range(1, 7):
        A(f"s_waitcnt vmcnt({6-i})")
        for k in range(4):
            A(f"v_add_f32 v{LD+k}, v{LD+k}, v{LD+4*i+k}")
    A(f"""
    v_permlane16_swap_b32 v{LD}, v{LD+2}
    v_permlane16_swap_b32 v{LD+1}, v{LD+3}
    v_add_f32 v{LD}, v{LD}, v{LD+2}
    v_add_f32 v{LD+1}, v{LD+1}, v{LD+3}
    v_mov_b32 v{LD+2}, v{LD}
    v_mov_b32 v{LD+3}, v{LD+1}
    v_permlane32_swap_b32 v{LD}, v{LD+2}
    v_permlane32_swap_b32 v{LD+1}, v{LD+3}
    v_add_f32 v{LD}, v{LD}, v{LD+2}
    v_add_f32 v{LD+1}, v{LD+1}, v{LD+3}
    v_mul_f32 v{LD}, {f32(1.0/896)}, v{LD}
    v_mul_f32 v{LD+1}, {f32(1.0/896)}, v{LD+1}
    v_fma_f32 v{LD+1}, -v{LD}, v{LD}, v{LD+1}
    v_max_f32 v{LD+1}, 0, v{LD+1}
    v_add_f32 v{LD+1}, {f32(1e-5)}, v{LD+1}
    v_rsq_f32 v{LD+2}, v{LD+1}
    s_nop 0
    v_mul_f32 v{LD+3}, v{LD}, v{LD+2}
    v_xor_b32 v{LD+3}, 0x80000000, v{LD+3}
    ds_write_b64 v{T}, {v(LD+2,2)}
    s_waitcnt lgkmcnt(0)
    """)
    NB = 48
    for g in range(4):
        for hh in range(2):
            A(f"ds_read_b128 {v(NB + 8*g + 4*hh, 4)}, v{T+1} offset:{64*g + 16*hh}")
    for g in (0, 2, 1, 3):
        A(f"s_waitcnt lgkmcnt({2*(3-g) if g in (0,) else (2 if g == 2 else 0)})")
        for r in range(4):
            A(f"v_fma_f32 v{ACC2+4*g+r}, v{ACC2+4*g+r}, v{NB+8*g+2*r}, v{NB+8*g+2*r+1}")
    for x in pack_store(ACC2, ((0, 2), (1, 3)), T + 8, VBT, SBT, 75): A(x)
    if STAMP:
        A(f"""
        s_waitcnt vmcnt(0)
        s_memrealtime s[88:89]
        s_waitcnt lgkmcnt(0)
        v_mov_b32 v8, s80
        v_mov_b32 v9, s82
        v_mov_b32 v10, s84
        v_mov_b32 v11, s86
        v_mov_b32 v12, s88
        v_mov_b32 v13, s70
        v_mov_b32 v14, 0
        v_mov_b32 v15, 0
        s_lshl_b32 s62, s2, 3
        s_add_u32 s62, s62, s54
        s_lshl_b32 s62, s62, 5
        s_add_u32 s62, s62, {WS_DBG + 0x100000}
        v_mov_b32 v7, s62
        global_store_dwordx4 v7, v[8:11], s[22:23]
        global_store_dwordx4 v7, v[12:15], s[22:23] offset:16
        """)
    A("s_endpgm")

    A.label(Lhelp)
    Lgate = A.newlabel("k1gate")
    A(f"""
    s_lshl_b32 s55, s52, 2
    s_add_u32 s55, s55, s53
    s_sub_u32 s55, s55, 28
    s_waitcnt lgkmcnt(0)
    s_mov_b32 s24, s4
    s_mov_b32 s25, s5
    s_mov_b32 s26, {2048*896}
    s_mov_b32 s27, 0x20000
    s_mov_b32 s28, s18
    s_mov_b32 s29, s19
    s_mov_b32 s30, 896
    s_mov_b32 s31, 0x20000
    s_mov_b32 s32, s16
    s_mov_b32 s33, s17
    s_mov_b32 s34, {896*896}
    s_mov_b32 s35, 0x20000
    s_add_u32 s36, s22, {WS_WOT}
    s_addc_u32 s37, s23, 0
    s_mov_b32 s38, {WOT_BYTES}
    s_mov_b32 s39, 0x20000
    s_add_u32 s40, s22, {WS_G}
    s_addc_u32 s41, s23, 0
    s_mov_b32 s42, 8192
    s_mov_b32 s43, 0x20000
    v_lshrrev_b32 v1, 3, v0
    s_lshl_b32 s56, s55, 6
    s_lshl_b32 s57, s54, 3
    s_add_u32 s56, s56, s57
    v_add_u32 v1, s56, v1
    v_and_b32 v2, 7, v0
    v_lshlrev_b32 v2, 4, v2
    v_mul_u32_u24 v3, 896, v1
    v_add_u32 v3, v3, v2
    """)
    for i in range(7):
        A(f"buffer_load_dwordx4 {v(16+4*i,4)}, v3, s[24:27], 0 offen offset:{128*i}")
        A(f"buffer_load_dwordx4 {v(48+4*i,4)}, v2, s[28:31], 0 offen offset:{128*i}")
    A(f"""
    s_cmp_ge_u32 s55, 28
    s_cbranch_scc1 {Lgate}
    s_mul_i32 s58, s55, 28672
    s_lshl_b32 s59, s54, 10
    s_add_u32 s58, s58, s59
    v_lshlrev_b32 v4, 4, v0
    """)
    L3 = A.newlabel("k1h3")
    for p in range(4):
        if p == 3:
            A(f"s_cmp_ge_u32 s54, 4\ns_cbranch_scc1 {L3}")
        A(f"""
        s_add_u32 m0, s59, {8192*p}
        s_nop 0
        buffer_load_dwordx4 v4, s[32:35], s58 offen lds
        s_add_u32 s58, s58, 8192
        """)
    A.label(L3)
    A(f"""
    v_lshrrev_b32 v5, 2, v0
    v_mul_u32_u24 v5, 896, v5
    v_and_b32 v6, 3, v0
    v_lshl_add_u32 v5, v6, 4, v5
    s_lshr_b32 s60, s54, 1
    s_lshl_b32 s60, s60, 6
    s_and_b32 s61, s54, 1
    s_lshl_b32 s61, s61, 3
    s_add_u32 s60, s60, s61
    v_add_u32 v5, s60, v5
    s_mul_i32 s60, s54, 28
    s_add_u32 s60, s60, s55
    s_lshl_b32 s60, s60, 10
    s_waitcnt vmcnt(0)
    s_barrier
    """)
    for p in range(4):
        A(f"ds_read_b64_tr_b16 {v(80+4*p,2)}, v5 offset:{256*p}")
        A(f"ds_read_b64_tr_b16 {v(82+4*p,2)}, v5 offset:{256*p + 16*896}")
    for p in range(4):
        A(f"s_waitcnt lgkmcnt({2*(3-p)})")
        if p == 3:
            A(f"s_cmp_ge_u32 s54, 4\ns_cbranch_scc1 {Lgate}")
        A(f"buffer_store_dwordx4 {v(80+4*p,4)}, v4, s[36:39], s60 offen")
        A(f"s_add_u32 s60, s60, {8*28*1024}")
    A.label(Lgate)
    A("s_waitcnt vmcnt(0)")
    A("v_mov_b32 v8, 0\nv_mov_b32 v9, 0")
    for i in range(28):
        A(f"v_dot2c_f32_bf16 v{8 + (i&1)}, v{16+i}, v{48+i}")
    A(f"""
    s_nop 2
    v_add_f32 v8, v8, v9
    s_nop 1
    v_add_f32_dpp v8, v8, v8 quad_perm:[1,0,3,2] row_mask:0xf bank_mask:0xf
    s_nop 1
    v_add_f32_dpp v8, v8, v8 quad_perm:[2,3,0,1] row_mask:0xf bank_mask:0xf
    s_nop 1
    v_add_f32_dpp v8, v8, v8 row_half_mirror row_mask:0xf bank_mask:0xf
    v_mul_f32 v8, {f32(-LOG2E)}, v8
    v_exp_f32 v8, v8
    s_nop 0
    v_add_f32 v8, 1.0, v8
    v_rcp_f32 v8, v8
    v_lshlrev_b32 v1, 2, v1
    buffer_store_dword v8, v1, s[40:43], 0 offen
    """)
    A.label(Lend)
    A("s_endpgm")
    return kernel_desc(name, 256, 96, 256)
```

```python
from asmlib import *

WS_BT = 0x0
WS_Z1 = 0x800000
WS_H  = 0xC00000
WS_Y  = 0x1000000
WS_WOT = 0x1400000
WS_G  = 0x1500000
WS_ST = 0x1600000
BT_BYTES = 16 * 32 * 14336
ZH_BYTES = 128 * 28 * 1024
WOT_BYTES = 28 * 28 * 1024

STAGE = 30720
NSLOT = 5
K2_LDS = STAGE * NSLOT

import os
ROT = os.environ.get("K2_ROT", "none")
SKIP = os.environ.get("K2_SKIP", "")
STAMP = os.environ.get("STAMP", "") == "1"
WS_DBG = 0x1800000
def gen_k2(A, name="k2_kernel"):
    kernel_header(A, name)
    Lend = A.newlabel("k2end")
    Lload = A.newlabel("k2load")
    A(f"""
    s_cmp_ge_u32 s2, 256
    s_cbranch_scc1 {Lend}
    {"s_memrealtime s[54:55]" if STAMP else ""}
    s_load_dwordx4 s[4:7], s[0:1], 8
    s_load_dwordx4 s[28:31], s[0:1], 56
    s_load_dwordx2 s[32:33], s[0:1], 104
    s_and_b32 s34, s2, 7
    s_lshr_b32 s35, s2, 3
    s_and_b32 s36, s34, 3
    s_lshl_b32 s36, s36, 2
    s_lshr_b32 s37, s35, 3
    s_add_u32 s36, s36, s37
    s_and_b32 s37, s35, 7
    s_lshr_b32 s38, s34, 2
    s_lshl_b32 s39, s38, 3
    s_add_u32 s39, s39, s37
    v_lshrrev_b32 v1, 6, v0
    v_and_b32 v0, 63, v0
    s_nop 0
    v_readfirstlane_b32 s40, v1
    s_waitcnt lgkmcnt(0)
    s_cmp_lt_u32 s37, 4
    s_cselect_b32 s4, s4, s6
    s_cselect_b32 s5, s5, s7
    s_cmp_eq_u32 s38, 0
    s_cselect_b32 s4, s28, s4
    s_cselect_b32 s5, s29, s5
    s_lshl_b32 s41, s36, 19
    s_add_u32 s8, s4, s41
    s_addc_u32 s9, s5, 0
    s_mov_b32 s10, 0x80000
    s_mov_b32 s11, 0x20000
    s_mul_i32 s41, s39, {32*14336}
    s_add_u32 s12, s32, s41
    s_addc_u32 s13, s33, 0
    s_mov_b32 s14, {32*14336}
    s_mov_b32 s15, 0x20000
    s_cmp_ge_u32 s40, 4
    s_cbranch_scc1 {Lload}
    """)
    FA = [[8 + 16*st + 4*m for m in range(4)] for st in range(2)]
    FB = [[40 + 28*st + 4*n for n in range(7)] for st in range(2)]
    Z1 = 96
    BS = 124
    ACC = 144
    def acc(n, m): return ACC + 4*(n*4 + m)
    VAL, VAH, VB = 2, 3, 4
    WAL, WAH, WB = 5, 6, 7
    VLANE16 = 126
    A(f"""
    s_lshr_b32 s42, s40, 1
    s_and_b32 s43, s40, 1
    v_and_b32 v1, 15, v0
    v_lshrrev_b32 v5, 4, v0
    s_lshl_b32 s44, s43, 2
    v_add_u32 v5, s44, v5
    v_lshrrev_b32 v6, 1, v1
    v_xor_b32 v5, v5, v6
    v_lshlrev_b32 v5, 4, v5
    v_lshl_add_u32 v5, v1, 7, v5
    s_lshl_b32 s44, s42, 13
    s_lshl_b32 s45, s43, 12
    s_add_u32 s46, s44, s45
    s_xor_b32 s47, s46, 0x1000
    v_add_u32 v{VAL}, s46, v5
    v_add_u32 v{VAH}, s47, v5
    s_mul_i32 s44, s43, 7168
    s_add_u32 s44, s44, 16384
    v_lshlrev_b32 v{VLANE16}, 4, v0
    v_add_u32 v{VB}, s44, v{VLANE16}
    """)
    A(f"""
    s_lshl_b32 s44, s36, 3
    s_lshl_b32 s45, s42, 2
    s_add_u32 s44, s44, s45
    s_lshl_b32 s45, s43, 1
    s_add_u32 s44, s44, s45
    s_mul_i32 s45, s37, 7
    s_add_u32 s45, s45, 1
    s_lshr_b32 s45, s45, 1
    s_mul_i32 s46, s44, 28
    s_add_u32 s46, s46, s45
    s_lshl_b32 s48, s46, 10
    s_add_u32 s49, s48, {28*1024}
    s_and_b32 s47, s37, 1
    s_movk_i32 s46, 3072
    s_cmp_eq_u32 s47, 0
    s_cselect_b32 s47, s46, -1016
    s_add_u32 s50, s48, s47
    s_add_u32 s51, s49, s47
    s_add_u32 s16, s32, {WS_Z1}
    s_addc_u32 s17, s33, 0
    s_mov_b32 s18, {ZH_BYTES}
    s_mov_b32 s19, 0x20000
    s_mov_b32 s46, {WS_H}
    s_cmp_eq_u32 s38, 0
    s_cselect_b32 s47, s46, {WS_Y}
    s_add_u32 s20, s32, s47
    s_addc_u32 s21, s33, 0
    s_mov_b32 s22, {ZH_BYTES}
    s_mov_b32 s23, 0x20000
    s_mov_b32 s24, s30
    s_mov_b32 s25, s31
    s_mov_b32 s26, 4096
    s_mov_b32 s27, 0x20000
    """)
    Lnoz = A.newlabel("k2noz")
    A(f"""
    s_cmp_lg_u32 s38, 0
    s_cbranch_scc1 {Lnoz}
    v_lshrrev_b32 v5, 2, v1
    v_lshlrev_b32 v5, 3, v5
    v_and_b32 v6, 3, v1
    v_add_u32 v5, v5, v6
    s_lshl_b32 s47, s44, 4
    v_add_u32 v5, s47, v5
    v_lshlrev_b32 v5, 1, v5
    buffer_load_ushort v{BS}, v5, s[24:27], 0 offen
    buffer_load_ushort v{BS+1}, v5, s[24:27], 0 offen offset:8
    """)
    for mm in range(2):
        so = 48 + mm
        for p in range(3):
            A(f"buffer_load_dwordx4 {v(Z1 + 14*mm + 4*p, 4)}, v{VLANE16}, s[16:19], s{so} offen offset:{1024*p}")
        A(f"buffer_load_dwordx2 {v(Z1 + 14*mm + 12, 2)}, v{VLANE16}, s[16:19], s{50+mm} offen")
    A.label(Lnoz)
    for r in range(112):
        A(f"v_mov_b32 v{ACC + r}, 0")
    A("s_mov_b32 s52, 0")
    def reads(st):
        r = []
        for m in range(4):
            base = WAL if m < 2 else WAH
            r.append(f"ds_read_b128 {v(FA[st][m],4)}, v{base} offset:{2048*(m&1)}")
        for n in range(7):
            r.append(f"ds_read_b128 {v(FB[st][n],4)}, v{WB} offset:{1024*n}")
        return [r[0], r[4], r[1], r[2], r[3]] + r[5:]
    def addr_update():
        return f"""
        v_add_u32 v{WAL}, s52, v{VAL}
        v_add_u32 v{WAH}, s52, v{VAH}
        v_add_u32 v{WB}, s52, v{VB}
        s_add_u32 s52, s52, {STAGE}
        s_cmp_eq_u32 s52, {STAGE*NSLOT}
        s_cselect_b32 s52, 0, s52
        """
    def mfmas(st):
        if "mfma" in SKIP: return ["s_nop 0"] * 28
        return [f"v_mfma_f32_16x16x32_bf16 {v(acc(n,m),4)}, {v(FB[st][n],4)}, {v(FA[st][m],4)}, {v(acc(n,m),4)}"
                for n in range(7) for m in range(4)]
    def iteration(st, with_reads=True):
        if with_reads:
            A("s_barrier")
            A(addr_update())
            for ins in interleave(mfmas(st), reads(st ^ 1), start=0, every=2):
                A(ins)
            A("s_waitcnt lgkmcnt(0)")
        else:
            for ins in mfmas(st):
                A(ins)
    A("s_barrier")
    if STAMP: A("s_memrealtime s[56:57]\ns_memtime s[62:63]")
    A(addr_update())
    for ins in reads(0):
        A(ins)
    A("s_waitcnt lgkmcnt(0)")
    A("s_mov_b32 s53, 15")
    Lloop = A.newlabel("k2loop")
    A.label(Lloop)
    iteration(0)
    iteration(1)
    A(f"""
    s_sub_u32 s53, s53, 1
    s_cmp_lg_u32 s53, 0
    s_cbranch_scc1 {Lloop}
    """)
    iteration(0)
    iteration(1, with_reads=False)
    if STAMP: A("s_memrealtime s[58:59]\ns_memtime s[64:65]\ns_waitcnt lgkmcnt(0)\ns_sub_u32 s62, s64, s62")
    XB = 2 * STAGE
    A(f"""
    s_mul_i32 s47, s40, 14336
    s_add_u32 s47, s47, {XB}
    v_add_u32 v5, s47, v{VLANE16}
    s_xor_b32 s46, s40, 1
    s_mul_i32 s46, s46, 14336
    s_add_u32 s46, s46, {XB}
    v_add_u32 v6, s46, v{VLANE16}
    s_nop 4
    """)
    for n in range(7):
        for mm in range(2):
            A(f"ds_write_b128 v5, {v(acc(n, 2+mm),4)} offset:{(n*2+mm)*1024}")
    A("s_waitcnt lgkmcnt(0)")
    A("s_barrier")
    RX = 8
    for n in range(7):
        for mm in range(2):
            A(f"ds_read_b128 {v(RX + 4*(n*2+mm),4)}, v6 offset:{(n*2+mm)*1024}")
    Ly = A.newlabel("k2y")
    Lfin = A.newlabel("k2fin")
    A(f"""
    s_cmp_lg_u32 s38, 0
    s_cbranch_scc1 {Ly}
    s_waitcnt vmcnt(0)
    v_lshlrev_b32 v{BS}, 16, v{BS}
    v_lshlrev_b32 v{BS+1}, 16, v{BS+1}
    """)
    OUT = 64
    def epi(g2):
        cnt = 14
        for n in range(7):
            for mm in range(2):
                cnt -= 1
                A(f"s_waitcnt lgkmcnt({cnt})")
                rx = RX + 4*(n*2+mm)
                zr = Z1 + 14*mm + 2*n
                o = OUT + 14*mm + 2*n
                for r in range(4):
                    A(f"v_add_f32 v{rx+r}, v{rx+r}, v{acc(n,mm)+r}")
                if g2:
                    for r in range(4):
                        A(f"v_add_f32 v{rx+r}, v{rx+r}, v{BS+mm}")
                    A(f"""
                    v_lshlrev_b32 v92, 16, v{zr}
                    v_and_b32 v93, 0xffff0000, v{zr}
                    v_lshlrev_b32 v94, 16, v{zr+1}
                    v_and_b32 v95, 0xffff0000, v{zr+1}
                    v_mul_f32 v{rx}, v{rx}, v92
                    v_mul_f32 v{rx+1}, v{rx+1}, v93
                    v_mul_f32 v{rx+2}, v{rx+2}, v94
                    v_mul_f32 v{rx+3}, v{rx+3}, v95
                    """)
                A(f"v_cvt_pk_bf16_f32 v{o}, v{rx}, v{rx+1}")
                A(f"v_cvt_pk_bf16_f32 v{o+1}, v{rx+2}, v{rx+3}")
                if n % 2 == 1:
                    p = n // 2
                    A(f"buffer_store_dwordx4 {v(OUT + 14*mm + 4*p,4)}, v{VLANE16}, s[20:23], s{48+mm} offen offset:{1024*p}")
                if n == 6:
                    A(f"buffer_store_dwordx2 {v(OUT + 14*mm + 12,2)}, v{VLANE16}, s[20:23], s{50+mm} offen")
    def stamp_out():
        if not STAMP: return
        A(f"""
        s_waitcnt vmcnt(0)
        s_memrealtime s[60:61]
        s_waitcnt lgkmcnt(0)
        v_mov_b32 v8, s54
        v_mov_b32 v13, s62
        v_mov_b32 v9, s56
        v_mov_b32 v10, s58
        v_mov_b32 v11, s60
        s_lshl_b32 s46, s2, 2
        s_add_u32 s46, s46, s40
        s_lshl_b32 s46, s46, 4
        s_add_u32 s46, s46, {WS_DBG}
        v_mov_b32 v12, s46
        global_store_dwordx4 v12, v[8:11], s[32:33]
        v_lshrrev_b32 v12, 2, v12
        v_add_u32 v12, {WS_DBG + 0x10000 - WS_DBG//4}, v12
        global_store_dword v12, v13, s[32:33]
        """)
    epi(True)
    stamp_out()
    A(f"s_endpgm")
    A.label(Ly)
    epi(False)
    stamp_out()
    A(f"s_endpgm")
    A.label(Lload)
    A(f"""
    s_sub_u32 s42, s40, 4
    v_lshrrev_b32 v1, 5, v0
    v_lshlrev_b32 v1, 3, v1
    v_bfe_u32 v2, v0, 3, 2
    v_add_u32 v1, v1, v2
    s_lshl_b32 s43, s42, 5
    v_add_u32 v1, s43, v1
    v_lshlrev_b32 v1, 12, v1
    v_and_b32 v2, 7, v0
    v_lshrrev_b32 v3, 4, v0
    v_xor_b32 v2, v2, v3
    v_lshlrev_b32 v2, 4, v2
    v_xor_b32 v3, 64, v2
    v_add_u32 v4, v1, v2
    v_add_u32 v5, v1, v3
    v_add_u32 v5, {16*4096 - 1024}, v5
    v_add_u32 v6, {4*4096 - 2048}, v4
    v_add_u32 v7, {4*4096 - 2048}, v5
    s_lshl_b32 s43, s42, 2
    s_cmp_eq_u32 s42, 3
    s_cselect_b32 s43, 11, s43
    s_lshl_b32 s43, s43, 10
    v_lshlrev_b32 v8, 4, v0
    v_add_u32 v8, s43, v8
    s_lshl_b32 s44, s42, 12
    s_add_u32 s45, s43, 16384
    s_mov_b32 s46, 0
    """)
    if ROT == "none":
        A("s_mov_b32 s50, 0")
    elif ROT == "xcd":
        A("s_lshl_b32 s50, s34, 2")
    elif ROT == "mi":
        A("s_lshl_b32 s50, s36, 1\ns_add_u32 s50, s50, s38")
    elif ROT == "wg":
        A("s_mul_i32 s50, s2, 5\ns_and_b32 s50, s50, 31")
    A(f"""
    s_lshl_b32 s47, s50, 7
    s_mul_i32 s48, s50, 14336
    s_cmp_ge_u32 s42, 2
    """)
    Lcls = A.newlabel("k2ldB")
    A(f"s_cbranch_scc1 {Lcls}")
    def issue(nb):
        A(f"""
        s_add_u32 m0, s46, s44
        s_nop 0
        """)
        if "A" not in SKIP: A(f"""
        buffer_load_dwordx4 v4, s[8:11], s47 offen lds
        buffer_load_dwordx4 v5, s[8:11], s47 offen offset:1024 lds
        buffer_load_dwordx4 v6, s[8:11], s47 offen offset:2048 lds
        buffer_load_dwordx4 v7, s[8:11], s47 offen offset:3072 lds
        """)
        A(f"""
        s_add_u32 m0, s46, s45
        s_add_u32 s47, s47, 128
        """)
        for p in range(nb):
            if "B" not in SKIP: A(f"buffer_load_dwordx4 v8, s[12:15], s48 offen offset:{1024*p} lds")
        A(f"""
        s_add_u32 s48, s48, 14336
        s_cmp_eq_u32 s47, 4096
        s_cselect_b32 s47, 0, s47
        s_cselect_b32 s48, 0, s48
        s_add_u32 s46, s46, {STAGE}
        s_cmp_eq_u32 s46, {STAGE*NSLOT}
        s_cselect_b32 s46, 0, s46
        """)
    def loader(nb):
        n = (0 if 'A' in SKIP else 4) + (0 if 'B' in SKIP else nb)
        A("s_mov_b32 s49, 5")
        L0 = A.newlabel("k2pro")
        A.label(L0)
        issue(nb)
        A(f"""
        s_sub_u32 s49, s49, 1
        s_cmp_lg_u32 s49, 0
        s_cbranch_scc1 {L0}
        s_waitcnt vmcnt({4*n})
        s_barrier
        s_mov_b32 s49, 27
        """)
        L1 = A.newlabel("k2ldloop")
        A.label(L1)
        A(f"s_waitcnt vmcnt({3*n})")
        A("s_barrier")
        issue(nb)
        A(f"""
        s_sub_u32 s49, s49, 1
        s_cmp_lg_u32 s49, 0
        s_cbranch_scc1 {L1}
        """)
        for w in (3, 2, 1, 0):
            A(f"s_waitcnt vmcnt({w*n})")
            A("s_barrier")
        A("s_endpgm")
    loader(4)
    A.label(Lcls)
    loader(3)
    A.label(Lend)
    A("s_endpgm")
    return kernel_desc(name, 256, 80, 256)
```

```python
import os
from asmlib import *
from k2 import WS_H, WS_Y, WS_WOT, WS_G, ZH_BYTES, WOT_BYTES, WS_DBG

K3_LDS = 4 * 3 * 4 * 1024
STAMP = os.environ.get("STAMP", "") == "1"

def gen_k3(A, name="k3_kernel"):
    kernel_header(A, name)
    Lend = A.newlabel("k3end")
    A(f"""
    s_cmp_ge_u32 s2, 224
    s_cbranch_scc1 {Lend}
    """)
    if STAMP: A("s_memrealtime s[60:61]")
    A(f"""
    s_load_dwordx2 s[4:5], s[0:1], 88
    s_load_dwordx2 s[6:7], s[0:1], 104
    s_and_b32 s28, s2, 7
    s_lshr_b32 s29, s2, 3
    s_mul_i32 s30, s29, 37
    s_lshr_b32 s30, s30, 8
    s_mul_i32 s31, s30, 7
    s_sub_u32 s31, s29, s31
    s_lshl_b32 s28, s28, 2
    s_add_u32 s30, s30, s28
    v_lshrrev_b32 v1, 6, v0
    v_and_b32 v0, 63, v0
    v_readfirstlane_b32 s32, v1
    v_lshlrev_b32 v2, 4, v0
    v_add_u32 v3, 0x1000, v2
    s_mul_i32 s33, s32, 7168
    s_lshl_b32 s34, s30, 2
    """)
    for mm in range(4):
        A(f"""
        s_add_u32 s35, s32, {mm}
        s_and_b32 s35, s35, 3
        s_add_u32 s35, s35, s34
        s_mul_i32 s35, s35, 28672
        s_add_u32 s{36+mm}, s35, s33
        """)
    A(f"""
    s_mul_i32 s35, s31, {4*28672}
    s_add_u32 s40, s35, s33
    s_add_u32 s41, s40, 28672
    s_add_u32 s42, s41, 28672
    s_add_u32 s43, s42, 28672
    s_waitcnt lgkmcnt(0)
    s_add_u32 s8, s6, {WS_H}
    s_addc_u32 s9, s7, 0
    s_mov_b32 s10, {ZH_BYTES}
    s_mov_b32 s11, 0x20000
    s_add_u32 s12, s6, {WS_WOT}
    s_addc_u32 s13, s7, 0
    s_mov_b32 s14, {WOT_BYTES}
    s_mov_b32 s15, 0x20000
    """)
    HF = 16
    ACC = 128
    YR = 192
    G = 208
    def hf(uu, mm): return v(HF + 16*uu + 4*mm, 4)
    def wf(uu, n): return a(16*uu + 4*n, 4)
    def acc(mm, n): return ACC + 16*mm + 4*n
    for uu in range(7):
        vo = 2 if uu < 4 else 3
        for k in range(4):
            A(f"buffer_load_dwordx4 {wf(uu,k)}, v{vo}, s[12:15], s{40+k} offen offset:{1024*(uu&3)}")
            A(f"buffer_load_dwordx4 {hf(uu,k)}, v{vo}, s[8:11], s{36+k} offen offset:{1024*(uu&3)}")
    A(f"""
    s_add_u32 s16, s6, {WS_Y}
    s_addc_u32 s17, s7, 0
    s_mov_b32 s18, {ZH_BYTES}
    s_mov_b32 s19, 0x20000
    s_add_u32 s20, s6, {WS_G}
    s_addc_u32 s21, s7, 0
    s_mov_b32 s22, 8192
    s_mov_b32 s23, 0x20000
    s_mov_b32 s24, s4
    s_mov_b32 s25, s5
    s_mov_b32 s26, {2048*896}
    s_mov_b32 s27, 0x20000
    s_add_u32 s35, s34, s32
    s_mul_i32 s44, s35, 28672
    s_lshl_b32 s45, s31, 11
    s_add_u32 s44, s44, s45
    s_add_u32 s45, s44, {14*1024}
    buffer_load_dwordx4 {v(YR,4)}, v2, s[16:19], s44 offen
    buffer_load_dwordx4 {v(YR+4,4)}, v2, s[16:19], s44 offen offset:1024
    buffer_load_dwordx4 {v(YR+8,4)}, v2, s[16:19], s45 offen
    buffer_load_dwordx4 {v(YR+12,4)}, v2, s[16:19], s45 offen offset:1024
    s_lshr_b32 s46, s35, 1
    s_lshl_b32 s46, s46, 5
    s_and_b32 s47, s35, 1
    s_lshl_b32 s47, s47, 2
    s_add_u32 s46, s46, s47
    v_bfe_u32 v4, v0, 2, 2
    v_lshlrev_b32 v4, 3, v4
    v_and_b32 v5, 3, v0
    v_add3_u32 v4, v4, v5, s46
    v_lshlrev_b32 v5, 2, v4
    buffer_load_dword v{G}, v5, s[20:23], 0 offen
    v_mul_u32_u24 v4, 896, v4
    v_lshrrev_b32 v5, 4, v0
    v_lshl_add_u32 v4, v5, 4, v4
    s_lshl_b32 s46, s31, 7
    v_add_u32 v4, s46, v4
    """)
    for mm in range(1, 4):
        A(f"""
        s_add_u32 s35, s32, {mm}
        s_and_b32 s35, s35, 3
        s_mul_i32 s35, s35, 12288
        s_add_u32 s35, s35, {4096*(mm-1)}
        v_add_u32 v{5+mm}, s35, v2
        """)
    A(f"""
    s_mul_i32 s35, s32, 12288
    v_add_u32 v9, s35, v2
    """)
    for uu in range(7):
        A(f"s_waitcnt vmcnt({8*(6-uu) + 5})")
        if STAMP and uu == 0: A("s_memrealtime s[62:63]")
        order = [(mm, n) for mm in (1, 2, 3, 0) for n in range(4)]
        for mm, n in order:
            c = "0" if uu == 0 else v(acc(mm, n), 4)
            A(f"v_mfma_f32_16x16x32_bf16 {v(acc(mm,n),4)}, {wf(uu,n)}, {hf(uu,mm)}, {c}")
    if STAMP: A("s_memrealtime s[64:65]")
    for mm in range(1, 4):
        for n in range(4):
            A(f"ds_write_b128 v{5+mm}, {v(acc(mm,n),4)} offset:{1024*n}")
    A(f"""
    s_waitcnt vmcnt(0)
    v_sub_f32 v{G+1}, 1.0, v{G}
    """)
    YF = 16
    for pp in range(2):
        for k in range(4):
            r, i_ = YR + 4*pp + k, YR + 8 + 4*pp + k
            o = YF + 8*pp + 2*k
            A(f"""
            v_lshlrev_b32 v{o}, 16, v{r}
            v_lshlrev_b32 v10, 16, v{i_}
            v_and_b32 v{o+1}, 0xffff0000, v{r}
            v_and_b32 v11, 0xffff0000, v{i_}
            v_sub_f32 v{o}, v{o}, v10
            v_sub_f32 v{o+1}, v{o+1}, v11
            v_mul_f32 v{o}, v{o}, v{G}
            v_mul_f32 v{o+1}, v{o+1}, v{G}
            """)
    A("s_waitcnt lgkmcnt(0)\ns_barrier")
    RX = 32
    for n in range(4):
        for sl in range(3):
            A(f"ds_read_b128 {v(RX + 12*n + 4*sl, 4)}, v9 offset:{4096*sl + 1024*n}")
    OUT = 80
    for n in range(4):
        A(f"s_waitcnt lgkmcnt({3*(3-n)})")
        for r in range(4):
            x = acc(0, n) + r
            A(f"v_add_f32 v{x}, v{x}, v{RX+12*n+r}")
            A(f"v_add_f32 v{RX+12*n+4+r}, v{RX+12*n+4+r}, v{RX+12*n+8+r}")
        for r in range(4):
            x = acc(0, n) + r
            A(f"v_add_f32 v{x}, v{x}, v{RX+12*n+4+r}")
        for r in range(4):
            x = acc(0, n) + r
            A(f"v_fma_f32 v{x}, v{x}, v{G+1}, v{YF + 4*n + r}")
        A(f"v_cvt_pk_bf16_f32 v{OUT+2*n}, v{acc(0,n)}, v{acc(0,n)+1}")
        A(f"v_cvt_pk_bf16_f32 v{OUT+2*n+1}, v{acc(0,n)+2}, v{acc(0,n)+3}")
        if n & 1:
            A(f"buffer_store_dwordx4 {v(OUT + 4*(n>>1), 4)}, v4, s[24:27], 0 offen offset:{64*(n>>1)}")
    if STAMP:
        A(f"""
        s_waitcnt vmcnt(0)
        s_memrealtime s[66:67]
        s_waitcnt lgkmcnt(0)
        v_mov_b32 v8, s60
        v_mov_b32 v9, s62
        v_mov_b32 v10, s64
        v_mov_b32 v11, s66
        s_lshl_b32 s46, s2, 2
        s_add_u32 s46, s46, s32
        s_lshl_b32 s46, s46, 4
        s_add_u32 s46, s46, {WS_DBG + 0x200000}
        v_mov_b32 v12, s46
        global_store_dwordx4 v12, v[8:11], s[6:7]
        """)
    A.label(Lend)
    A("s_endpgm")
    return kernel_desc(name, 368, 80, 256)
```

```python
import sys
from asmlib import *
import k2 as K2
HEAD = open("gated_mix__spectral_fnet__mixer_gmlp__prompt.s.ref").read().split("; Override launch")[0]
def build(which=("k1","k2","k3")):
    A = Asm()
    launches = []
    descs = []
    A.raw('.amdgcn_target "amdgcn-amd-amdhsa--gfx950"')
    A.raw(".text")
    if "k1" in which:
        import k1 as K1
        descs.append(K1.gen_k1(A)); launches.append(f"; @launch kernel=k1_kernel grid=(256,1,1) block=(512,1,1) lds={K1.K1_LDS}")
    if "k2" in which:
        d = K2.gen_k2(A)
        if d: descs.append(d); launches.append(f"; @launch kernel=k2_kernel grid=(256,1,1) block=(512,1,1) lds={K2.K2_LDS}")
    if "k3" in which:
        import k3 as K3
        descs.append(K3.gen_k3(A)); launches.append(f"; @launch kernel=k3_kernel grid=(224,1,1) block=(256,1,1) lds={K3.K3_LDS}")
    A.label("L_code_end")
    rep = []
    A.lines = fix_hazards(A.lines, rep)
    if rep: print("hazard pads:", len(rep), sum(n for n, _ in rep), file=sys.stderr)
    out = HEAD + "\n".join(launches) + "\n" + A.text()
    out += '.section .rodata,"a"\n'
    for d in descs:
        out += ".p2align 6\n" + d
    return out
if __name__ == "__main__":
    which = sys.argv[2].split(",") if len(sys.argv) > 2 else ("k1","k2","k3")
    open(sys.argv[1], "w").write(build(which))
```

```python
import os, struct
from asmlib import *
from k2 import WS_BT, WS_Z1, WS_WOT, WS_G, WS_ST, BT_BYTES, ZH_BYTES, WOT_BYTES, WS_DBG

K1_LDS = 163840
STAMP = os.environ.get("STAMP", "") == "1"
PUB_STEP = int(os.environ.get("K1_PUB", "11"))
PF = os.environ.get("K1_PF", "")
LMOD = os.environ.get("K1_LMOD", "")
PFN = int(os.environ.get("K1_PFN", "8"))
PFX = int(os.environ.get("K1_PFX", "0"))
PFMOD = os.environ.get("K1_PFMOD", "nt")
PROMO = os.environ.get("K1_PROMO", "") == "1"
SMOD = os.environ.get("K1_SMOD", "")
PFS = int(os.environ.get("K1_PFS", "9"))
SM1 = os.environ.get("K1_SM1", SMOD)
SMA = os.environ.get("K1_SMA", SMOD)
SM2 = os.environ.get("K1_SM2", SMOD)
BARS = [int(x) for x in os.environ.get("K1_BARS", "0,1,2,3,4,5,6,7,9,12,15").split(",")]
WSCH = [int(x) for x in os.environ.get("K1_WSCH", "5,5,5,6,6,6,6,7,7,7,7,8,8,8").split(",")]
CLS = int(os.environ.get("K1_CLS", "3"))
FLS = int(os.environ.get("K1_FLS", "8"))
FCS = int(os.environ.get("K1_FCS", "12"))
DS = int(os.environ.get("K1_DS", "18"))
PFB = int(os.environ.get("K1_PFB", "0"))
PF0N = int(os.environ.get("K1_PF0N", "32"))
PF1N = int(os.environ.get("K1_PF1N", "16"))

def f32(x): return "0x%08x" % struct.unpack("<I", struct.pack("<f", x))[0]
C0 = -2.0 * 0.7978845608028654 * 1.4426950408889634
C1 = C0 * 0.044715
LOG2E = 1.4426950408889634

def slot(ci): return (ci + 14) % 20

def gen_k1(A, name="k1_kernel"):
    kernel_header(A, name)
    Lend = A.newlabel("k1end")
    Lhelp = A.newlabel("k1help")
    SX, SW, SD, SBT, SZ1, SST, SDB = 24, 28, 32, 36, 40, 44, 48
    A(f"""
    s_cmp_ge_u32 s2, 256
    s_cbranch_scc1 {Lend}
    """)
    if STAMP: A("s_memrealtime s[80:81]")
    A(f"""
    s_load_dwordx2 s[4:5], s[0:1], 0
    s_load_dwordx4 s[8:11], s[0:1], 24
    s_load_dwordx2 s[12:13], s[0:1], 48
    s_load_dwordx4 s[16:19], s[0:1], 72
    s_load_dwordx4 s[20:23], s[0:1], 96
    s_and_b32 s52, s2, 7
    s_lshr_b32 s53, s2, 3
    v_lshrrev_b32 v1, 6, v0
    v_and_b32 v0, 63, v0
    v_readfirstlane_b32 s54, v1
    s_cmp_ge_u32 s53, 28
    s_cbranch_scc1 {Lhelp}
    s_mul_i32 s55, s53, 37
    s_lshr_b32 s55, s55, 8
    s_mul_i32 s56, s55, 7
    s_sub_u32 s56, s53, s56
    s_lshr_b32 s57, s52, 1
    s_lshl_b32 s57, s57, 2
    s_add_u32 s57, s57, s55
    s_and_b32 s59, s52, 1
    s_mul_i32 s58, s59, 7
    s_add_u32 s58, s58, s56
    """)
    VST, VSL = 2, 3
    VXA = [4, 5, 6, 7]
    VT2, VT1, VX0, VX1, VW, VD, VBT, VZ1 = 8, 9, 10, 11, 12, 13, 14, 15
    XF = 16
    WF = [128, 144]
    ACC2, ACC1, ACCA = 160, 176, 192
    T = 208
    VC1 = 255
    A(f"""
    v_lshrrev_b32 v{T}, 3, v0
    v_lshrrev_b32 v{T+1}, 2, v{T}
    v_lshlrev_b32 v{T+1}, 3, v{T+1}
    v_and_b32 v{T+2}, 3, v{T}
    v_add_u32 v{T+1}, v{T+1}, v{T+2}
    v_and_b32 v{T+2}, 7, v0
    v_lshrrev_b32 v{T+3}, 1, v{T}
    v_xor_b32 v{T+4}, v{T+2}, v{T+3}
    v_lshlrev_b32 v{T+4}, 4, v{T+4}
    s_lshr_b32 s60, s54, 1
    s_and_b32 s61, s54, 1
    s_lshl_b32 s62, s60, 5
    s_lshl_b32 s63, s61, 2
    s_add_u32 s62, s62, s63
    v_add_u32 v{T+5}, s62, v{T+1}
    v_mul_u32_u24 v{T+5}, 896, v{T+5}
    v_add_u32 v{VX0}, v{T+5}, v{T+4}
    v_xor_b32 v{T+6}, 64, v{T+4}
    v_add_u32 v{VX1}, v{T+5}, v{T+6}
    v_add_u32 v{VX1}, {16*896 - 1024}, v{VX1}
    s_lshl_b32 s62, s54, 3
    v_add_u32 v{T+5}, s62, v{T}
    v_mul_u32_u24 v{T+5}, 3584, v{T+5}
    v_and_b32 v{T+6}, 1, v{T+3}
    v_lshlrev_b32 v{T+6}, 2, v{T+6}
    v_xor_b32 v{T+6}, v{T+2}, v{T+6}
    v_lshl_add_u32 v{VW}, v{T+6}, 4, v{T+5}
    s_waitcnt lgkmcnt(0)
    s_mul_i32 s62, s57, {128*896}
    s_add_u32 s{SX}, s4, s62
    s_addc_u32 s{SX+1}, s5, 0
    s_mov_b32 s{SX+2}, {128*896}
    s_mov_b32 s{SX+3}, 0x20000
    s_mov_b32 s{SW}, s12
    s_mov_b32 s{SW+1}, s13
    s_mov_b32 s{SW+2}, {448*3584}
    s_mov_b32 s{SW+3}, 0x20000
    s_lshl_b32 s64, s54, 11
    s_lshl_b32 s65, s54, 10
    s_lshl_b32 s66, s58, 7
    s_add_u32 s67, s66, 1792
    s_mov_b32 s68, 0
    s_add_u32 s69, s65, {14*8192}
    s_mov_b32 s70, 6
    """)
    issued = []
    def xdma(kc):
        issued.extend([("x", kc), ("x", kc)])
        return ["s_mov_b32 m0, s64", "s_add_u32 s64, s64, 16384",
                f"buffer_load_dwordx4 v{VX0}, s[{SX}:{SX+3}], s94 offen {LMOD} lds",
                f"buffer_load_dwordx4 v{VX1}, s[{SX}:{SX+3}], s94 offen offset:1024 {LMOD} lds",
                "s_add_u32 s94, s94, 128"]
    def dma(ci):
        issued.append(("w", ci))
        part, kc = divmod(ci, 7)
        r = [f"s_add_u32 m0, s65, {slot(ci)*8192}"]
        if part == 0:
            r += ["s_nop 0", f"buffer_load_dwordx4 v{VW}, s[{SW}:{SW+3}], s67 offen {LMOD} lds", f"s_add_u32 s67, s67, {64*3584}"]
        elif part == 1:
            r += ["s_nop 0", f"buffer_load_dwordx4 v{VW}, s[{SW}:{SW+3}], s66 offen {LMOD} lds", f"s_add_u32 s66, s66, {64*3584}"]
        else:
            r += ["s_nop 0", f"buffer_load_dwordx4 v{VD}, s[{SD}:{SD+3}], s68 offen {LMOD} lds", "s_add_u32 s68, s68, 128"]
        return r
    A("s_mov_b32 s94, 0")
    for x in xdma(0) + dma(0) + xdma(1): A(x)
    A(f"""
    s_lshr_b32 s62, s54, 2
    s_lshl_b32 s62, s62, 5
    s_lshl_b32 s63, s61, 4
    s_add_u32 s62, s62, s63
    s_and_b32 s63, s60, 1
    s_lshl_b32 s63, s63, 2
    s_add_u32 s62, s62, s63
    v_add_u32 v{T+5}, s62, v{T+1}
    v_mul_u32_u24 v{T+5}, 896, v{T+5}
    s_lshl_b32 s63, s61, 6
    v_xor_b32 v{T+6}, s63, v{T+4}
    v_add_u32 v{VD}, v{T+5}, v{T+6}
    s_cmp_eq_u32 s59, 0
    s_cselect_b32 s8, s8, s10
    s_cselect_b32 s9, s9, s11
    s_mul_i32 s62, s56, {64*896}
    s_add_u32 s{SD}, s8, s62
    s_addc_u32 s{SD+1}, s9, 0
    s_mov_b32 s{SD+2}, {64*896}
    s_mov_b32 s{SD+3}, 0x20000
    s_add_u32 s{SBT}, s22, {WS_BT}
    s_addc_u32 s{SBT+1}, s23, 0
    s_mov_b32 s{SBT+2}, {BT_BYTES}
    s_mov_b32 s{SBT+3}, 0x20000
    s_add_u32 s{SZ1}, s22, {WS_Z1}
    s_addc_u32 s{SZ1+1}, s23, 0
    s_mov_b32 s{SZ1+2}, {ZH_BYTES}
    s_mov_b32 s{SZ1+3}, 0x20000
    s_mul_i32 s62, s57, 28672
    s_add_u32 s62, s62, {WS_ST}
    s_add_u32 s{SST}, s22, s62
    s_addc_u32 s{SST+1}, s23, 0
    s_mov_b32 s{SST+2}, 28672
    s_mov_b32 s{SST+3}, 0x20000
    s_mov_b32 s{SDB}, s20
    s_mov_b32 s{SDB+1}, s21
    s_mov_b32 s{SDB+2}, 256
    s_mov_b32 s{SDB+3}, 0x20000
    s_mov_b32 s68, 0
    """)
    A(f"""
    v_and_b32 v{T}, 31, v0
    v_lshrrev_b32 v{T+1}, 5, v0
    v_bfe_u32 v{T+2}, v0, 1, 3
    v_xor_b32 v{T+2}, v{T+2}, v{T+1}
    v_lshlrev_b32 v{T+2}, 4, v{T+2}
    v_lshl_add_u32 v{T+2}, v{T}, 7, v{T+2}
    s_lshl_b32 s62, s60, 12
    v_add_u32 v{VXA[0]}, s62, v{T+2}
    v_xor_b32 v{VXA[1]}, 32, v{VXA[0]}
    v_xor_b32 v{VXA[2]}, 64, v{VXA[0]}
    v_xor_b32 v{VXA[3]}, 96, v{VXA[0]}
    v_bfe_u32 v{T+2}, v0, 2, 2
    v_lshl_add_u32 v{T+3}, v{T+1}, 3, v{T+2}
    v_lshlrev_b32 v{T+3}, 7, v{T+3}
    v_lshrrev_b32 v{T+2}, 1, v{T+2}
    v_xor_b32 v{T+2}, s61, v{T+2}
    v_lshl_add_u32 v{T+3}, v{T+2}, 6, v{T+3}
    v_bfe_u32 v{T+4}, v0, 4, 1
    v_and_b32 v{T+5}, 3, v0
    v_lshlrev_b32 v{T+6}, 5, v{T+4}
    v_lshl_add_u32 v{T+6}, v{T+5}, 3, v{T+6}
    v_add_u32 v{VT2}, v{T+3}, v{T+6}
    v_add_u32 v{VT2}, {14*8192}, v{VT2}
    v_lshrrev_b32 v{T+6}, 1, v{T+5}
    v_lshlrev_b32 v{T+6}, 5, v{T+6}
    v_lshl_add_u32 v{T+6}, v{T+4}, 4, v{T+6}
    v_and_b32 v{T+5}, 1, v{T+5}
    v_lshl_add_u32 v{T+6}, v{T+5}, 3, v{T+6}
    v_add_u32 v{VT1}, v{T+3}, v{T+6}
    """)
    def tile_off(dst, treg):
        return f"""
        s_mul_i32 s62, s{treg}, 37
        s_lshr_b32 s62, s62, 8
        s_mul_i32 s63, s62, 7
        s_sub_u32 s63, s{treg}, s63
        s_add_u32 s71, s63, 6
        s_cmp_ge_u32 s71, 7
        s_cselect_b32 s72, 7, 0
        s_sub_u32 s71, s71, s72
        s_bitcmp1_b32 s62, 0
        s_cselect_b32 s63, s71, s63
        s_mul_i32 s62, s62, {32*14336}
        s_lshl_b32 s63, s63, 10
        s_add_u32 s{dst}, s62, s63
        """
    A(f"""
    s_lshl_b32 s73, s58, 1
    s_add_u32 s73, s73, s61
    s_lshl_b32 s74, s73, 1
    """)
    A(tile_off(75, 74))
    A("s_add_u32 s74, s74, 1")
    A(tile_off(76, 74))
    A(f"""
    s_sub_u32 s76, s76, s75
    v_and_b32 v{T+5}, 15, v0
    v_lshl_add_u32 v{T+5}, v{T+1}, 4, v{T+5}
    v_lshlrev_b32 v{T+5}, 4, v{T+5}
    v_mul_lo_u32 v{T+6}, v{T+4}, s76
    v_add3_u32 v{VBT}, v{T+5}, v{T+6}, s75
    v_mul_u32_u24 v{T+6}, 28672, v{T+4}
    v_add_u32 v{VZ1}, v{T+5}, v{T+6}
    s_lshl_b32 s62, s57, 2
    s_add_u32 s62, s62, s60
    s_mul_i32 s75, s62, 7168
    s_add_u32 s76, s75, {8*32*14336}
    s_mul_i32 s77, s62, {2*28*1024}
    s_lshl_b32 s63, s73, 10
    s_add_u32 s77, s77, s63
    v_bfe_u32 v{T+5}, v0, 2, 2
    v_lshlrev_b32 v{T+5}, 6, v{T+5}
    v_lshl_add_u32 v{T+5}, v{T+1}, 5, v{T+5}
    v_lshl_add_u32 v{T+5}, v{T+4}, 4, v{T+5}
    s_lshl_b32 s62, s60, 8
    s_add_u32 s63, s63, s62
    v_add_u32 v{VST}, s63, v{T+5}
    v_lshrrev_b32 v{T+5}, 4, v0
    v_lshlrev_b32 v{T+5}, 10, v{T+5}
    v_and_b32 v{T+6}, 15, v0
    v_lshl_add_u32 v{T+5}, v{T+6}, 4, v{T+5}
    v_add_u32 v{VSL}, s62, v{T+5}
    v_mov_b32 v{VC1}, {f32(C1)}
    s_mov_b32 s78, 0x11111111
    s_mov_b32 s79, 0x11111111
    s_sub_u32 s73, s61, s60
    s_lshl_b32 s73, s73, 12
    """)

    PFX_LOAD = """
    s_load_dwordx4 s[4:7], s[0:1], 8
    s_load_dwordx2 s[8:9], s[0:1], 56
    """
    def pfx(lo0, n0, lo1, n1):
        mod = PFMOD
        Lr1 = A.newlabel("k1pr1"); Lpe = A.newlabel("k1pe")
        A(f"""
        s_lshl_b32 s62, s53, 3
        s_add_u32 s62, s62, s54
        s_mov_b32 s10, 0x800000
        s_mov_b32 s11, 0x20000
        s_cmp_ge_u32 s52, 4
        s_cbranch_scc1 {Lr1}
        s_lshl_b32 s62, s62, 13
        s_lshl_b32 s63, s52, 21
        s_add_u32 s62, s62, s63
        v_and_b32 v253, 31, v0
        v_min_u32 v253, {n0 - 1}, v253
        v_lshrrev_b32 v1, 5, v0
        v_lshlrev_b32 v1, 12, v1
        v_lshl_add_u32 v1, v253, 7, v1
        buffer_load_dword v254, v1, s[8:11], s62 offen offset:{128*lo0} {mod}
        s_branch {Lpe}
        """)
        A.label(Lr1)
        A(f"""
        s_bitcmp1_b32 s52, 1
        s_cselect_b32 s8, s6, s4
        s_cselect_b32 s9, s7, s5
        s_lshl_b32 s62, s62, 14
        s_and_b32 s63, s52, 1
        s_lshl_b32 s63, s63, 22
        s_add_u32 s62, s62, s63
        v_lshrrev_b32 v1, 4, v0
        v_lshlrev_b32 v1, 12, v1
        v_and_b32 v253, 15, v0
        v_min_u32 v253, {n1 - 1}, v253
        v_lshl_add_u32 v1, v253, 7, v1
        buffer_load_dword v254, v1, s[8:11], s62 offen offset:{128*lo1} {mod}
        """)
        A.label(Lpe)
        issued.append(("pf", 0))
    def reads(ci):
        part, kc = divmod(ci, 7)
        wf = WF[ci & 1]
        r = []
        for ks in range(4):
            if part == 0:
                r.append(f"ds_read_b128 {v(XF + 16*kc + 4*ks, 4)}, v{VXA[ks]} offset:{(kc & 3)*16384}")
            if part < 2:
                base = VT2 if part == 0 else VT1
                so = (ci * 8192 if ci < 6 else 0) if part == 0 else slot(ci) * 8192
                for hf in range(2):
                    r.append(f"ds_read_b64_tr_b16 {v(wf + 4*ks + 2*hf, 2)}, v{base} offset:{so + ks*2048 + hf*512}")
            else:
                r.append(f"ds_read_b128 {v(wf + 4*ks, 4)}, v{VXA[ks]} offset:{(slot(ci) - 8)*8192}")
        return r
    def mfmas(ci):
        part, kc = divmod(ci, 7)
        wf = WF[ci & 1]
        acc = (ACC2, ACC1, ACCA)[part]
        r = []
        for ks in range(4):
            xf = v(XF + 16*kc + 4*ks, 4); w = v(wf + 4*ks, 4)
            c = "0" if (kc == 0 and ks == 0) else v(acc, 16)
            a_, b_ = (w, xf) if part == 1 else (xf, w)
            r.append(f"v_mfma_f32_32x32x16_bf16 {v(acc,16)}, {a_}, {b_}, {c}")
        return r
    def gelu(acc, tmp):
        r = []
        for g in range(4):
            vs = [acc + 4*g + k for k in range(4)]
            ts = [tmp + (4*g + k) % 8 for k in range(4)]
            r += [f"v_mul_f32 v{t}, v{x}, v{x}" for x, t in zip(vs, ts)]
            r += [f"v_fmaak_f32 v{t}, v{VC1}, v{t}, {f32(C0)}" for t in ts]
            r += [f"v_mul_f32 v{t}, v{t}, v{x}" for x, t in zip(vs, ts)]
            r += [f"v_exp_f32 v{t}, v{t}" for t in ts]
            r += [f"v_add_f32 v{t}, 1.0, v{t}" for t in ts]
            r += [f"v_rcp_f32 v{t}, v{t}" for t in ts]
            r += [f"v_mul_f32 v{x}, v{x}, v{t}" for x, t in zip(vs, ts)]
        return r
    def reduce16(src, tmp):
        r = []
        d = "row_mask:0xf bank_mask:"
        for k in range(8):
            r.append(f"v_add_f32_dpp v{tmp+k}, v{src+k}, v{src+k} row_ror:8 {d}0x3")
        for k in range(8):
            r.append(f"v_add_f32_dpp v{tmp+k}, v{src+k+8}, v{src+k+8} row_ror:8 {d}0xc")
        for k in range(4):
            r.append(f"v_add_f32_dpp v{tmp+k}, v{tmp+k}, v{tmp+k} row_half_mirror {d}0x5")
        for k in range(4):
            r.append(f"v_add_f32_dpp v{tmp+k}, v{tmp+k+4}, v{tmp+k+4} row_half_mirror {d}0xa")
        for k in range(2):
            r.append(f"v_permlane16_swap_b32 v{tmp+k}, v{tmp+k+2}")
        for k in range(2):
            r.append(f"v_add_f32 v{tmp+k}, v{tmp+k}, v{tmp+k+2}")
        return r
    def quad(regs):
        r = []
        for qp in ("[1,0,3,2]", "[2,3,0,1]"):
            for x in regs:
                r.append(f"v_add_f32_dpp v{x}, v{x}, v{x} quad_perm:{qp} row_mask:0xf bank_mask:0xf")
        return r
    def pack_store(acc, order, out, vaddr, srd, so, smod):
        r = []
        for half in range(2):
            ga, gb = order[half]
            o = out + 4*half
            r += [f"v_cvt_pk_bf16_f32 v{o}, v{acc+4*ga}, v{acc+4*ga+1}",
                  f"v_cvt_pk_bf16_f32 v{o+1}, v{acc+4*ga+2}, v{acc+4*ga+3}",
                  f"v_cvt_pk_bf16_f32 v{o+2}, v{acc+4*gb}, v{acc+4*gb+1}",
                  f"v_cvt_pk_bf16_f32 v{o+3}, v{acc+4*gb+2}, v{acc+4*gb+3}",
                  f"buffer_store_dwordx4 {v(o,4)}, v{vaddr}, s[{srd}:{srd+3}], s{so} offen offset:{512*half} {smod}"]
        return r
    SQ = T + 8
    RS = T + 24
    RQ = T + 32
    PK = T + 40
    F2 = gelu(ACC2, T)
    F2 += [f"v_mul_f32 v{SQ+k}, v{ACC2+k}, v{ACC2+k}" for k in range(16)]
    ra, rb_ = reduce16(ACC2, RS), reduce16(SQ, RQ)
    for x, y in zip(ra, rb_): F2 += [x, y]
    F2 += quad([RS, RQ, RS+1, RQ+1])
    F2 += [f"v_mov_b32 v{PK}, v{RS}", f"v_mov_b32 v{PK+1}, v{RQ}", f"v_mov_b32 v{PK+2}, v{RS+1}", f"v_mov_b32 v{PK+3}, v{RQ+1}"]
    F2 += [f"s_mov_b64 exec, s[78:79]\nbuffer_store_dwordx4 {v(PK,4)}, v{VST}, s[{SST}:{SST+3}], 0 offen sc1\ns_mov_b64 exec, -1"]
    F1 = gelu(ACC1, T) + pack_store(ACC1, ((0, 1), (2, 3)), T + 8, VZ1, SZ1, 77, SM1)

    bars = sorted(set(BARS))
    assert CLS in bars and CLS >= 2 and FLS > CLS and FCS > FLS and DS >= FCS and DS > max(WSCH)
    def split(lst, n):
        k, m = divmod(len(lst), n)
        out, i = [], 0
        for g in range(n):
            e = i + k + (1 if g < m else 0)
            out.append(lst[i:e]); i = e
        return out
    def pending_after(tags):
        last = max(i for i, t in enumerate(issued) if t in tags)
        return len(issued) - 1 - last
    def emit(x):
        if "buffer_store" in x: issued.append(("st", 0))
        A(x)
    n2 = 4 * (PUB_STEP - 8) - 1
    f2g = [[]] + split(F2, n2)
    f1g = [[]] + split(F1, 27)
    Lnf = A.newlabel("k1nf")
    Lp = A.newlabel("k1poll")
    Lok = A.newlabel("k1ok")
    LD = T + 16
    A(f"""
    v_mov_b32 v{PK}, -1.0
    v_mov_b32 v{PK+1}, -1.0
    v_mov_b32 v{PK+2}, -1.0
    v_mov_b32 v{PK+3}, -1.0
    s_mov_b64 exec, s[78:79]
    buffer_store_dwordx4 {v(PK,4)}, v{VST}, s[{SST}:{SST+3}], 0 offen sc1
    s_mov_b64 exec, -1
    """)
    issued.append(("st", 0))
    for x in dma(1): A(x)
    FG = ACCA
    assert FCS <= 14
    def stat_loads():
        for i in range(7):
            so = "0" if i == 0 else f"s{62+i}"
            A(f"buffer_load_dwordx4 {v(LD+4*i,4)}, v{VSL}, s[{SST}:{SST+3}], {so} offen sc1")
    for st in range(22):
        if st in bars:
            nxt = min([b for b in bars if b > st] + [21])
            need = [("w", c) for c in range(st, nxt)] + ([("x", st)] if st < 7 else [])
            assert all(t in issued for t in need), (st, need)
            A(f"s_waitcnt vmcnt({pending_after(need)})")
            A("s_barrier")
            if STAMP and st == 0: A("s_memrealtime s[82:83]")
            if STAMP and st == 7: A("s_memrealtime s[84:85]")
        if st == 4:
            for r in VXA: A(f"v_add_u32 v{r}, 0x10000, v{r}")
        if st == 6: A(f"v_add_u32 v{VT2}, {-14*8192 & 0xffffffff:#x}, v{VT2}")
        if st == 7:
            for r in VXA: A(f"v_add_u32 v{r}, s73, v{r}")
        if STAMP and st == PUB_STEP: A("s_memrealtime s[90:91]")
        if st == CLS:
            A(f"""
            s_cmp_lg_u32 s54, 0
            s_cbranch_scc1 {Lnf}
            s_lshl_b32 s62, s57, 4
            s_add_u32 s62, s62, s58
            v_mov_b32 v{PK}, 1
            v_mov_b32 v{PK+1}, s62
            s_mov_b64 exec, 1
            buffer_store_byte v{PK}, v{PK+1}, s[{SDB}:{SDB+3}], 0 offen sc1
            s_mov_b64 exec, -1
            """)
            A.label(Lnf)
        if PFX and st == PFS - 1: A(PFX_LOAD)
        if PFX and st == PFS: pfx(0, PF0N, 0, PF1N)
        if st == FCS:
            A(f"s_waitcnt vmcnt({pending_after([('f', 0)])})")
            A.label(Lp)
            A(f"""
            v_and_b32 v{FG}, v{FG}, v{FG+1}
            v_or_b32 v{FG+3}, 0x01010000, v{FG+3}
            v_and_b32 v{FG}, v{FG}, v{FG+2}
            v_and_b32 v{FG}, v{FG}, v{FG+3}
            s_nop 0
            v_readfirstlane_b32 s62, v{FG}
            s_cmp_eq_u32 s62, 0x01010101
            s_cbranch_scc1 {Lok}
            s_sleep 8
            v_mov_b32 v{FG}, 0
            buffer_load_dwordx4 {v(FG,4)}, v{FG}, s[{SDB}:{SDB+3}], s95 offen sc1
            s_sub_u32 s70, s70, 1
            s_cmp_lg_u32 s70, 0
            s_waitcnt vmcnt(0)
            s_cbranch_scc1 {Lp}
            """)
            A.label(Lok)
        if st == DS:
            for i in range(1, 7): A(f"s_movk_i32 s{62+i}, {4096*i}")
            stat_loads()
            for i in range(7): issued.append(("s", i))
            if PFX and PFB:
                pfx(PF0N, min(2*PFB, 32 - PF0N), PF1N, PFB)
                A("s_movk_i32 s63, 4096")
        pre = []
        if st <= 4: pre = xdma(st + 2) + dma(st + 2)
        for c in range(7, 21):
            if WSCH[c - 7] == st:
                assert st >= ((c - 6) // 2 + 1 if c < 20 else 1) and (c == 20 or (c - 6) // 2 + 1 in bars)
                pre += dma(c)
        if st == FLS:
            pre += [f"s_lshl_b32 s95, s57, 4", "s_mov_b32 s70, 5000", f"v_mov_b32 v{FG}, 0",
                    f"buffer_load_dwordx4 {v(FG,4)}, v{FG}, s[{SDB}:{SDB+3}], s95 offen sc1"]
            issued.append(("f", 0))
        rd = reads(st) if st <= 20 else []
        mf = mfmas(st - 1) if st >= 1 else []
        if not mf:
            for x in rd + pre: A(x)
        else:
            rdg = split(rd, 3) + [[]] if st > 6 else [rd, [], [], []]
            for g in range(4):
                A(mf[g])
                for x in rdg[g]: A(x)
                if g == (2 if st > 6 else 1):
                    for x in pre: A(x)
                gi = 4*(st - 8) + g
                if 0 <= gi < len(f2g):
                    for x in f2g[gi]: emit(x)
                gi = 4*(st - 15) + g
                if 0 <= gi < len(f1g):
                    for x in f1g[gi]: emit(x)
        if rd: A("s_waitcnt lgkmcnt(0)")
    if STAMP: A("s_memrealtime s[86:87]")
    A(f"""
    v_and_b32 v{T}, 15, v0
    v_bfe_u32 v{T+1}, v0, 4, 1
    v_lshlrev_b32 v{T}, 4, v{T}
    v_lshl_add_u32 v{T}, v{T+1}, 3, v{T}
    s_lshl_b32 s62, s54, 8
    s_add_u32 s62, s62, {15*8192}
    v_add_u32 v{T}, s62, v{T}
    v_lshrrev_b32 v{T+1}, 5, v0
    v_lshlrev_b32 v{T+1}, 5, v{T+1}
    v_add_u32 v{T+1}, s62, v{T+1}
    """)
    Lr = A.newlabel("k1re")
    Lgo = A.newlabel("k1go")
    A(f"s_waitcnt vmcnt({pending_after([('s', 6)])})")
    A.label(Lr)
    A(f"v_min_f32 v{T+2}, v{LD+1}, v{LD+3}")
    for i in range(1, 7):
        A(f"v_min3_f32 v{T+2}, v{T+2}, v{LD+4*i+1}, v{LD+4*i+3}")
    A(f"""
    v_cmp_gt_f32 vcc, 0, v{T+2}
    s_nop 1
    s_cmp_eq_u64 vcc, 0
    s_cbranch_scc1 {Lgo}
    s_sleep 4
    """)
    stat_loads()
    A(f"""
    s_sub_u32 s70, s70, 1
    s_cmp_gt_i32 s70, 0
    s_waitcnt vmcnt(0)
    s_cbranch_scc1 {Lr}
    """)
    A.label(Lgo)
    if STAMP: A("s_memrealtime s[92:93]")
    for i in range(1, 7):
        for k in range(4):
            A(f"v_add_f32 v{LD+k}, v{LD+k}, v{LD+4*i+k}")
    A(f"""
    v_permlane16_swap_b32 v{LD}, v{LD+2}
    v_permlane16_swap_b32 v{LD+1}, v{LD+3}
    v_add_f32 v{LD}, v{LD}, v{LD+2}
    v_add_f32 v{LD+1}, v{LD+1}, v{LD+3}
    v_mov_b32 v{LD+2}, v{LD}
    v_mov_b32 v{LD+3}, v{LD+1}
    v_permlane32_swap_b32 v{LD}, v{LD+2}
    v_permlane32_swap_b32 v{LD+1}, v{LD+3}
    v_add_f32 v{LD}, v{LD}, v{LD+2}
    v_add_f32 v{LD+1}, v{LD+1}, v{LD+3}
    v_mul_f32 v{LD}, {f32(1.0/896)}, v{LD}
    v_mul_f32 v{LD+1}, {f32(1.0/896)}, v{LD+1}
    v_fma_f32 v{LD+1}, -v{LD}, v{LD}, v{LD+1}
    v_max_f32 v{LD+1}, 0, v{LD+1}
    v_add_f32 v{LD+1}, {f32(1e-5)}, v{LD+1}
    v_rsq_f32 v{LD+2}, v{LD+1}
    s_nop 0
    v_mul_f32 v{LD+3}, v{LD}, v{LD+2}
    v_xor_b32 v{LD+3}, 0x80000000, v{LD+3}
    ds_write_b64 v{T}, {v(LD+2,2)}
    s_waitcnt lgkmcnt(0)
    """)
    NB = 48
    for g in range(4):
        for hh in range(2):
            A(f"ds_read_b128 {v(NB + 8*g + 4*hh, 4)}, v{T+1} offset:{64*g + 16*hh}")
    for x in pack_store(ACCA, ((0, 2), (1, 3)), T + 24, VBT, SBT, 76, SMA): A(x)
    for g in (0, 2, 1, 3):
        A(f"s_waitcnt lgkmcnt({2*(3-g) if g in (0,) else (2 if g == 2 else 0)})")
        for r in range(4):
            A(f"v_fma_f32 v{ACC2+4*g+r}, v{ACC2+4*g+r}, v{NB+8*g+2*r}, v{NB+8*g+2*r+1}")
    for x in pack_store(ACC2, ((0, 2), (1, 3)), T + 32, VBT, SBT, 75, SM2): A(x)
    if STAMP:
        A(f"""
        s_waitcnt vmcnt(0)
        s_memrealtime s[88:89]
        s_waitcnt lgkmcnt(0)
        v_mov_b32 v8, s80
        v_mov_b32 v9, s82
        v_mov_b32 v10, s84
        v_mov_b32 v11, s86
        v_mov_b32 v12, s88
        v_mov_b32 v13, s70
        v_mov_b32 v14, s90
        v_mov_b32 v15, s92
        s_lshl_b32 s62, s2, 3
        s_add_u32 s62, s62, s54
        s_lshl_b32 s62, s62, 5
        s_add_u32 s62, s62, {WS_DBG + 0x100000}
        v_mov_b32 v7, s62
        global_store_dwordx4 v7, v[8:11], s[22:23]
        global_store_dwordx4 v7, v[12:15], s[22:23] offset:16
        """)
    A("s_endpgm")

    A.label(Lhelp)
    Lgate = A.newlabel("k1gate")
    A(f"""
    s_lshl_b32 s55, s52, 2
    s_add_u32 s55, s55, s53
    s_sub_u32 s55, s55, 28
    s_waitcnt lgkmcnt(0)
    s_mov_b32 s24, s4
    s_mov_b32 s25, s5
    s_mov_b32 s26, {2048*896}
    s_mov_b32 s27, 0x20000
    s_mov_b32 s28, s18
    s_mov_b32 s29, s19
    s_mov_b32 s30, 896
    s_mov_b32 s31, 0x20000
    s_mov_b32 s32, s16
    s_mov_b32 s33, s17
    s_mov_b32 s34, {896*896}
    s_mov_b32 s35, 0x20000
    s_add_u32 s36, s22, {WS_WOT}
    s_addc_u32 s37, s23, 0
    s_mov_b32 s38, {WOT_BYTES}
    s_mov_b32 s39, 0x20000
    s_add_u32 s40, s22, {WS_G}
    s_addc_u32 s41, s23, 0
    s_mov_b32 s42, 8192
    s_mov_b32 s43, 0x20000
    v_lshrrev_b32 v1, 3, v0
    s_lshl_b32 s56, s55, 6
    s_lshl_b32 s57, s54, 3
    s_add_u32 s56, s56, s57
    v_add_u32 v1, s56, v1
    v_and_b32 v2, 7, v0
    v_lshlrev_b32 v2, 4, v2
    v_mul_u32_u24 v3, 896, v1
    v_add_u32 v3, v3, v2
    """)
    def helper_pf():
        A(f"""
        s_load_dwordx4 s[64:67], s[0:1], 8
        s_load_dwordx2 s[68:69], s[0:1], 56
        s_lshl_b32 s62, s55, 18
        s_lshl_b32 s63, s54, 7
        s_add_u32 s62, s62, s63
        v_lshlrev_b32 v7, 12, v0
        s_mov_b32 s46, 0x800000
        s_mov_b32 s47, 0x20000
        s_waitcnt lgkmcnt(0)
        """)
        Lpfe = A.newlabel("k1pfe")
        for i in range((PFN + 7) // 8):
            if PFN - 8*i < 8:
                A(f"s_cmp_ge_u32 s54, {PFN - 8*i}\ns_cbranch_scc1 {Lpfe}")
            for b in (68, 64, 66):
                A(f"""
                s_mov_b32 s44, s{b}
                s_mov_b32 s45, s{b+1}
                buffer_load_dword v100, v7, s[44:47], s62 offen offset:{1024*i}
                """)
        A.label(Lpfe)
    if PF == "h0": helper_pf()
    for i in range(7):
        A(f"buffer_load_dwordx4 {v(16+4*i,4)}, v3, s[24:27], 0 offen offset:{128*i}")
        A(f"buffer_load_dwordx4 {v(48+4*i,4)}, v2, s[28:31], 0 offen offset:{128*i}")
    A(f"""
    s_cmp_ge_u32 s55, 28
    s_cbranch_scc1 {Lgate}
    s_mul_i32 s58, s55, 28672
    s_lshl_b32 s59, s54, 10
    s_add_u32 s58, s58, s59
    v_lshlrev_b32 v4, 4, v0
    """)
    L3 = A.newlabel("k1h3")
    for p in range(4):
        if p == 3:
            A(f"s_cmp_ge_u32 s54, 4\ns_cbranch_scc1 {L3}")
        A(f"""
        s_add_u32 m0, s59, {8192*p}
        s_nop 0
        buffer_load_dwordx4 v4, s[32:35], s58 offen {LMOD} lds
        s_add_u32 s58, s58, 8192
        """)
    A.label(L3)
    A(f"""
    v_lshrrev_b32 v5, 2, v0
    v_mul_u32_u24 v5, 896, v5
    v_and_b32 v6, 3, v0
    v_lshl_add_u32 v5, v6, 4, v5
    s_lshr_b32 s60, s54, 1
    s_lshl_b32 s60, s60, 6
    s_and_b32 s61, s54, 1
    s_lshl_b32 s61, s61, 3
    s_add_u32 s60, s60, s61
    v_add_u32 v5, s60, v5
    s_mul_i32 s60, s54, 28
    s_add_u32 s60, s60, s55
    s_lshl_b32 s60, s60, 10
    s_waitcnt vmcnt(0)
    s_barrier
    """)
    for p in range(4):
        A(f"ds_read_b64_tr_b16 {v(80+4*p,2)}, v5 offset:{256*p}")
        A(f"ds_read_b64_tr_b16 {v(82+4*p,2)}, v5 offset:{256*p + 16*896}")
    for p in range(4):
        A(f"s_waitcnt lgkmcnt({2*(3-p)})")
        if p == 3:
            A(f"s_cmp_ge_u32 s54, 4\ns_cbranch_scc1 {Lgate}")
        A(f"buffer_store_dwordx4 {v(80+4*p,4)}, v4, s[36:39], s60 offen")
        A(f"s_add_u32 s60, s60, {8*28*1024}")
    A.label(Lgate)
    A("s_waitcnt vmcnt(0)")
    A("v_mov_b32 v8, 0\nv_mov_b32 v9, 0")
    for i in range(28):
        A(f"v_dot2c_f32_bf16 v{8 + (i&1)}, v{16+i}, v{48+i}")
    A(f"""
    s_nop 2
    v_add_f32 v8, v8, v9
    s_nop 1
    v_add_f32_dpp v8, v8, v8 quad_perm:[1,0,3,2] row_mask:0xf bank_mask:0xf
    s_nop 1
    v_add_f32_dpp v8, v8, v8 quad_perm:[2,3,0,1] row_mask:0xf bank_mask:0xf
    s_nop 1
    v_add_f32_dpp v8, v8, v8 row_half_mirror row_mask:0xf bank_mask:0xf
    v_mul_f32 v8, {f32(-LOG2E)}, v8
    v_exp_f32 v8, v8
    s_nop 0
    v_add_f32 v8, 1.0, v8
    v_rcp_f32 v8, v8
    v_lshlrev_b32 v1, 2, v1
    buffer_store_dword v8, v1, s[40:43], 0 offen
    """)
    if PF == "h1": helper_pf()
    if PFX:
        A(PFX_LOAD)
        A("s_waitcnt lgkmcnt(0)")
        pfx(0, PF0N, 0, PF1N)
        if PFB: pfx(PF0N, min(2*PFB, 32 - PF0N), PF1N, PFB)
    A.label(Lend)
    A("s_endpgm")
    return kernel_desc(name, 256, 100, 256)
```

```python
from asmlib import *

WS_BT = 0x0
WS_Z1 = 0x800000
WS_H  = 0xC00000
WS_Y  = 0x1000000
WS_WOT = 0x1400000
WS_G  = 0x1500000
WS_ST = 0x1600000
BT_BYTES = 16 * 32 * 14336
ZH_BYTES = 128 * 28 * 1024
WOT_BYTES = 28 * 28 * 1024

STAGE = 30720
NSLOT = 5
K2_LDS = STAGE * NSLOT

import os
ROT = os.environ.get("K2_ROT", "none")
SKIP = os.environ.get("K2_SKIP", "")
STAMP = os.environ.get("STAMP", "") == "1"
WS_DBG = 0x1800000
K2PF = int(os.environ.get("K2_PF", "0"))
K2PFMOD = os.environ.get("K2_PFMOD", "")
AMOD = os.environ.get("K2_AMOD", "")
BMOD = os.environ.get("K2_BMOD", "")
MAP1 = "" if os.environ.get("K2_MAP", "1") == "0" else """
    s_and_b32 s41, s34, 1
    s_lshl_b32 s41, s41, 3
    s_lshr_b32 s42, s35, 2
    s_add_u32 s41, s41, s42
    s_and_b32 s42, s34, 2
    s_lshl_b32 s42, s42, 1
    s_and_b32 s43, s35, 3
    s_add_u32 s42, s42, s43
    s_cmp_lg_u32 s38, 0
    s_cselect_b32 s36, s41, s36
    s_cselect_b32 s37, s42, s37
"""
SMOD2 = os.environ.get("K2_SMOD", "")
WPF = os.environ.get("K2_WPF", "")
K2PF0 = int(os.environ.get("K2_PF0", "8"))
def gen_k2(A, name="k2_kernel"):
    kernel_header(A, name)
    Lend = A.newlabel("k2end")
    Lload = A.newlabel("k2load")
    A(f"""
    s_cmp_ge_u32 s2, 256
    s_cbranch_scc1 {Lend}
    {"s_memrealtime s[54:55]" if STAMP else ""}
    s_load_dwordx4 s[4:7], s[0:1], 8
    s_load_dwordx4 s[28:31], s[0:1], 56
    s_load_dwordx2 s[32:33], s[0:1], 104
    s_and_b32 s34, s2, 7
    s_lshr_b32 s35, s2, 3
    s_and_b32 s36, s34, 3
    s_lshl_b32 s36, s36, 2
    s_lshr_b32 s37, s35, 3
    s_add_u32 s36, s36, s37
    s_and_b32 s37, s35, 7
    s_lshr_b32 s38, s34, 2
    {MAP1}
    s_lshl_b32 s39, s38, 3
    s_add_u32 s39, s39, s37
    v_lshrrev_b32 v1, 6, v0
    v_and_b32 v0, 63, v0
    s_nop 0
    v_readfirstlane_b32 s40, v1
    s_waitcnt lgkmcnt(0)
    s_cmp_lt_u32 s37, 4
    s_cselect_b32 s4, s4, s6
    s_cselect_b32 s5, s5, s7
    s_cmp_eq_u32 s38, 0
    s_cselect_b32 s4, s28, s4
    s_cselect_b32 s5, s29, s5
    s_lshl_b32 s41, s36, 19
    s_add_u32 s8, s4, s41
    s_addc_u32 s9, s5, 0
    s_mov_b32 s10, 0x80000
    s_mov_b32 s11, 0x20000
    s_mul_i32 s41, s39, {32*14336}
    s_add_u32 s12, s32, s41
    s_addc_u32 s13, s33, 0
    s_mov_b32 s14, {32*14336}
    s_mov_b32 s15, 0x20000
    s_cmp_ge_u32 s40, 4
    s_cbranch_scc1 {Lload}
    """)
    FA = [[8 + 16*st + 4*m for m in range(4)] for st in range(2)]
    FB = [[40 + 28*st + 4*n for n in range(7)] for st in range(2)]
    Z1 = 96
    BS = 124
    ACC = 144
    def acc(n, m): return ACC + 4*(n*4 + m)
    VAL, VAH, VB = 2, 3, 4
    WAL, WAH, WB = 5, 6, 7
    VLANE16 = 126
    VPF = 127
    if K2PF:
        A(f"""
        s_lshl_b32 s42, s37, 4
        s_lshl_b32 s43, s40, 2
        s_add_u32 s42, s42, s43
        s_and_b32 s44, s37, 3
        s_lshl_b32 s44, s44, 5
        s_lshl_b32 s43, s40, 3
        s_add_u32 s44, s44, s43
        s_cmp_lg_u32 s38, 0
        s_cselect_b32 s42, s44, s42
        s_cselect_b32 s43, 7, 3
        v_lshrrev_b32 v1, 1, v0
        v_and_b32 v1, s43, v1
        v_add_u32 v1, s42, v1
        v_lshlrev_b32 v1, 12, v1
        v_and_b32 v5, 1, v0
        v_lshl_add_u32 v{VPF}, v5, 7, v1
        s_movk_i32 s66, {128*K2PF0}
        """)
        for i in range((K2PF - K2PF0) // 2):
            A(f"buffer_load_dword v128, v{VPF}, s[8:11], s66 offen {K2PFMOD}")
            A("s_add_u32 s66, s66, 256")
    A(f"""
    s_lshr_b32 s42, s40, 1
    s_and_b32 s43, s40, 1
    v_and_b32 v1, 15, v0
    v_lshrrev_b32 v5, 4, v0
    s_lshl_b32 s44, s43, 2
    v_add_u32 v5, s44, v5
    v_lshrrev_b32 v6, 1, v1
    v_xor_b32 v5, v5, v6
    v_lshlrev_b32 v5, 4, v5
    v_lshl_add_u32 v5, v1, 7, v5
    s_lshl_b32 s44, s42, 13
    s_lshl_b32 s45, s43, 12
    s_add_u32 s46, s44, s45
    s_xor_b32 s47, s46, 0x1000
    v_add_u32 v{VAL}, s46, v5
    v_add_u32 v{VAH}, s47, v5
    s_mul_i32 s44, s43, 7168
    s_add_u32 s44, s44, 16384
    v_lshlrev_b32 v{VLANE16}, 4, v0
    v_add_u32 v{VB}, s44, v{VLANE16}
    """)
    A(f"""
    s_lshl_b32 s44, s36, 3
    s_lshl_b32 s45, s42, 2
    s_add_u32 s44, s44, s45
    s_lshl_b32 s45, s43, 1
    s_add_u32 s44, s44, s45
    s_mul_i32 s45, s37, 7
    s_add_u32 s45, s45, 1
    s_lshr_b32 s45, s45, 1
    s_mul_i32 s46, s44, 28
    s_add_u32 s46, s46, s45
    s_lshl_b32 s48, s46, 10
    s_add_u32 s49, s48, {28*1024}
    s_and_b32 s47, s37, 1
    s_movk_i32 s46, 3072
    s_cmp_eq_u32 s47, 0
    s_cselect_b32 s47, s46, -1016
    s_add_u32 s50, s48, s47
    s_add_u32 s51, s49, s47
    s_add_u32 s16, s32, {WS_Z1}
    s_addc_u32 s17, s33, 0
    s_mov_b32 s18, {ZH_BYTES}
    s_mov_b32 s19, 0x20000
    s_mov_b32 s46, {WS_H}
    s_cmp_eq_u32 s38, 0
    s_cselect_b32 s47, s46, {WS_Y}
    s_add_u32 s20, s32, s47
    s_addc_u32 s21, s33, 0
    s_mov_b32 s22, {ZH_BYTES}
    s_mov_b32 s23, 0x20000
    s_mov_b32 s24, s30
    s_mov_b32 s25, s31
    s_mov_b32 s26, 4096
    s_mov_b32 s27, 0x20000
    """)
    Lnoz = A.newlabel("k2noz")
    A(f"""
    s_cmp_lg_u32 s38, 0
    s_cbranch_scc1 {Lnoz}
    v_lshrrev_b32 v5, 2, v1
    v_lshlrev_b32 v5, 3, v5
    v_and_b32 v6, 3, v1
    v_add_u32 v5, v5, v6
    s_lshl_b32 s47, s44, 4
    v_add_u32 v5, s47, v5
    v_lshlrev_b32 v5, 1, v5
    buffer_load_ushort v{BS}, v5, s[24:27], 0 offen
    buffer_load_ushort v{BS+1}, v5, s[24:27], 0 offen offset:8
    """)
    for mm in range(2):
        so = 48 + mm
        for p in range(3):
            A(f"buffer_load_dwordx4 {v(Z1 + 14*mm + 4*p, 4)}, v{VLANE16}, s[16:19], s{so} offen offset:{1024*p}")
        A(f"buffer_load_dwordx2 {v(Z1 + 14*mm + 12, 2)}, v{VLANE16}, s[16:19], s{50+mm} offen")
    A.label(Lnoz)
    for r in range(112):
        A(f"v_mov_b32 v{ACC + r}, 0")
    A("s_mov_b32 s52, 0")
    def reads(st):
        r = []
        for m in range(4):
            base = WAL if m < 2 else WAH
            r.append(f"ds_read_b128 {v(FA[st][m],4)}, v{base} offset:{2048*(m&1)}")
        for n in range(7):
            r.append(f"ds_read_b128 {v(FB[st][n],4)}, v{WB} offset:{1024*n}")
        return [r[0], r[4], r[1], r[2], r[3]] + r[5:]
    def addr_update():
        return f"""
        v_add_u32 v{WAL}, s52, v{VAL}
        v_add_u32 v{WAH}, s52, v{VAH}
        v_add_u32 v{WB}, s52, v{VB}
        s_add_u32 s52, s52, {STAGE}
        s_cmp_eq_u32 s52, {STAGE*NSLOT}
        s_cselect_b32 s52, 0, s52
        """
    def mfmas(st):
        if "mfma" in SKIP: return ["s_nop 0"] * 28
        return [f"v_mfma_f32_16x16x32_bf16 {v(acc(n,m),4)}, {v(FB[st][n],4)}, {v(FA[st][m],4)}, {v(acc(n,m),4)}"
                for n in range(7) for m in range(4)]
    def iteration(st, with_reads=True):
        if with_reads:
            A("s_barrier")
            A(addr_update())
            for ins in interleave(mfmas(st), reads(st ^ 1), start=0, every=2):
                A(ins)
            A("s_waitcnt lgkmcnt(0)")
        else:
            for ins in mfmas(st):
                A(ins)
    A("s_barrier")
    if STAMP: A("s_memrealtime s[56:57]\ns_memtime s[62:63]")
    A(addr_update())
    for ins in reads(0):
        A(ins)
    A("s_waitcnt lgkmcnt(0)")
    A("s_mov_b32 s53, 15")
    Lloop = A.newlabel("k2loop")
    A.label(Lloop)
    iteration(0)
    if K2PF:
        Lsk = A.newlabel("k2pfs")
        A(f"""
        s_cmp_ge_u32 s66, 4096
        s_cbranch_scc1 {Lsk}
        buffer_load_dword v128, v{VPF}, s[8:11], s66 offen {K2PFMOD}
        s_add_u32 s66, s66, 256
        """)
        A.label(Lsk)
    iteration(1)
    A(f"""
    s_sub_u32 s53, s53, 1
    s_cmp_lg_u32 s53, 0
    s_cbranch_scc1 {Lloop}
    """)
    iteration(0)
    iteration(1, with_reads=False)
    if STAMP: A("s_memrealtime s[58:59]\ns_memtime s[64:65]\ns_waitcnt lgkmcnt(0)\ns_sub_u32 s62, s64, s62")
    XB = 2 * STAGE
    A(f"""
    s_mul_i32 s47, s40, 14336
    s_add_u32 s47, s47, {XB}
    v_add_u32 v5, s47, v{VLANE16}
    s_xor_b32 s46, s40, 1
    s_mul_i32 s46, s46, 14336
    s_add_u32 s46, s46, {XB}
    v_add_u32 v6, s46, v{VLANE16}
    s_nop 4
    """)
    for n in range(7):
        for mm in range(2):
            A(f"ds_write_b128 v5, {v(acc(n, 2+mm),4)} offset:{(n*2+mm)*1024}")
    A("s_waitcnt lgkmcnt(0)")
    A("s_barrier")
    RX = 8
    for n in range(7):
        for mm in range(2):
            A(f"ds_read_b128 {v(RX + 4*(n*2+mm),4)}, v6 offset:{(n*2+mm)*1024}")
    Ly = A.newlabel("k2y")
    Lfin = A.newlabel("k2fin")
    A(f"""
    s_cmp_lg_u32 s38, 0
    s_cbranch_scc1 {Ly}
    s_waitcnt vmcnt(0)
    v_lshlrev_b32 v{BS}, 16, v{BS}
    v_lshlrev_b32 v{BS+1}, 16, v{BS+1}
    """)
    OUT = 64
    def epi(g2):
        cnt = 14
        for n in range(7):
            for mm in range(2):
                cnt -= 1
                A(f"s_waitcnt lgkmcnt({cnt})")
                rx = RX + 4*(n*2+mm)
                zr = Z1 + 14*mm + 2*n
                o = OUT + 14*mm + 2*n
                for r in range(4):
                    A(f"v_add_f32 v{rx+r}, v{rx+r}, v{acc(n,mm)+r}")
                if g2:
                    for r in range(4):
                        A(f"v_add_f32 v{rx+r}, v{rx+r}, v{BS+mm}")
                    A(f"""
                    v_lshlrev_b32 v92, 16, v{zr}
                    v_and_b32 v93, 0xffff0000, v{zr}
                    v_lshlrev_b32 v94, 16, v{zr+1}
                    v_and_b32 v95, 0xffff0000, v{zr+1}
                    v_mul_f32 v{rx}, v{rx}, v92
                    v_mul_f32 v{rx+1}, v{rx+1}, v93
                    v_mul_f32 v{rx+2}, v{rx+2}, v94
                    v_mul_f32 v{rx+3}, v{rx+3}, v95
                    """)
                A(f"v_cvt_pk_bf16_f32 v{o}, v{rx}, v{rx+1}")
                A(f"v_cvt_pk_bf16_f32 v{o+1}, v{rx+2}, v{rx+3}")
                if n % 2 == 1:
                    p = n // 2
                    A(f"buffer_store_dwordx4 {v(OUT + 14*mm + 4*p,4)}, v{VLANE16}, s[20:23], s{48+mm} offen offset:{1024*p} {SMOD2}")
                if n == 6:
                    A(f"buffer_store_dwordx2 {v(OUT + 14*mm + 12,2)}, v{VLANE16}, s[20:23], s{50+mm} offen {SMOD2}")
    def stamp_out():
        if not STAMP: return
        A(f"""
        s_waitcnt vmcnt(0)
        s_memrealtime s[60:61]
        s_waitcnt lgkmcnt(0)
        v_mov_b32 v8, s54
        v_mov_b32 v13, s62
        v_mov_b32 v9, s56
        v_mov_b32 v10, s58
        v_mov_b32 v11, s60
        s_lshl_b32 s46, s2, 2
        s_add_u32 s46, s46, s40
        s_lshl_b32 s46, s46, 4
        s_add_u32 s46, s46, {WS_DBG}
        v_mov_b32 v12, s46
        global_store_dwordx4 v12, v[8:11], s[32:33]
        v_lshrrev_b32 v12, 2, v12
        v_add_u32 v12, {WS_DBG + 0x10000 - WS_DBG//4}, v12
        global_store_dword v12, v13, s[32:33]
        """)
    epi(True)
    stamp_out()
    A(f"s_endpgm")
    A.label(Ly)
    epi(False)
    stamp_out()
    A(f"s_endpgm")
    A.label(Lload)
    A(f"""
    s_sub_u32 s42, s40, 4
    v_lshrrev_b32 v1, 5, v0
    v_lshlrev_b32 v1, 3, v1
    v_bfe_u32 v2, v0, 3, 2
    v_add_u32 v1, v1, v2
    s_lshl_b32 s43, s42, 5
    v_add_u32 v1, s43, v1
    v_lshlrev_b32 v1, 12, v1
    v_and_b32 v2, 7, v0
    v_lshrrev_b32 v3, 4, v0
    v_xor_b32 v2, v2, v3
    v_lshlrev_b32 v2, 4, v2
    v_xor_b32 v3, 64, v2
    v_add_u32 v4, v1, v2
    v_add_u32 v5, v1, v3
    v_add_u32 v5, {16*4096 - 1024}, v5
    v_add_u32 v6, {4*4096 - 2048}, v4
    v_add_u32 v7, {4*4096 - 2048}, v5
    s_lshl_b32 s43, s42, 2
    s_cmp_eq_u32 s42, 3
    s_cselect_b32 s43, 11, s43
    s_lshl_b32 s43, s43, 10
    v_lshlrev_b32 v8, 4, v0
    v_add_u32 v8, s43, v8
    s_lshl_b32 s44, s42, 12
    s_add_u32 s45, s43, 16384
    s_mov_b32 s46, 0
    """)
    if ROT == "none":
        A("s_mov_b32 s50, 0")
    elif ROT == "xcd":
        A("s_lshl_b32 s50, s34, 2")
    elif ROT == "mi":
        A("s_lshl_b32 s50, s36, 1\ns_add_u32 s50, s50, s38")
    elif ROT == "h2":
        A("s_and_b32 s50, s37, 1\ns_lshl_b32 s50, s50, 4")
    elif ROT == "h4":
        A("s_and_b32 s50, s37, 3\ns_lshl_b32 s50, s50, 3")
    elif ROT == "wg":
        A("s_mul_i32 s50, s2, 5\ns_and_b32 s50, s50, 31")
    A(f"""
    s_lshl_b32 s47, s50, 7
    s_mul_i32 s48, s50, 14336
    s_cmp_ge_u32 s42, 2
    """)
    Lcls = A.newlabel("k2ldB")
    A(f"s_cbranch_scc1 {Lcls}")
    def issue(nb):
        A(f"""
        s_add_u32 m0, s46, s44
        s_nop 0
        """)
        if "A" not in SKIP: A(f"""
        buffer_load_dwordx4 v4, s[8:11], s47 offen {AMOD} lds
        buffer_load_dwordx4 v5, s[8:11], s47 offen offset:1024 {AMOD} lds
        buffer_load_dwordx4 v6, s[8:11], s47 offen offset:2048 {AMOD} lds
        buffer_load_dwordx4 v7, s[8:11], s47 offen offset:3072 {AMOD} lds
        """)
        A(f"""
        s_add_u32 m0, s46, s45
        s_add_u32 s47, s47, 128
        """)
        for p in range(nb):
            if "B" not in SKIP: A(f"buffer_load_dwordx4 v8, s[12:15], s48 offen offset:{1024*p} {BMOD} lds")
        A(f"""
        s_add_u32 s48, s48, 14336
        s_cmp_eq_u32 s47, 4096
        s_cselect_b32 s47, 0, s47
        s_cselect_b32 s48, 0, s48
        s_add_u32 s46, s46, {STAGE}
        s_cmp_eq_u32 s46, {STAGE*NSLOT}
        s_cselect_b32 s46, 0, s46
        """)
    def loader(nb):
        n = (0 if 'A' in SKIP else 4) + (0 if 'B' in SKIP else nb)
        A("s_mov_b32 s49, 5")
        L0 = A.newlabel("k2pro")
        A.label(L0)
        issue(nb)
        A(f"""
        s_sub_u32 s49, s49, 1
        s_cmp_lg_u32 s49, 0
        s_cbranch_scc1 {L0}
        s_waitcnt vmcnt({4*n})
        s_barrier
        s_mov_b32 s49, 27
        """)
        L1 = A.newlabel("k2ldloop")
        A.label(L1)
        A(f"s_waitcnt vmcnt({3*n})")
        A("s_barrier")
        issue(nb)
        A(f"""
        s_sub_u32 s49, s49, 1
        s_cmp_lg_u32 s49, 0
        s_cbranch_scc1 {L1}
        """)
        ex = 0
        if WPF:
            ex = 1
            A(f"""
            s_lshl_b32 s50, s35, 2
            s_add_u32 s50, s50, s42
            s_mul_i32 s50, s50, {49*128}
            s_add_u32 s16, s32, {WS_WOT}
            s_addc_u32 s17, s33, 0
            s_mov_b32 s18, {WOT_BYTES}
            s_mov_b32 s19, 0x20000
            v_min_u32 v9, 48, v0
            v_lshlrev_b32 v9, 7, v9
            buffer_load_dword v10, v9, s[16:19], s50 offen
            """)
        for w in (3, 2, 1, 0):
            A(f"s_waitcnt vmcnt({w*n + ex})")
            A("s_barrier")
        A("s_endpgm")
    loader(4)
    A.label(Lcls)
    loader(3)
    A.label(Lend)
    A("s_endpgm")
    return kernel_desc(name, 256, 80, 256)
```

```python
import os
from asmlib import *
from k2 import WS_H, WS_Y, WS_WOT, WS_G, ZH_BYTES, WOT_BYTES, WS_DBG

K3_LDS = 4 * 3 * 4 * 1024
STAMP = os.environ.get("STAMP", "") == "1"

def gen_k3(A, name="k3_kernel"):
    kernel_header(A, name)
    Lend = A.newlabel("k3end")
    A(f"""
    s_cmp_ge_u32 s2, 224
    s_cbranch_scc1 {Lend}
    """)
    if STAMP: A("s_memrealtime s[60:61]")
    A(f"""
    s_load_dwordx2 s[4:5], s[0:1], 88
    s_load_dwordx2 s[6:7], s[0:1], 104
    s_and_b32 s28, s2, 7
    s_lshr_b32 s29, s2, 3
    s_mul_i32 s30, s29, 37
    s_lshr_b32 s30, s30, 8
    s_mul_i32 s31, s30, 7
    s_sub_u32 s31, s29, s31
    s_lshl_b32 s28, s28, 2
    s_add_u32 s30, s30, s28
    v_lshrrev_b32 v1, 6, v0
    v_and_b32 v0, 63, v0
    v_readfirstlane_b32 s32, v1
    v_lshlrev_b32 v2, 4, v0
    v_add_u32 v3, 0x1000, v2
    s_mul_i32 s33, s32, 7168
    s_lshl_b32 s34, s30, 2
    """)
    for mm in range(4):
        A(f"""
        s_add_u32 s35, s32, {mm}
        s_and_b32 s35, s35, 3
        s_add_u32 s35, s35, s34
        s_mul_i32 s35, s35, 28672
        s_add_u32 s{36+mm}, s35, s33
        """)
    A(f"""
    s_mul_i32 s35, s31, {4*28672}
    s_add_u32 s40, s35, s33
    s_add_u32 s41, s40, 28672
    s_add_u32 s42, s41, 28672
    s_add_u32 s43, s42, 28672
    s_waitcnt lgkmcnt(0)
    s_add_u32 s8, s6, {WS_H}
    s_addc_u32 s9, s7, 0
    s_mov_b32 s10, {ZH_BYTES}
    s_mov_b32 s11, 0x20000
    s_add_u32 s12, s6, {WS_WOT}
    s_addc_u32 s13, s7, 0
    s_mov_b32 s14, {WOT_BYTES}
    s_mov_b32 s15, 0x20000
    """)
    HF = 16
    ACC = 128
    YR = 192
    G = 208
    def hf(uu, mm): return v(HF + 16*uu + 4*mm, 4)
    def wf(uu, n): return a(16*uu + 4*n, 4)
    def acc(mm, n): return ACC + 16*mm + 4*n
    for uu in range(7):
        vo = 2 if uu < 4 else 3
        for k in range(4):
            A(f"buffer_load_dwordx4 {wf(uu,k)}, v{vo}, s[12:15], s{40+k} offen offset:{1024*(uu&3)}")
            A(f"buffer_load_dwordx4 {hf(uu,k)}, v{vo}, s[8:11], s{36+k} offen offset:{1024*(uu&3)}")
    A(f"""
    s_add_u32 s16, s6, {WS_Y}
    s_addc_u32 s17, s7, 0
    s_mov_b32 s18, {ZH_BYTES}
    s_mov_b32 s19, 0x20000
    s_add_u32 s20, s6, {WS_G}
    s_addc_u32 s21, s7, 0
    s_mov_b32 s22, 8192
    s_mov_b32 s23, 0x20000
    s_mov_b32 s24, s4
    s_mov_b32 s25, s5
    s_mov_b32 s26, {2048*896}
    s_mov_b32 s27, 0x20000
    s_add_u32 s35, s34, s32
    s_mul_i32 s44, s35, 28672
    s_lshl_b32 s45, s31, 11
    s_add_u32 s44, s44, s45
    s_add_u32 s45, s44, {14*1024}
    buffer_load_dwordx4 {v(YR,4)}, v2, s[16:19], s44 offen
    buffer_load_dwordx4 {v(YR+4,4)}, v2, s[16:19], s44 offen offset:1024
    buffer_load_dwordx4 {v(YR+8,4)}, v2, s[16:19], s45 offen
    buffer_load_dwordx4 {v(YR+12,4)}, v2, s[16:19], s45 offen offset:1024
    s_lshr_b32 s46, s35, 1
    s_lshl_b32 s46, s46, 5
    s_and_b32 s47, s35, 1
    s_lshl_b32 s47, s47, 2
    s_add_u32 s46, s46, s47
    v_bfe_u32 v4, v0, 2, 2
    v_lshlrev_b32 v4, 3, v4
    v_and_b32 v5, 3, v0
    v_add3_u32 v4, v4, v5, s46
    v_lshlrev_b32 v5, 2, v4
    buffer_load_dword v{G}, v5, s[20:23], 0 offen
    v_mul_u32_u24 v4, 896, v4
    v_lshrrev_b32 v5, 4, v0
    v_lshl_add_u32 v4, v5, 4, v4
    s_lshl_b32 s46, s31, 7
    v_add_u32 v4, s46, v4
    """)
    for mm in range(1, 4):
        A(f"""
        s_add_u32 s35, s32, {mm}
        s_and_b32 s35, s35, 3
        s_mul_i32 s35, s35, 12288
        s_add_u32 s35, s35, {4096*(mm-1)}
        v_add_u32 v{5+mm}, s35, v2
        """)
    A(f"""
    s_mul_i32 s35, s32, 12288
    v_add_u32 v9, s35, v2
    """)
    for uu in range(7):
        A(f"s_waitcnt vmcnt({8*(6-uu) + 5})")
        if STAMP and uu == 0: A("s_memrealtime s[62:63]")
        order = [(mm, n) for mm in (1, 2, 3, 0) for n in range(4)]
        for mm, n in order:
            c = "0" if uu == 0 else v(acc(mm, n), 4)
            A(f"v_mfma_f32_16x16x32_bf16 {v(acc(mm,n),4)}, {wf(uu,n)}, {hf(uu,mm)}, {c}")
    if STAMP: A("s_memrealtime s[64:65]")
    for mm in range(1, 4):
        for n in range(4):
            A(f"ds_write_b128 v{5+mm}, {v(acc(mm,n),4)} offset:{1024*n}")
    A(f"""
    s_waitcnt vmcnt(0)
    v_sub_f32 v{G+1}, 1.0, v{G}
    """)
    YF = 16
    for pp in range(2):
        for k in range(4):
            r, i_ = YR + 4*pp + k, YR + 8 + 4*pp + k
            o = YF + 8*pp + 2*k
            A(f"""
            v_lshlrev_b32 v{o}, 16, v{r}
            v_lshlrev_b32 v10, 16, v{i_}
            v_and_b32 v{o+1}, 0xffff0000, v{r}
            v_and_b32 v11, 0xffff0000, v{i_}
            v_sub_f32 v{o}, v{o}, v10
            v_sub_f32 v{o+1}, v{o+1}, v11
            v_mul_f32 v{o}, v{o}, v{G}
            v_mul_f32 v{o+1}, v{o+1}, v{G}
            """)
    A("s_waitcnt lgkmcnt(0)\ns_barrier")
    RX = 32
    for n in range(4):
        for sl in range(3):
            A(f"ds_read_b128 {v(RX + 12*n + 4*sl, 4)}, v9 offset:{4096*sl + 1024*n}")
    OUT = 80
    for n in range(4):
        A(f"s_waitcnt lgkmcnt({3*(3-n)})")
        for r in range(4):
            x = acc(0, n) + r
            A(f"v_add_f32 v{x}, v{x}, v{RX+12*n+r}")
            A(f"v_add_f32 v{RX+12*n+4+r}, v{RX+12*n+4+r}, v{RX+12*n+8+r}")
        for r in range(4):
            x = acc(0, n) + r
            A(f"v_add_f32 v{x}, v{x}, v{RX+12*n+4+r}")
        for r in range(4):
            x = acc(0, n) + r
            A(f"v_fma_f32 v{x}, v{x}, v{G+1}, v{YF + 4*n + r}")
        A(f"v_cvt_pk_bf16_f32 v{OUT+2*n}, v{acc(0,n)}, v{acc(0,n)+1}")
        A(f"v_cvt_pk_bf16_f32 v{OUT+2*n+1}, v{acc(0,n)+2}, v{acc(0,n)+3}")
        if n & 1:
            A(f"buffer_store_dwordx4 {v(OUT + 4*(n>>1), 4)}, v4, s[24:27], 0 offen offset:{64*(n>>1)}")
    if STAMP:
        A(f"""
        s_waitcnt vmcnt(0)
        s_memrealtime s[66:67]
        s_waitcnt lgkmcnt(0)
        v_mov_b32 v8, s60
        v_mov_b32 v9, s62
        v_mov_b32 v10, s64
        v_mov_b32 v11, s66
        s_lshl_b32 s46, s2, 2
        s_add_u32 s46, s46, s32
        s_lshl_b32 s46, s46, 4
        s_add_u32 s46, s46, {WS_DBG + 0x200000}
        v_mov_b32 v12, s46
        global_store_dwordx4 v12, v[8:11], s[6:7]
        """)
        if os.environ.get("DBGOUT", ""):
            W = int(os.environ["DBGOUT"])
            A(f"""
            s_cmp_lg_u32 s2, {W}
            s_cbranch_scc1 {Lend}
            s_cmp_lg_u32 s32, 0
            s_cbranch_scc1 {Lend}
            s_load_dwordx2 s[48:49], s[0:1], 96
            v_mov_b32 v12, {WS_DBG + 0x100000 + W*256}
            global_load_dwordx4 v[16:19], v12, s[6:7]
            global_load_dwordx4 v[20:23], v12, s[6:7] offset:16
            v_mov_b32 v12, {WS_DBG + W*64}
            global_load_dwordx4 v[24:27], v12, s[6:7]
            v_mov_b32 v12, 0
            s_waitcnt vmcnt(0) lgkmcnt(0)
            """)
            for r in list(range(17, 21)) + [22, 23] + list(range(24, 28)) + list(range(8, 12)):
                A(f"v_sub_u32 v{r}, v{r}, v16")
            A(f"""
            s_mov_b64 exec, 1
            global_store_dwordx4 v12, v[16:19], s[48:49]
            global_store_dwordx4 v12, v[20:23], s[48:49] offset:16
            global_store_dwordx4 v12, v[24:27], s[48:49] offset:32
            global_store_dwordx4 v12, v[8:11], s[48:49] offset:48
            """)
    A.label(Lend)
    A("s_endpgm")
    return kernel_desc(name, 368, 80, 256)
```

```python
import os
from asmlib import *
from k2 import WS_H, WS_Y, WS_WOT, WS_G, ZH_BYTES, WOT_BYTES, WS_DBG

K3_LDS = 4 * 3 * 4 * 1024
STAMP = os.environ.get("STAMP", "") == "1"

def gen_k3(A, name="k3_kernel"):
    kernel_header(A, name)
    Lend = A.newlabel("k3end")
    A(f"""
    s_cmp_ge_u32 s2, 224
    s_cbranch_scc1 {Lend}
    """)
    if STAMP: A("s_memrealtime s[60:61]")
    A(f"""
    s_load_dwordx2 s[4:5], s[0:1], 88
    s_load_dwordx2 s[6:7], s[0:1], 104
    s_and_b32 s28, s2, 7
    s_lshr_b32 s29, s2, 3
    s_mul_i32 s30, s29, 37
    s_lshr_b32 s30, s30, 8
    s_mul_i32 s31, s30, 7
    s_sub_u32 s31, s29, s31
    s_lshl_b32 s28, s28, 2
    s_add_u32 s30, s30, s28
    v_lshrrev_b32 v1, 6, v0
    v_and_b32 v0, 63, v0
    v_readfirstlane_b32 s32, v1
    v_lshlrev_b32 v2, 4, v0
    v_add_u32 v3, 0x1000, v2
    s_mul_i32 s33, s32, 7168
    s_lshl_b32 s34, s30, 2
    """)
    for mm in range(4):
        A(f"""
        s_add_u32 s35, s32, {mm}
        s_and_b32 s35, s35, 3
        s_add_u32 s35, s35, s34
        s_mul_i32 s35, s35, 28672
        s_add_u32 s{36+mm}, s35, s33
        """)
    A(f"""
    s_mul_i32 s35, s31, {4*28672}
    s_add_u32 s40, s35, s33
    s_add_u32 s41, s40, 28672
    s_add_u32 s42, s41, 28672
    s_add_u32 s43, s42, 28672
    s_waitcnt lgkmcnt(0)
    s_add_u32 s8, s6, {WS_H}
    s_addc_u32 s9, s7, 0
    s_mov_b32 s10, {ZH_BYTES}
    s_mov_b32 s11, 0x20000
    s_add_u32 s12, s6, {WS_WOT}
    s_addc_u32 s13, s7, 0
    s_mov_b32 s14, {WOT_BYTES}
    s_mov_b32 s15, 0x20000
    """)
    HF = 16
    ACC = 128
    YR = 192
    G = 208
    def hf(uu, mm): return v(HF + 16*uu + 4*mm, 4)
    def wf(uu, n): return a(16*uu + 4*n, 4)
    def acc(mm, n): return ACC + 16*mm + 4*n
    for uu in range(7):
        vo = 2 if uu < 4 else 3
        for k in range(4):
            A(f"buffer_load_dwordx4 {wf(uu,k)}, v{vo}, s[12:15], s{40+k} offen offset:{1024*(uu&3)}")
            A(f"buffer_load_dwordx4 {hf(uu,k)}, v{vo}, s[8:11], s{36+k} offen offset:{1024*(uu&3)}")
    A(f"""
    s_add_u32 s16, s6, {WS_Y}
    s_addc_u32 s17, s7, 0
    s_mov_b32 s18, {ZH_BYTES}
    s_mov_b32 s19, 0x20000
    s_add_u32 s20, s6, {WS_G}
    s_addc_u32 s21, s7, 0
    s_mov_b32 s22, 8192
    s_mov_b32 s23, 0x20000
    s_mov_b32 s24, s4
    s_mov_b32 s25, s5
    s_mov_b32 s26, {2048*896}
    s_mov_b32 s27, 0x20000
    s_add_u32 s35, s34, s32
    s_mul_i32 s44, s35, 28672
    s_lshl_b32 s45, s31, 11
    s_add_u32 s44, s44, s45
    s_add_u32 s45, s44, {14*1024}
    buffer_load_dwordx4 {v(YR,4)}, v2, s[16:19], s44 offen
    buffer_load_dwordx4 {v(YR+4,4)}, v2, s[16:19], s44 offen offset:1024
    buffer_load_dwordx4 {v(YR+8,4)}, v2, s[16:19], s45 offen
    buffer_load_dwordx4 {v(YR+12,4)}, v2, s[16:19], s45 offen offset:1024
    s_lshr_b32 s46, s35, 1
    s_lshl_b32 s46, s46, 5
    s_and_b32 s47, s35, 1
    s_lshl_b32 s47, s47, 2
    s_add_u32 s46, s46, s47
    v_bfe_u32 v4, v0, 2, 2
    v_lshlrev_b32 v4, 3, v4
    v_and_b32 v5, 3, v0
    v_add3_u32 v4, v4, v5, s46
    v_lshlrev_b32 v5, 2, v4
    buffer_load_dword v{G}, v5, s[20:23], 0 offen
    v_mul_u32_u24 v4, 896, v4
    v_lshrrev_b32 v5, 4, v0
    v_lshl_add_u32 v4, v5, 4, v4
    s_lshl_b32 s46, s31, 7
    v_add_u32 v4, s46, v4
    """)
    for mm in range(1, 4):
        A(f"""
        s_add_u32 s35, s32, {mm}
        s_and_b32 s35, s35, 3
        s_mul_i32 s35, s35, 12288
        s_add_u32 s35, s35, {4096*(mm-1)}
        v_add_u32 v{5+mm}, s35, v2
        """)
    A(f"""
    s_mul_i32 s35, s32, 12288
    v_add_u32 v9, s35, v2
    """)
    for uu in range(7):
        A(f"s_waitcnt vmcnt({8*(6-uu) + 5})")
        if STAMP and uu == 0: A("s_memrealtime s[62:63]")
        order = [(mm, n) for mm in (1, 2, 3, 0) for n in range(4)]
        for mm, n in order:
            c = "0" if uu == 0 else v(acc(mm, n), 4)
            A(f"v_mfma_f32_16x16x32_bf16 {v(acc(mm,n),4)}, {wf(uu,n)}, {hf(uu,mm)}, {c}")
    if STAMP: A("s_memrealtime s[64:65]")
    for mm in range(1, 4):
        for n in range(4):
            A(f"ds_write_b128 v{5+mm}, {v(acc(mm,n),4)} offset:{1024*n}")
    A(f"""
    s_waitcnt vmcnt(0)
    v_sub_f32 v{G+1}, 1.0, v{G}
    """)
    YF = 16
    for pp in range(2):
        for k in range(4):
            r, i_ = YR + 4*pp + k, YR + 8 + 4*pp + k
            o = YF + 8*pp + 2*k
            A(f"""
            v_lshlrev_b32 v{o}, 16, v{r}
            v_lshlrev_b32 v10, 16, v{i_}
            v_and_b32 v{o+1}, 0xffff0000, v{r}
            v_and_b32 v11, 0xffff0000, v{i_}
            v_sub_f32 v{o}, v{o}, v10
            v_sub_f32 v{o+1}, v{o+1}, v11
            v_mul_f32 v{o}, v{o}, v{G}
            v_mul_f32 v{o+1}, v{o+1}, v{G}
            """)
    A("s_waitcnt lgkmcnt(0)\ns_barrier")
    RX = 32
    for n in range(4):
        for sl in range(3):
            A(f"ds_read_b128 {v(RX + 12*n + 4*sl, 4)}, v9 offset:{4096*sl + 1024*n}")
    OUT = 80
    for n in range(4):
        A(f"s_waitcnt lgkmcnt({3*(3-n)})")
        for r in range(4):
            x = acc(0, n) + r
            A(f"v_add_f32 v{x}, v{x}, v{RX+12*n+r}")
            A(f"v_add_f32 v{RX+12*n+4+r}, v{RX+12*n+4+r}, v{RX+12*n+8+r}")
        for r in range(4):
            x = acc(0, n) + r
            A(f"v_add_f32 v{x}, v{x}, v{RX+12*n+4+r}")
        for r in range(4):
            x = acc(0, n) + r
            A(f"v_fma_f32 v{x}, v{x}, v{G+1}, v{YF + 4*n + r}")
        A(f"v_cvt_pk_bf16_f32 v{OUT+2*n}, v{acc(0,n)}, v{acc(0,n)+1}")
        A(f"v_cvt_pk_bf16_f32 v{OUT+2*n+1}, v{acc(0,n)+2}, v{acc(0,n)+3}")
        if n & 1:
            A(f"buffer_store_dwordx4 {v(OUT + 4*(n>>1), 4)}, v4, s[24:27], 0 offen offset:{64*(n>>1)}")
    if STAMP:
        A(f"""
        s_waitcnt vmcnt(0)
        s_memrealtime s[66:67]
        s_waitcnt lgkmcnt(0)
        v_mov_b32 v8, s60
        v_mov_b32 v9, s62
        v_mov_b32 v10, s64
        v_mov_b32 v11, s66
        s_lshl_b32 s46, s2, 2
        s_add_u32 s46, s46, s32
        s_lshl_b32 s46, s46, 4
        s_add_u32 s46, s46, {WS_DBG + 0x200000}
        v_mov_b32 v12, s46
        global_store_dwordx4 v12, v[8:11], s[6:7]
        """)
        if os.environ.get("DBGOUT", ""):
            W = int(os.environ["DBGOUT"])
            A(f"""
            s_cmp_lg_u32 s2, {W}
            s_cbranch_scc1 {Lend}
            s_cmp_lg_u32 s32, 0
            s_cbranch_scc1 {Lend}
            s_load_dwordx2 s[48:49], s[0:1], 96
            v_mov_b32 v12, {WS_DBG + 0x100000 + W*256}
            global_load_dwordx4 v[16:19], v12, s[6:7]
            global_load_dwordx4 v[20:23], v12, s[6:7] offset:16
            v_mov_b32 v12, {WS_DBG + W*64}
            global_load_dwordx4 v[24:27], v12, s[6:7]
            v_mov_b32 v12, 0
            s_waitcnt vmcnt(0) lgkmcnt(0)
            """)
            for r in list(range(17, 21)) + [22, 23] + list(range(24, 28)) + list(range(8, 12)):
                A(f"v_sub_u32 v{r}, v{r}, v16")
            A(f"""
            s_mov_b64 exec, 1
            global_store_dwordx4 v12, v[16:19], s[48:49]
            global_store_dwordx4 v12, v[20:23], s[48:49] offset:16
            global_store_dwordx4 v12, v[24:27], s[48:49] offset:32
            global_store_dwordx4 v12, v[8:11], s[48:49] offset:48
            """)
            if os.environ.get("PROBE", ""):
                ra, rb = [int(x) for x in os.environ["PROBE"].split(",")]
                Lw = A.newlabel("k3w")
                A(f"""
                v_mov_b32 v16, 0
                v_sub_u32 v13, v{rb}, v{ra}
                v_min_u32 v13, 8000, v13
                s_nop 1
                v_readfirstlane_b32 s50, v13
                s_lshl_b32 s50, s50, 2
                s_memrealtime s[52:53]
                s_waitcnt lgkmcnt(0)
                """)
                A.label(Lw)
                A(f"""
                s_memrealtime s[54:55]
                s_waitcnt lgkmcnt(0)
                s_sub_u32 s51, s54, s52
                s_cmp_lt_u32 s51, s50
                s_cbranch_scc1 {Lw}
                """)
    A.label(Lend)
    A("s_endpgm")
    return kernel_desc(name, 368, 80, 256)
```

```python
import os, struct
from asmlib import *
from k2 import WS_BT, WS_Z1, WS_WOT, WS_G, WS_ST, BT_BYTES, ZH_BYTES, WOT_BYTES, WS_DBG

K1_LDS = 163840
STAMP = os.environ.get("STAMP", "") == "1"
PUB_STEP = int(os.environ.get("K1_PUB", "10"))
PF = os.environ.get("K1_PF", "")
LMOD = os.environ.get("K1_LMOD", "")
PFN = int(os.environ.get("K1_PFN", "8"))
PFX = int(os.environ.get("K1_PFX", "1"))
PFMOD = os.environ.get("K1_PFMOD", "")
PROMO = os.environ.get("K1_PROMO", "") == "1"
SMOD = os.environ.get("K1_SMOD", "")
PFS = int(os.environ.get("K1_PFS", "9"))
SM1 = os.environ.get("K1_SM1", SMOD)
SMA = os.environ.get("K1_SMA", SMOD)
SM2 = os.environ.get("K1_SM2", SMOD)
BARS = [int(x) for x in os.environ.get("K1_BARS", "0,1,2,3,4,5,6,7,9,12,15").split(",")]
WSCH = [int(x) for x in os.environ.get("K1_WSCH", "5,5,5,6,6,6,6,7,7,7,7,8,8,8").split(",")]
CLS = int(os.environ.get("K1_CLS", "3"))
FLS = int(os.environ.get("K1_FLS", "8"))
FCS = int(os.environ.get("K1_FCS", "12"))
DS = int(os.environ.get("K1_DS", "18"))
PFB = int(os.environ.get("K1_PFB", "0"))
PFG = int(os.environ.get("K1_PFG", "2"))
CPF = os.environ.get("K1_CPF", "1") == "1"
KROT = os.environ.get("K1_KROT", "1") == "1"
STB = [int(x) for x in os.environ.get("K1_STB", "0,7,10").split(",")]
PF0N = int(os.environ.get("K1_PF0N", "8"))
PF1N = int(os.environ.get("K1_PF1N", "8"))

def f32(x): return "0x%08x" % struct.unpack("<I", struct.pack("<f", x))[0]
C0 = -2.0 * 0.7978845608028654 * 1.4426950408889634
C1 = C0 * 0.044715
LOG2E = 1.4426950408889634

def slot(ci): return (ci + 14) % 20

def gen_k1(A, name="k1_kernel"):
    kernel_header(A, name)
    Lend = A.newlabel("k1end")
    Lhelp = A.newlabel("k1help")
    SX, SW, SD, SBT, SZ1, SST, SDB = 24, 28, 32, 36, 40, 44, 48
    CPF_CODE = f"s_cbranch_scc1 {Lhelp}" if not CPF else f"""
    s_cbranch_scc0 L_k1gemm
    s_getpc_b64 s[60:61]
    L_cpf:
    s_sub_u32 s60, s60, L_cpf-k1_kernel
    s_subb_u32 s61, s61, 0
    s_lshl_b32 s55, s54, 13
    v_lshlrev_b32 v1, 7, v0
    v_add_u32 v1, s55, v1
    v_min_u32 v1, L_code_end-k1_kernel-4, v1
    global_load_dword v120, v1, s[60:61]
    s_branch {Lhelp}
    L_k1gemm:
    """
    A(f"""
    s_cmp_ge_u32 s2, 256
    s_cbranch_scc1 {Lend}
    """)
    if STAMP: A("s_memrealtime s[80:81]")
    A(f"""
    s_load_dwordx2 s[4:5], s[0:1], 0
    s_load_dwordx4 s[8:11], s[0:1], 24
    s_load_dwordx2 s[12:13], s[0:1], 48
    s_load_dwordx4 s[16:19], s[0:1], 72
    s_load_dwordx4 s[20:23], s[0:1], 96
    s_and_b32 s52, s2, 7
    s_lshr_b32 s53, s2, 3
    v_lshrrev_b32 v1, 6, v0
    v_and_b32 v0, 63, v0
    v_readfirstlane_b32 s54, v1
    s_cmp_ge_u32 s53, 28
    {CPF_CODE}
    s_mul_i32 s55, s53, 37
    s_lshr_b32 s55, s55, 8
    s_mul_i32 s56, s55, 7
    s_sub_u32 s56, s53, s56
    s_lshr_b32 s57, s52, 1
    s_lshl_b32 s57, s57, 2
    s_add_u32 s57, s57, s55
    s_and_b32 s59, s52, 1
    s_mul_i32 s58, s59, 7
    s_add_u32 s58, s58, s56
    """)
    VST, VSL = 2, 3
    VXA = [4, 5, 6, 7]
    VT2, VT1, VX0, VX1, VW, VD, VBT, VZ1 = 8, 9, 10, 11, 12, 13, 14, 15
    XF = 16
    WF = [128, 144]
    ACC2, ACC1, ACCA = 160, 176, 192
    T = 208
    VC1 = 255
    A(f"""
    v_lshrrev_b32 v{T}, 3, v0
    v_lshrrev_b32 v{T+1}, 2, v{T}
    v_lshlrev_b32 v{T+1}, 3, v{T+1}
    v_and_b32 v{T+2}, 3, v{T}
    v_add_u32 v{T+1}, v{T+1}, v{T+2}
    v_and_b32 v{T+2}, 7, v0
    v_lshrrev_b32 v{T+3}, 1, v{T}
    v_xor_b32 v{T+4}, v{T+2}, v{T+3}
    v_lshlrev_b32 v{T+4}, 4, v{T+4}
    s_lshr_b32 s60, s54, 1
    s_and_b32 s61, s54, 1
    s_lshl_b32 s62, s60, 5
    s_lshl_b32 s63, s61, 2
    s_add_u32 s62, s62, s63
    v_add_u32 v{T+5}, s62, v{T+1}
    v_mul_u32_u24 v{T+5}, 896, v{T+5}
    v_add_u32 v{VX0}, v{T+5}, v{T+4}
    v_xor_b32 v{T+6}, 64, v{T+4}
    v_add_u32 v{VX1}, v{T+5}, v{T+6}
    v_add_u32 v{VX1}, {16*896 - 1024}, v{VX1}
    s_lshl_b32 s62, s54, 3
    v_add_u32 v{T+5}, s62, v{T}
    v_mul_u32_u24 v{T+5}, 3584, v{T+5}
    v_and_b32 v{T+6}, 1, v{T+3}
    v_lshlrev_b32 v{T+6}, 2, v{T+6}
    v_xor_b32 v{T+6}, v{T+2}, v{T+6}
    v_lshl_add_u32 v{VW}, v{T+6}, 4, v{T+5}
    s_waitcnt lgkmcnt(0)
    s_mul_i32 s62, s57, {128*896}
    s_add_u32 s{SX}, s4, s62
    s_addc_u32 s{SX+1}, s5, 0
    s_mov_b32 s{SX+2}, {128*896}
    s_mov_b32 s{SX+3}, 0x20000
    s_mov_b32 s{SW}, s12
    s_mov_b32 s{SW+1}, s13
    s_mov_b32 s{SW+2}, {448*3584}
    s_mov_b32 s{SW+3}, 0x20000
    s_lshl_b32 s64, s54, 11
    s_lshl_b32 s65, s54, 10
    s_lshl_b32 s66, s58, 7
    s_add_u32 s67, s66, 1792
    s_mov_b32 s68, 0
    s_add_u32 s69, s65, {14*8192}
    s_mov_b32 s70, 6
    """)
    issued = []
    def wrap(r, lim, n):
        if not KROT: return []
        return [f"s_cmp_ge_u32 s{r}, s{lim}", f"s_cselect_b32 s99, s{lim}, 0", f"s_sub_u32 s{r}, s{r}, s99"]
    def xdma(kc):
        issued.extend([("x", kc), ("x", kc)])
        return ["s_mov_b32 m0, s64", "s_add_u32 s64, s64, 16384",
                f"buffer_load_dwordx4 v{VX0}, s[{SX}:{SX+3}], s94 offen {LMOD} lds",
                f"buffer_load_dwordx4 v{VX1}, s[{SX}:{SX+3}], s94 offen offset:1024 {LMOD} lds",
                "s_add_u32 s94, s94, 128"] + wrap(94, 96, 896)
    def dma(ci):
        issued.append(("w", ci))
        part, kc = divmod(ci, 7)
        r = [f"s_add_u32 m0, s65, {slot(ci)*8192}"]
        if part == 0:
            r += ["s_nop 0", f"buffer_load_dwordx4 v{VW}, s[{SW}:{SW+3}], s67 offen {LMOD} lds", f"s_add_u32 s67, s67, {64*3584}"] + wrap(67, 97, 448*3584)
        elif part == 1:
            r += ["s_nop 0", f"buffer_load_dwordx4 v{VW}, s[{SW}:{SW+3}], s66 offen {LMOD} lds", f"s_add_u32 s66, s66, {64*3584}"] + wrap(66, 97, 448*3584)
        else:
            r += ["s_nop 0", f"buffer_load_dwordx4 v{VD}, s[{SD}:{SD+3}], s68 offen {LMOD} lds", "s_add_u32 s68, s68, 128"] + wrap(68, 96, 896)
        return r
    if KROT:
        A(f"""
        s_lshl_b32 s62, s57, 1
        s_add_u32 s62, s62, s58
        s_mul_i32 s63, s62, 37
        s_lshr_b32 s63, s63, 8
        s_mul_i32 s63, s63, 7
        s_sub_u32 s62, s62, s63
        s_lshl_b32 s94, s62, 7
        s_mov_b32 s98, s94
        s_mul_i32 s62, s62, {64*3584}
        s_add_u32 s66, s66, s62
        s_add_u32 s67, s67, s62
        s_movk_i32 s96, 896
        s_mov_b32 s97, {448*3584}
        """)
    else:
        A("s_mov_b32 s94, 0")
    for x in xdma(0) + dma(0) + xdma(1): A(x)
    A(f"""
    s_lshr_b32 s62, s54, 2
    s_lshl_b32 s62, s62, 5
    s_lshl_b32 s63, s61, 4
    s_add_u32 s62, s62, s63
    s_and_b32 s63, s60, 1
    s_lshl_b32 s63, s63, 2
    s_add_u32 s62, s62, s63
    v_add_u32 v{T+5}, s62, v{T+1}
    v_mul_u32_u24 v{T+5}, 896, v{T+5}
    s_lshl_b32 s63, s61, 6
    v_xor_b32 v{T+6}, s63, v{T+4}
    v_add_u32 v{VD}, v{T+5}, v{T+6}
    s_cmp_eq_u32 s59, 0
    s_cselect_b32 s8, s8, s10
    s_cselect_b32 s9, s9, s11
    s_mul_i32 s62, s56, {64*896}
    s_add_u32 s{SD}, s8, s62
    s_addc_u32 s{SD+1}, s9, 0
    s_mov_b32 s{SD+2}, {64*896}
    s_mov_b32 s{SD+3}, 0x20000
    s_add_u32 s{SBT}, s22, {WS_BT}
    s_addc_u32 s{SBT+1}, s23, 0
    s_mov_b32 s{SBT+2}, {BT_BYTES}
    s_mov_b32 s{SBT+3}, 0x20000
    s_add_u32 s{SZ1}, s22, {WS_Z1}
    s_addc_u32 s{SZ1+1}, s23, 0
    s_mov_b32 s{SZ1+2}, {ZH_BYTES}
    s_mov_b32 s{SZ1+3}, 0x20000
    s_mul_i32 s62, s57, 28672
    s_add_u32 s62, s62, {WS_ST}
    s_add_u32 s{SST}, s22, s62
    s_addc_u32 s{SST+1}, s23, 0
    s_mov_b32 s{SST+2}, 28672
    s_mov_b32 s{SST+3}, 0x20000
    s_mov_b32 s{SDB}, s20
    s_mov_b32 s{SDB+1}, s21
    s_mov_b32 s{SDB+2}, 256
    s_mov_b32 s{SDB+3}, 0x20000
    s_mov_b32 s68, {"s98" if KROT else "0"}
    """)
    A(f"""
    v_and_b32 v{T}, 31, v0
    v_lshrrev_b32 v{T+1}, 5, v0
    v_bfe_u32 v{T+2}, v0, 1, 3
    v_xor_b32 v{T+2}, v{T+2}, v{T+1}
    v_lshlrev_b32 v{T+2}, 4, v{T+2}
    v_lshl_add_u32 v{T+2}, v{T}, 7, v{T+2}
    s_lshl_b32 s62, s60, 12
    v_add_u32 v{VXA[0]}, s62, v{T+2}
    v_xor_b32 v{VXA[1]}, 32, v{VXA[0]}
    v_xor_b32 v{VXA[2]}, 64, v{VXA[0]}
    v_xor_b32 v{VXA[3]}, 96, v{VXA[0]}
    v_bfe_u32 v{T+2}, v0, 2, 2
    v_lshl_add_u32 v{T+3}, v{T+1}, 3, v{T+2}
    v_lshlrev_b32 v{T+3}, 7, v{T+3}
    v_lshrrev_b32 v{T+2}, 1, v{T+2}
    v_xor_b32 v{T+2}, s61, v{T+2}
    v_lshl_add_u32 v{T+3}, v{T+2}, 6, v{T+3}
    v_bfe_u32 v{T+4}, v0, 4, 1
    v_and_b32 v{T+5}, 3, v0
    v_lshlrev_b32 v{T+6}, 5, v{T+4}
    v_lshl_add_u32 v{T+6}, v{T+5}, 3, v{T+6}
    v_add_u32 v{VT2}, v{T+3}, v{T+6}
    v_add_u32 v{VT2}, {14*8192}, v{VT2}
    v_lshrrev_b32 v{T+6}, 1, v{T+5}
    v_lshlrev_b32 v{T+6}, 5, v{T+6}
    v_lshl_add_u32 v{T+6}, v{T+4}, 4, v{T+6}
    v_and_b32 v{T+5}, 1, v{T+5}
    v_lshl_add_u32 v{T+6}, v{T+5}, 3, v{T+6}
    v_add_u32 v{VT1}, v{T+3}, v{T+6}
    """)
    def tile_off(dst, treg):
        return f"""
        s_mul_i32 s62, s{treg}, 37
        s_lshr_b32 s62, s62, 8
        s_mul_i32 s63, s62, 7
        s_sub_u32 s63, s{treg}, s63
        s_add_u32 s71, s63, 6
        s_cmp_ge_u32 s71, 7
        s_cselect_b32 s72, 7, 0
        s_sub_u32 s71, s71, s72
        s_bitcmp1_b32 s62, 0
        s_cselect_b32 s63, s71, s63
        s_mul_i32 s62, s62, {32*14336}
        s_lshl_b32 s63, s63, 10
        s_add_u32 s{dst}, s62, s63
        """
    A(f"""
    s_lshl_b32 s73, s58, 1
    s_add_u32 s73, s73, s61
    s_lshl_b32 s74, s73, 1
    """)
    A(tile_off(75, 74))
    A("s_add_u32 s74, s74, 1")
    A(tile_off(76, 74))
    A(f"""
    s_sub_u32 s76, s76, s75
    v_and_b32 v{T+5}, 15, v0
    v_lshl_add_u32 v{T+5}, v{T+1}, 4, v{T+5}
    v_lshlrev_b32 v{T+5}, 4, v{T+5}
    v_mul_lo_u32 v{T+6}, v{T+4}, s76
    v_add3_u32 v{VBT}, v{T+5}, v{T+6}, s75
    v_mul_u32_u24 v{T+6}, 28672, v{T+4}
    v_add_u32 v{VZ1}, v{T+5}, v{T+6}
    s_lshl_b32 s62, s57, 2
    s_add_u32 s62, s62, s60
    s_mul_i32 s75, s62, 7168
    s_add_u32 s76, s75, {8*32*14336}
    s_mul_i32 s77, s62, {2*28*1024}
    s_lshl_b32 s63, s73, 10
    s_add_u32 s77, s77, s63
    v_bfe_u32 v{T+5}, v0, 2, 2
    v_lshlrev_b32 v{T+5}, 6, v{T+5}
    v_lshl_add_u32 v{T+5}, v{T+1}, 5, v{T+5}
    v_lshl_add_u32 v{T+5}, v{T+4}, 4, v{T+5}
    s_lshl_b32 s62, s60, 8
    s_add_u32 s63, s63, s62
    v_add_u32 v{VST}, s63, v{T+5}
    v_lshrrev_b32 v{T+5}, 4, v0
    v_lshlrev_b32 v{T+5}, 10, v{T+5}
    v_and_b32 v{T+6}, 15, v0
    v_lshl_add_u32 v{T+5}, v{T+6}, 4, v{T+5}
    v_add_u32 v{VSL}, s62, v{T+5}
    v_mov_b32 v{VC1}, {f32(C1)}
    s_mov_b32 s78, 0x11111111
    s_mov_b32 s79, 0x11111111
    s_sub_u32 s73, s61, s60
    s_lshl_b32 s73, s73, 12
    """)

    PFX_LOAD = """
    s_load_dwordx4 s[4:7], s[0:1], 8
    s_load_dwordx2 s[8:9], s[0:1], 56
    """
    def pfx(lo0, n0, lo1, n1):
        mod = PFMOD
        def seg(n):
            if PFG == 1: return ""
            per = n // PFG
            lg = per.bit_length() - 1
            assert per == 1 << lg
            sh = (32 // PFG).bit_length() - 1
            return f"v_lshrrev_b32 v1, {lg}, v253\nv_and_b32 v253, {per-1}, v253\nv_lshl_add_u32 v253, v1, {sh}, v253"
        Lr1 = A.newlabel("k1pr1"); Lpe = A.newlabel("k1pe")
        A(f"""
        s_lshl_b32 s62, s53, 3
        s_add_u32 s62, s62, s54
        s_mov_b32 s10, 0x800000
        s_mov_b32 s11, 0x20000
        s_cmp_ge_u32 s52, 4
        s_cbranch_scc1 {Lr1}
        s_lshl_b32 s62, s62, 13
        s_lshl_b32 s63, s52, 21
        s_add_u32 s62, s62, s63
        v_and_b32 v253, 31, v0
        v_min_u32 v253, {n0 - 1}, v253
        {seg(n0)}
        v_lshrrev_b32 v1, 5, v0
        v_lshlrev_b32 v1, 12, v1
        v_lshl_add_u32 v1, v253, 7, v1
        buffer_load_dword v254, v1, s[8:11], s62 offen offset:{128*lo0} {mod}
        s_branch {Lpe}
        """)
        A.label(Lr1)
        A(f"""
        s_bitcmp1_b32 s52, 1
        s_cselect_b32 s8, s6, s4
        s_cselect_b32 s9, s7, s5
        s_lshl_b32 s62, s62, 14
        s_and_b32 s63, s52, 1
        s_lshl_b32 s63, s63, 22
        s_add_u32 s62, s62, s63
        v_and_b32 v253, 15, v0
        v_min_u32 v253, {n1 - 1}, v253
        {seg(n1)}
        v_lshrrev_b32 v1, 4, v0
        v_lshlrev_b32 v1, 12, v1
        v_lshl_add_u32 v1, v253, 7, v1
        buffer_load_dword v254, v1, s[8:11], s62 offen offset:{128*lo1} {mod}
        """)
        A.label(Lpe)
        issued.append(("pf", 0))
    def reads(ci):
        part, kc = divmod(ci, 7)
        wf = WF[ci & 1]
        r = []
        for ks in range(4):
            if part == 0:
                r.append(f"ds_read_b128 {v(XF + 16*kc + 4*ks, 4)}, v{VXA[ks]} offset:{(kc & 3)*16384}")
            if part < 2:
                base = VT2 if part == 0 else VT1
                so = (ci * 8192 if ci < 6 else 0) if part == 0 else slot(ci) * 8192
                for hf in range(2):
                    r.append(f"ds_read_b64_tr_b16 {v(wf + 4*ks + 2*hf, 2)}, v{base} offset:{so + ks*2048 + hf*512}")
            else:
                r.append(f"ds_read_b128 {v(wf + 4*ks, 4)}, v{VXA[ks]} offset:{(slot(ci) - 8)*8192}")
        return r
    def mfmas(ci):
        part, kc = divmod(ci, 7)
        wf = WF[ci & 1]
        acc = (ACC2, ACC1, ACCA)[part]
        r = []
        for ks in range(4):
            xf = v(XF + 16*kc + 4*ks, 4); w = v(wf + 4*ks, 4)
            c = "0" if (kc == 0 and ks == 0) else v(acc, 16)
            a_, b_ = (w, xf) if part == 1 else (xf, w)
            r.append(f"v_mfma_f32_32x32x16_bf16 {v(acc,16)}, {a_}, {b_}, {c}")
        return r
    def gelu(acc, tmp):
        r = []
        for g in range(4):
            vs = [acc + 4*g + k for k in range(4)]
            ts = [tmp + (4*g + k) % 8 for k in range(4)]
            r += [f"v_mul_f32 v{t}, v{x}, v{x}" for x, t in zip(vs, ts)]
            r += [f"v_fmaak_f32 v{t}, v{VC1}, v{t}, {f32(C0)}" for t in ts]
            r += [f"v_mul_f32 v{t}, v{t}, v{x}" for x, t in zip(vs, ts)]
            r += [f"v_exp_f32 v{t}, v{t}" for t in ts]
            r += [f"v_add_f32 v{t}, 1.0, v{t}" for t in ts]
            r += [f"v_rcp_f32 v{t}, v{t}" for t in ts]
            r += [f"v_mul_f32 v{x}, v{x}, v{t}" for x, t in zip(vs, ts)]
        return r
    def reduce16(src, tmp):
        r = []
        d = "row_mask:0xf bank_mask:"
        for k in range(8):
            r.append(f"v_add_f32_dpp v{tmp+k}, v{src+k}, v{src+k} row_ror:8 {d}0x3")
        for k in range(8):
            r.append(f"v_add_f32_dpp v{tmp+k}, v{src+k+8}, v{src+k+8} row_ror:8 {d}0xc")
        for k in range(4):
            r.append(f"v_add_f32_dpp v{tmp+k}, v{tmp+k}, v{tmp+k} row_half_mirror {d}0x5")
        for k in range(4):
            r.append(f"v_add_f32_dpp v{tmp+k}, v{tmp+k+4}, v{tmp+k+4} row_half_mirror {d}0xa")
        for k in range(2):
            r.append(f"v_permlane16_swap_b32 v{tmp+k}, v{tmp+k+2}")
        for k in range(2):
            r.append(f"v_add_f32 v{tmp+k}, v{tmp+k}, v{tmp+k+2}")
        return r
    def quad(regs):
        r = []
        for qp in ("[1,0,3,2]", "[2,3,0,1]"):
            for x in regs:
                r.append(f"v_add_f32_dpp v{x}, v{x}, v{x} quad_perm:{qp} row_mask:0xf bank_mask:0xf")
        return r
    def pack_store(acc, order, out, vaddr, srd, so, smod):
        r = []
        for half in range(2):
            ga, gb = order[half]
            o = out + 4*half
            r += [f"v_cvt_pk_bf16_f32 v{o}, v{acc+4*ga}, v{acc+4*ga+1}",
                  f"v_cvt_pk_bf16_f32 v{o+1}, v{acc+4*ga+2}, v{acc+4*ga+3}",
                  f"v_cvt_pk_bf16_f32 v{o+2}, v{acc+4*gb}, v{acc+4*gb+1}",
                  f"v_cvt_pk_bf16_f32 v{o+3}, v{acc+4*gb+2}, v{acc+4*gb+3}",
                  f"buffer_store_dwordx4 {v(o,4)}, v{vaddr}, s[{srd}:{srd+3}], s{so} offen offset:{512*half} {smod}"]
        return r
    SQ = T + 8
    RS = T + 24
    RQ = T + 32
    PK = T + 40
    F2 = gelu(ACC2, T)
    F2 += [f"v_mul_f32 v{SQ+k}, v{ACC2+k}, v{ACC2+k}" for k in range(16)]
    ra, rb_ = reduce16(ACC2, RS), reduce16(SQ, RQ)
    for x, y in zip(ra, rb_): F2 += [x, y]
    F2 += quad([RS, RQ, RS+1, RQ+1])
    F2 += [f"v_mov_b32 v{PK}, v{RS}", f"v_mov_b32 v{PK+1}, v{RQ}", f"v_mov_b32 v{PK+2}, v{RS+1}", f"v_mov_b32 v{PK+3}, v{RQ+1}"]
    F2 += ["FLAGCHECK"]
    F2 += [f"s_mov_b64 exec, s[78:79]\nbuffer_store_dwordx4 {v(PK,4)}, v{VST}, s[{SST}:{SST+3}], 0 offen sc1\ns_mov_b64 exec, -1"]
    F1 = gelu(ACC1, T) + pack_store(ACC1, ((0, 1), (2, 3)), T + 8, VZ1, SZ1, 77, SM1)

    bars = sorted(set(BARS))
    assert DS > max(WSCH) and FLS < PUB_STEP
    def split(lst, n):
        k, m = divmod(len(lst), n)
        out, i = [], 0
        for g in range(n):
            e = i + k + (1 if g < m else 0)
            out.append(lst[i:e]); i = e
        return out
    def pending_after(tags):
        last = max(i for i, t in enumerate(issued) if t in tags)
        return len(issued) - 1 - last
    def emit(x):
        if x == "FLAGCHECK":
            A(f"s_waitcnt vmcnt({pending_after([('f', 0)])})")
            A.label(Lp)
            A(f"""
            v_readfirstlane_b32 s62, v{FG}
            s_cmp_eq_u32 s62, 0x0101
            s_cbranch_scc1 {Lok}
            s_sleep 8
            v_mov_b32 v{FG}, 0
            buffer_load_ushort v{FG}, v{FG}, s[{SDB}:{SDB+3}], s95 offen sc1
            s_sub_u32 s70, s70, 1
            s_cmp_lg_u32 s70, 0
            s_waitcnt vmcnt(0)
            s_cbranch_scc1 {Lp}
            """)
            A.label(Lok)
            return
        if "buffer_store" in x: issued.append(("st", 0))
        A(x)
    n2 = 4 * (PUB_STEP - 8) - 1
    f2g = [[]] + split(F2, n2)
    f1g = [[]] + split(F1, 27)
    Lnf = A.newlabel("k1nf")
    Lp = A.newlabel("k1poll")
    Lok = A.newlabel("k1ok")
    LD = T + 16
    for x in dma(1): A(x)
    FG = ACCA
    def stat_loads():
        for i in range(7):
            so = "0" if i == 0 else f"s{62+i}"
            A(f"buffer_load_dwordx4 {v(LD+4*i,4)}, v{VSL}, s[{SST}:{SST+3}], {so} offen sc1")
    for st in range(22):
        if st in bars:
            nxt = min([b for b in bars if b > st] + [21])
            need = [("w", c) for c in range(st, nxt)] + ([("x", st)] if st < 7 else [])
            assert all(t in issued for t in need), (st, need)
            A(f"s_waitcnt vmcnt({pending_after(need)})")
            A("s_barrier")
        if st == 4:
            for r in VXA: A(f"v_add_u32 v{r}, 0x10000, v{r}")
        if st == 6: A(f"v_add_u32 v{VT2}, {-14*8192 & 0xffffffff:#x}, v{VT2}")
        if st == 7:
            for r in VXA: A(f"v_add_u32 v{r}, s73, v{r}")
        if STAMP and st == STB[0]: A("s_memrealtime s[82:83]")
        if STAMP and st == STB[1]: A("s_memrealtime s[84:85]")
        if STAMP and st == STB[2]: A("s_memrealtime s[90:91]")
        if PFX and st == PFS - 1: A(PFX_LOAD)
        if PFX and st == PFS: pfx(0, PF0N, 0, PF1N)
        if st == DS:
            for i in range(1, 7): A(f"s_movk_i32 s{62+i}, {4096*i}")
            stat_loads()
            for i in range(7): issued.append(("s", i))
            if PFX and PFB:
                pfx(PF0N, min(2*PFB, 32 - PF0N), PF1N, PFB)
                A("s_movk_i32 s63, 4096")
        pre = []
        if st <= 4: pre = xdma(st + 2) + dma(st + 2)
        for c in range(7, 21):
            if WSCH[c - 7] == st:
                assert st >= ((c - 6) // 2 + 1 if c < 20 else 1) and (c == 20 or (c - 6) // 2 + 1 in bars)
                pre += dma(c)
        if st == FLS:
            pre += [f"s_lshl_b32 s95, s57, 1", "s_mov_b32 s70, 5000", f"v_mov_b32 v{FG}, 0",
                    f"buffer_load_ushort v{FG}, v{FG}, s[{SDB}:{SDB+3}], s95 offen sc1"]
            issued.append(("f", 0))
        rd = reads(st) if st <= 20 else []
        mf = mfmas(st - 1) if st >= 1 else []
        if not mf:
            for x in rd + pre: A(x)
        else:
            rdg = split(rd, 3) + [[]] if st > 6 else [rd, [], [], []]
            for g in range(4):
                A(mf[g])
                for x in rdg[g]: A(x)
                if g == (2 if st > 6 else 1):
                    for x in pre: A(x)
                gi = 4*(st - 8) + g
                if 0 <= gi < len(f2g):
                    for x in f2g[gi]: emit(x)
                gi = 4*(st - 15) + g
                if 0 <= gi < len(f1g):
                    for x in f1g[gi]: emit(x)
        if rd: A("s_waitcnt lgkmcnt(0)")
    if STAMP: A("s_memrealtime s[86:87]")
    A(f"""
    v_and_b32 v{T}, 15, v0
    v_bfe_u32 v{T+1}, v0, 4, 1
    v_lshlrev_b32 v{T}, 4, v{T}
    v_lshl_add_u32 v{T}, v{T+1}, 3, v{T}
    s_lshl_b32 s62, s54, 8
    s_add_u32 s62, s62, {15*8192}
    v_add_u32 v{T}, s62, v{T}
    v_lshrrev_b32 v{T+1}, 5, v0
    v_lshlrev_b32 v{T+1}, 5, v{T+1}
    v_add_u32 v{T+1}, s62, v{T+1}
    """)
    Lr = A.newlabel("k1re")
    Lgo = A.newlabel("k1go")
    A(f"s_waitcnt vmcnt({pending_after([('s', 6)])})")
    A.label(Lr)
    A(f"v_min_f32 v{T+2}, v{LD+1}, v{LD+3}")
    for i in range(1, 7):
        A(f"v_min3_f32 v{T+2}, v{T+2}, v{LD+4*i+1}, v{LD+4*i+3}")
    A(f"""
    v_cmp_gt_f32 vcc, 0, v{T+2}
    s_nop 1
    s_cmp_eq_u64 vcc, 0
    s_cbranch_scc1 {Lgo}
    s_sleep 4
    """)
    stat_loads()
    A(f"""
    s_sub_u32 s70, s70, 1
    s_cmp_gt_i32 s70, 0
    s_waitcnt vmcnt(0)
    s_cbranch_scc1 {Lr}
    """)
    A.label(Lgo)
    if STAMP: A("s_memrealtime s[92:93]")
    for i in range(1, 7):
        for k in range(4):
            A(f"v_add_f32 v{LD+k}, v{LD+k}, v{LD+4*i+k}")
    A(f"""
    v_permlane16_swap_b32 v{LD}, v{LD+2}
    v_permlane16_swap_b32 v{LD+1}, v{LD+3}
    v_add_f32 v{LD}, v{LD}, v{LD+2}
    v_add_f32 v{LD+1}, v{LD+1}, v{LD+3}
    v_mov_b32 v{LD+2}, v{LD}
    v_mov_b32 v{LD+3}, v{LD+1}
    v_permlane32_swap_b32 v{LD}, v{LD+2}
    v_permlane32_swap_b32 v{LD+1}, v{LD+3}
    v_add_f32 v{LD}, v{LD}, v{LD+2}
    v_add_f32 v{LD+1}, v{LD+1}, v{LD+3}
    v_mul_f32 v{LD}, {f32(1.0/896)}, v{LD}
    v_mul_f32 v{LD+1}, {f32(1.0/896)}, v{LD+1}
    v_fma_f32 v{LD+1}, -v{LD}, v{LD}, v{LD+1}
    v_max_f32 v{LD+1}, 0, v{LD+1}
    v_add_f32 v{LD+1}, {f32(1e-5)}, v{LD+1}
    v_rsq_f32 v{LD+2}, v{LD+1}
    s_nop 0
    v_mul_f32 v{LD+3}, v{LD}, v{LD+2}
    v_xor_b32 v{LD+3}, 0x80000000, v{LD+3}
    ds_write_b64 v{T}, {v(LD+2,2)}
    s_waitcnt lgkmcnt(0)
    """)
    NB = 48
    for g in range(4):
        for hh in range(2):
            A(f"ds_read_b128 {v(NB + 8*g + 4*hh, 4)}, v{T+1} offset:{64*g + 16*hh}")
    for x in pack_store(ACCA, ((0, 2), (1, 3)), T + 24, VBT, SBT, 76, SMA): A(x)
    for g in (0, 2, 1, 3):
        A(f"s_waitcnt lgkmcnt({2*(3-g) if g in (0,) else (2 if g == 2 else 0)})")
        for r in range(4):
            A(f"v_fma_f32 v{ACC2+4*g+r}, v{ACC2+4*g+r}, v{NB+8*g+2*r}, v{NB+8*g+2*r+1}")
    for x in pack_store(ACC2, ((0, 2), (1, 3)), T + 32, VBT, SBT, 75, SM2): A(x)
    if STAMP:
        A(f"""
        s_waitcnt vmcnt(0)
        s_memrealtime s[88:89]
        s_waitcnt lgkmcnt(0)
        v_mov_b32 v8, s80
        v_mov_b32 v9, s82
        v_mov_b32 v10, s84
        v_mov_b32 v11, s86
        v_mov_b32 v12, s88
        v_mov_b32 v13, s70
        v_mov_b32 v14, s90
        v_mov_b32 v15, s92
        s_lshl_b32 s62, s2, 3
        s_add_u32 s62, s62, s54
        s_lshl_b32 s62, s62, 5
        s_add_u32 s62, s62, {WS_DBG + 0x100000}
        v_mov_b32 v7, s62
        global_store_dwordx4 v7, v[8:11], s[22:23]
        global_store_dwordx4 v7, v[12:15], s[22:23] offset:16
        """)
    A("s_endpgm")

    A.label(Lhelp)
    Lgate = A.newlabel("k1gate")
    A(f"""
    s_lshl_b32 s55, s52, 2
    s_add_u32 s55, s55, s53
    s_sub_u32 s55, s55, 28
    s_waitcnt lgkmcnt(0)
    s_mov_b32 s24, s4
    s_mov_b32 s25, s5
    s_mov_b32 s26, {2048*896}
    s_mov_b32 s27, 0x20000
    s_mov_b32 s28, s18
    s_mov_b32 s29, s19
    s_mov_b32 s30, 896
    s_mov_b32 s31, 0x20000
    s_mov_b32 s32, s16
    s_mov_b32 s33, s17
    s_mov_b32 s34, {896*896}
    s_mov_b32 s35, 0x20000
    s_add_u32 s36, s22, {WS_WOT}
    s_addc_u32 s37, s23, 0
    s_mov_b32 s38, {WOT_BYTES}
    s_mov_b32 s39, 0x20000
    s_add_u32 s40, s22, {WS_G}
    s_addc_u32 s41, s23, 0
    s_mov_b32 s42, 8192
    s_mov_b32 s43, 0x20000
    v_lshrrev_b32 v1, 3, v0
    s_lshl_b32 s56, s55, 6
    s_lshl_b32 s57, s54, 3
    s_add_u32 s56, s56, s57
    v_add_u32 v1, s56, v1
    v_and_b32 v2, 7, v0
    v_lshlrev_b32 v2, 4, v2
    v_mul_u32_u24 v3, 896, v1
    v_add_u32 v3, v3, v2
    """)
    def helper_pf():
        A(f"""
        s_load_dwordx4 s[64:67], s[0:1], 8
        s_load_dwordx2 s[68:69], s[0:1], 56
        s_lshl_b32 s62, s55, 18
        s_lshl_b32 s63, s54, 7
        s_add_u32 s62, s62, s63
        v_lshlrev_b32 v7, 12, v0
        s_mov_b32 s46, 0x800000
        s_mov_b32 s47, 0x20000
        s_waitcnt lgkmcnt(0)
        """)
        Lpfe = A.newlabel("k1pfe")
        for i in range((PFN + 7) // 8):
            if PFN - 8*i < 8:
                A(f"s_cmp_ge_u32 s54, {PFN - 8*i}\ns_cbranch_scc1 {Lpfe}")
            for b in (68, 64, 66):
                A(f"""
                s_mov_b32 s44, s{b}
                s_mov_b32 s45, s{b+1}
                buffer_load_dword v100, v7, s[44:47], s62 offen offset:{1024*i}
                """)
        A.label(Lpfe)
    A(f"""
    s_mul_i32 s56, s55, 14336
    s_mul_i32 s57, s54, 1792
    s_add_u32 s56, s56, s57
    s_add_u32 s56, s56, {WS_ST}
    s_add_u32 s44, s22, s56
    s_addc_u32 s45, s23, 0
    s_movk_i32 s46, 1792
    s_mov_b32 s47, 0x20000
    v_lshlrev_b32 v4, 4, v0
    v_mov_b32 v8, -1.0
    v_mov_b32 v9, -1.0
    v_mov_b32 v10, -1.0
    v_mov_b32 v11, -1.0
    buffer_store_dwordx4 v[8:11], v4, s[44:47], 0 offen sc1
    s_mov_b32 exec_hi, 0xffff
    buffer_store_dwordx4 v[8:11], v4, s[44:47], 0 offen offset:1024 sc1
    s_mov_b32 exec_hi, -1
    """)
    for i in range(7):
        A(f"buffer_load_dwordx4 {v(16+4*i,4)}, v3, s[24:27], 0 offen offset:{128*i}")
        A(f"buffer_load_dwordx4 {v(48+4*i,4)}, v2, s[28:31], 0 offen offset:{128*i}")
    Lhf = A.newlabel("k1hf")
    A(f"""
    s_mov_b32 s48, s20
    s_mov_b32 s49, s21
    s_movk_i32 s50, 256
    s_mov_b32 s51, 0x20000
    v_mov_b32 v12, 1
    v_mov_b32 v13, s55
    s_waitcnt vmcnt(14)
    s_barrier
    s_cmp_lg_u32 s54, 0
    s_cbranch_scc1 {Lhf}
    s_mov_b64 exec, 1
    buffer_store_byte v12, v13, s[48:51], 0 offen sc1
    s_mov_b64 exec, -1
    """)
    A.label(Lhf)
    A(f"""
    s_cmp_ge_u32 s55, 28
    s_cbranch_scc1 {Lgate}
    s_mul_i32 s58, s55, 28672
    s_lshl_b32 s59, s54, 10
    s_add_u32 s58, s58, s59
    v_lshlrev_b32 v4, 4, v0
    """)
    L3 = A.newlabel("k1h3")
    for p in range(4):
        if p == 3:
            A(f"s_cmp_ge_u32 s54, 4\ns_cbranch_scc1 {L3}")
        A(f"""
        s_add_u32 m0, s59, {8192*p}
        s_nop 0
        buffer_load_dwordx4 v4, s[32:35], s58 offen {LMOD} lds
        s_add_u32 s58, s58, 8192
        """)
    A.label(L3)
    A(f"""
    v_lshrrev_b32 v5, 2, v0
    v_mul_u32_u24 v5, 896, v5
    v_and_b32 v6, 3, v0
    v_lshl_add_u32 v5, v6, 4, v5
    s_lshr_b32 s60, s54, 1
    s_lshl_b32 s60, s60, 6
    s_and_b32 s61, s54, 1
    s_lshl_b32 s61, s61, 3
    s_add_u32 s60, s60, s61
    v_add_u32 v5, s60, v5
    s_mul_i32 s60, s54, 28
    s_add_u32 s60, s60, s55
    s_lshl_b32 s60, s60, 10
    s_waitcnt vmcnt(0)
    s_barrier
    """)
    for p in range(4):
        A(f"ds_read_b64_tr_b16 {v(80+4*p,2)}, v5 offset:{256*p}")
        A(f"ds_read_b64_tr_b16 {v(82+4*p,2)}, v5 offset:{256*p + 16*896}")
    for p in range(4):
        A(f"s_waitcnt lgkmcnt({2*(3-p)})")
        if p == 3:
            A(f"s_cmp_ge_u32 s54, 4\ns_cbranch_scc1 {Lgate}")
        A(f"buffer_store_dwordx4 {v(80+4*p,4)}, v4, s[36:39], s60 offen")
        A(f"s_add_u32 s60, s60, {8*28*1024}")
    A.label(Lgate)
    A("s_waitcnt vmcnt(0)")
    A("v_mov_b32 v8, 0\nv_mov_b32 v9, 0")
    for i in range(28):
        A(f"v_dot2c_f32_bf16 v{8 + (i&1)}, v{16+i}, v{48+i}")
    A(f"""
    s_nop 2
    v_add_f32 v8, v8, v9
    s_nop 1
    v_add_f32_dpp v8, v8, v8 quad_perm:[1,0,3,2] row_mask:0xf bank_mask:0xf
    s_nop 1
    v_add_f32_dpp v8, v8, v8 quad_perm:[2,3,0,1] row_mask:0xf bank_mask:0xf
    s_nop 1
    v_add_f32_dpp v8, v8, v8 row_half_mirror row_mask:0xf bank_mask:0xf
    v_mul_f32 v8, {f32(-LOG2E)}, v8
    v_exp_f32 v8, v8
    s_nop 0
    v_add_f32 v8, 1.0, v8
    v_rcp_f32 v8, v8
    v_lshlrev_b32 v1, 2, v1
    buffer_store_dword v8, v1, s[40:43], 0 offen
    """)
    if PF == "h1": helper_pf()
    if PFX:
        A(PFX_LOAD)
        A("s_waitcnt lgkmcnt(0)")
        pfx(0, PF0N, 0, PF1N)
        if PFB: pfx(PF0N, min(2*PFB, 32 - PF0N), PF1N, PFB)
    A.label(Lend)
    A("s_endpgm")
    return kernel_desc(name, 256, 102, 256)
```

```python
from asmlib import *

WS_BT = 0x0
WS_Z1 = 0x800000
WS_H  = 0xC00000
WS_Y  = 0x1000000
WS_WOT = 0x1400000
WS_G  = 0x1500000
WS_ST = 0x1600000
BT_BYTES = 16 * 32 * 14336
ZH_BYTES = 128 * 28 * 1024
WOT_BYTES = 28 * 28 * 1024

STAGE = 30720
NSLOT = 5
K2_LDS = STAGE * NSLOT

import os
ROT = os.environ.get("K2_ROT", "h2")
SKIP = os.environ.get("K2_SKIP", "")
STAMP = os.environ.get("STAMP", "") == "1"
WS_DBG = 0x1800000
K2PF = int(os.environ.get("K2_PF", "0"))
K2PFMOD = os.environ.get("K2_PFMOD", "")
AMOD = os.environ.get("K2_AMOD", "")
BMOD = os.environ.get("K2_BMOD", "")
MAP1 = "" if os.environ.get("K2_MAP", "1") == "0" else """
    s_and_b32 s41, s34, 1
    s_lshl_b32 s41, s41, 3
    s_lshr_b32 s42, s35, 2
    s_add_u32 s41, s41, s42
    s_and_b32 s42, s34, 2
    s_lshl_b32 s42, s42, 1
    s_and_b32 s43, s35, 3
    s_add_u32 s42, s42, s43
    s_cmp_lg_u32 s38, 0
    s_cselect_b32 s36, s41, s36
    s_cselect_b32 s37, s42, s37
"""
SMOD2 = os.environ.get("K2_SMOD", "")
WPF = os.environ.get("K2_WPF", "1")
K2PF0 = int(os.environ.get("K2_PF0", "8"))
def gen_k2(A, name="k2_kernel"):
    kernel_header(A, name)
    Lend = A.newlabel("k2end")
    Lload = A.newlabel("k2load")
    A(f"""
    s_cmp_ge_u32 s2, 256
    s_cbranch_scc1 {Lend}
    {"s_memrealtime s[54:55]" if STAMP else ""}
    s_load_dwordx4 s[4:7], s[0:1], 8
    s_load_dwordx4 s[28:31], s[0:1], 56
    s_load_dwordx2 s[32:33], s[0:1], 104
    s_and_b32 s34, s2, 7
    s_lshr_b32 s35, s2, 3
    s_and_b32 s36, s34, 3
    s_lshl_b32 s36, s36, 2
    s_lshr_b32 s37, s35, 3
    s_add_u32 s36, s36, s37
    s_and_b32 s37, s35, 7
    s_lshr_b32 s38, s34, 2
    {MAP1}
    s_lshl_b32 s39, s38, 3
    s_add_u32 s39, s39, s37
    v_lshrrev_b32 v1, 6, v0
    v_and_b32 v0, 63, v0
    s_nop 0
    v_readfirstlane_b32 s40, v1
    s_waitcnt lgkmcnt(0)
    s_cmp_lt_u32 s37, 4
    s_cselect_b32 s4, s4, s6
    s_cselect_b32 s5, s5, s7
    s_cmp_eq_u32 s38, 0
    s_cselect_b32 s4, s28, s4
    s_cselect_b32 s5, s29, s5
    s_lshl_b32 s41, s36, 19
    s_add_u32 s8, s4, s41
    s_addc_u32 s9, s5, 0
    s_mov_b32 s10, 0x80000
    s_mov_b32 s11, 0x20000
    s_mul_i32 s41, s39, {32*14336}
    s_add_u32 s12, s32, s41
    s_addc_u32 s13, s33, 0
    s_mov_b32 s14, {32*14336}
    s_mov_b32 s15, 0x20000
    s_cmp_ge_u32 s40, 4
    s_cbranch_scc1 {Lload}
    """)
    FA = [[8 + 16*st + 4*m for m in range(4)] for st in range(2)]
    FB = [[40 + 28*st + 4*n for n in range(7)] for st in range(2)]
    Z1 = 96
    BS = 124
    ACC = 144
    def acc(n, m): return ACC + 4*(n*4 + m)
    VAL, VAH, VB = 2, 3, 4
    WAL, WAH, WB = 5, 6, 7
    VLANE16 = 126
    VPF = 127
    if K2PF:
        A(f"""
        s_lshl_b32 s42, s37, 4
        s_lshl_b32 s43, s40, 2
        s_add_u32 s42, s42, s43
        s_and_b32 s44, s37, 3
        s_lshl_b32 s44, s44, 5
        s_lshl_b32 s43, s40, 3
        s_add_u32 s44, s44, s43
        s_cmp_lg_u32 s38, 0
        s_cselect_b32 s42, s44, s42
        s_cselect_b32 s43, 7, 3
        v_lshrrev_b32 v1, 1, v0
        v_and_b32 v1, s43, v1
        v_add_u32 v1, s42, v1
        v_lshlrev_b32 v1, 12, v1
        v_and_b32 v5, 1, v0
        v_lshl_add_u32 v{VPF}, v5, 7, v1
        s_movk_i32 s66, {128*K2PF0}
        """)
        for i in range((K2PF - K2PF0) // 2):
            A(f"buffer_load_dword v128, v{VPF}, s[8:11], s66 offen {K2PFMOD}")
            A("s_add_u32 s66, s66, 256")
    A(f"""
    s_lshr_b32 s42, s40, 1
    s_and_b32 s43, s40, 1
    v_and_b32 v1, 15, v0
    v_lshrrev_b32 v5, 4, v0
    s_lshl_b32 s44, s43, 2
    v_add_u32 v5, s44, v5
    v_lshrrev_b32 v6, 1, v1
    v_xor_b32 v5, v5, v6
    v_lshlrev_b32 v5, 4, v5
    v_lshl_add_u32 v5, v1, 7, v5
    s_lshl_b32 s44, s42, 13
    s_lshl_b32 s45, s43, 12
    s_add_u32 s46, s44, s45
    s_xor_b32 s47, s46, 0x1000
    v_add_u32 v{VAL}, s46, v5
    v_add_u32 v{VAH}, s47, v5
    s_mul_i32 s44, s43, 7168
    s_add_u32 s44, s44, 16384
    v_lshlrev_b32 v{VLANE16}, 4, v0
    v_add_u32 v{VB}, s44, v{VLANE16}
    """)
    A(f"""
    s_lshl_b32 s44, s36, 3
    s_lshl_b32 s45, s42, 2
    s_add_u32 s44, s44, s45
    s_lshl_b32 s45, s43, 1
    s_add_u32 s44, s44, s45
    s_mul_i32 s45, s37, 7
    s_add_u32 s45, s45, 1
    s_lshr_b32 s45, s45, 1
    s_mul_i32 s46, s44, 28
    s_add_u32 s46, s46, s45
    s_lshl_b32 s48, s46, 10
    s_add_u32 s49, s48, {28*1024}
    s_and_b32 s47, s37, 1
    s_movk_i32 s46, 3072
    s_cmp_eq_u32 s47, 0
    s_cselect_b32 s47, s46, -1016
    s_add_u32 s50, s48, s47
    s_add_u32 s51, s49, s47
    s_add_u32 s16, s32, {WS_Z1}
    s_addc_u32 s17, s33, 0
    s_mov_b32 s18, {ZH_BYTES}
    s_mov_b32 s19, 0x20000
    s_mov_b32 s46, {WS_H}
    s_cmp_eq_u32 s38, 0
    s_cselect_b32 s47, s46, {WS_Y}
    s_add_u32 s20, s32, s47
    s_addc_u32 s21, s33, 0
    s_mov_b32 s22, {ZH_BYTES}
    s_mov_b32 s23, 0x20000
    s_mov_b32 s24, s30
    s_mov_b32 s25, s31
    s_mov_b32 s26, 4096
    s_mov_b32 s27, 0x20000
    """)
    Lnoz = A.newlabel("k2noz")
    A(f"""
    s_cmp_lg_u32 s38, 0
    s_cbranch_scc1 {Lnoz}
    v_lshrrev_b32 v5, 2, v1
    v_lshlrev_b32 v5, 3, v5
    v_and_b32 v6, 3, v1
    v_add_u32 v5, v5, v6
    s_lshl_b32 s47, s44, 4
    v_add_u32 v5, s47, v5
    v_lshlrev_b32 v5, 1, v5
    buffer_load_ushort v{BS}, v5, s[24:27], 0 offen
    buffer_load_ushort v{BS+1}, v5, s[24:27], 0 offen offset:8
    """)
    for mm in range(2):
        so = 48 + mm
        for p in range(3):
            A(f"buffer_load_dwordx4 {v(Z1 + 14*mm + 4*p, 4)}, v{VLANE16}, s[16:19], s{so} offen offset:{1024*p}")
        A(f"buffer_load_dwordx2 {v(Z1 + 14*mm + 12, 2)}, v{VLANE16}, s[16:19], s{50+mm} offen")
    A.label(Lnoz)
    for r in range(112):
        A(f"v_mov_b32 v{ACC + r}, 0")
    A("s_mov_b32 s52, 0")
    def reads(st):
        r = []
        for m in range(4):
            base = WAL if m < 2 else WAH
            r.append(f"ds_read_b128 {v(FA[st][m],4)}, v{base} offset:{2048*(m&1)}")
        for n in range(7):
            r.append(f"ds_read_b128 {v(FB[st][n],4)}, v{WB} offset:{1024*n}")
        return [r[0], r[4], r[1], r[2], r[3]] + r[5:]
    def addr_update():
        return f"""
        v_add_u32 v{WAL}, s52, v{VAL}
        v_add_u32 v{WAH}, s52, v{VAH}
        v_add_u32 v{WB}, s52, v{VB}
        s_add_u32 s52, s52, {STAGE}
        s_cmp_eq_u32 s52, {STAGE*NSLOT}
        s_cselect_b32 s52, 0, s52
        """
    def mfmas(st):
        if "mfma" in SKIP: return ["s_nop 0"] * 28
        return [f"v_mfma_f32_16x16x32_bf16 {v(acc(n,m),4)}, {v(FB[st][n],4)}, {v(FA[st][m],4)}, {v(acc(n,m),4)}"
                for n in range(7) for m in range(4)]
    def iteration(st, with_reads=True):
        if with_reads:
            A("s_barrier")
            A(addr_update())
            for ins in interleave(mfmas(st), reads(st ^ 1), start=0, every=2):
                A(ins)
            A("s_waitcnt lgkmcnt(0)")
        else:
            for ins in mfmas(st):
                A(ins)
    A("s_barrier")
    if STAMP: A("s_memrealtime s[56:57]\ns_memtime s[62:63]")
    A(addr_update())
    for ins in reads(0):
        A(ins)
    A("s_waitcnt lgkmcnt(0)")
    A("s_mov_b32 s53, 15")
    Lloop = A.newlabel("k2loop")
    A.label(Lloop)
    iteration(0)
    if K2PF:
        Lsk = A.newlabel("k2pfs")
        A(f"""
        s_cmp_ge_u32 s66, 4096
        s_cbranch_scc1 {Lsk}
        buffer_load_dword v128, v{VPF}, s[8:11], s66 offen {K2PFMOD}
        s_add_u32 s66, s66, 256
        """)
        A.label(Lsk)
    iteration(1)
    A(f"""
    s_sub_u32 s53, s53, 1
    s_cmp_lg_u32 s53, 0
    s_cbranch_scc1 {Lloop}
    """)
    iteration(0)
    iteration(1, with_reads=False)
    if STAMP: A("s_memrealtime s[58:59]\ns_memtime s[64:65]\ns_waitcnt lgkmcnt(0)\ns_sub_u32 s62, s64, s62")
    XB = 2 * STAGE
    A(f"""
    s_mul_i32 s47, s40, 14336
    s_add_u32 s47, s47, {XB}
    v_add_u32 v5, s47, v{VLANE16}
    s_xor_b32 s46, s40, 1
    s_mul_i32 s46, s46, 14336
    s_add_u32 s46, s46, {XB}
    v_add_u32 v6, s46, v{VLANE16}
    s_nop 4
    """)
    for n in range(7):
        for mm in range(2):
            A(f"ds_write_b128 v5, {v(acc(n, 2+mm),4)} offset:{(n*2+mm)*1024}")
    A("s_waitcnt lgkmcnt(0)")
    A("s_barrier")
    RX = 8
    for n in range(7):
        for mm in range(2):
            A(f"ds_read_b128 {v(RX + 4*(n*2+mm),4)}, v6 offset:{(n*2+mm)*1024}")
    Ly = A.newlabel("k2y")
    Lfin = A.newlabel("k2fin")
    A(f"""
    s_cmp_lg_u32 s38, 0
    s_cbranch_scc1 {Ly}
    s_waitcnt vmcnt(0)
    v_lshlrev_b32 v{BS}, 16, v{BS}
    v_lshlrev_b32 v{BS+1}, 16, v{BS+1}
    """)
    OUT = 64
    def epi(g2):
        cnt = 14
        for n in range(7):
            for mm in range(2):
                cnt -= 1
                A(f"s_waitcnt lgkmcnt({cnt})")
                rx = RX + 4*(n*2+mm)
                zr = Z1 + 14*mm + 2*n
                o = OUT + 14*mm + 2*n
                for r in range(4):
                    A(f"v_add_f32 v{rx+r}, v{rx+r}, v{acc(n,mm)+r}")
                if g2:
                    for r in range(4):
                        A(f"v_add_f32 v{rx+r}, v{rx+r}, v{BS+mm}")
                    A(f"""
                    v_lshlrev_b32 v92, 16, v{zr}
                    v_and_b32 v93, 0xffff0000, v{zr}
                    v_lshlrev_b32 v94, 16, v{zr+1}
                    v_and_b32 v95, 0xffff0000, v{zr+1}
                    v_mul_f32 v{rx}, v{rx}, v92
                    v_mul_f32 v{rx+1}, v{rx+1}, v93
                    v_mul_f32 v{rx+2}, v{rx+2}, v94
                    v_mul_f32 v{rx+3}, v{rx+3}, v95
                    """)
                A(f"v_cvt_pk_bf16_f32 v{o}, v{rx}, v{rx+1}")
                A(f"v_cvt_pk_bf16_f32 v{o+1}, v{rx+2}, v{rx+3}")
                if n % 2 == 1:
                    p = n // 2
                    A(f"buffer_store_dwordx4 {v(OUT + 14*mm + 4*p,4)}, v{VLANE16}, s[20:23], s{48+mm} offen offset:{1024*p} {SMOD2}")
                if n == 6:
                    A(f"buffer_store_dwordx2 {v(OUT + 14*mm + 12,2)}, v{VLANE16}, s[20:23], s{50+mm} offen {SMOD2}")
    def stamp_out():
        if not STAMP: return
        A(f"""
        s_waitcnt vmcnt(0)
        s_memrealtime s[60:61]
        s_waitcnt lgkmcnt(0)
        v_mov_b32 v8, s54
        v_mov_b32 v13, s62
        v_mov_b32 v9, s56
        v_mov_b32 v10, s58
        v_mov_b32 v11, s60
        s_lshl_b32 s46, s2, 2
        s_add_u32 s46, s46, s40
        s_lshl_b32 s46, s46, 4
        s_add_u32 s46, s46, {WS_DBG}
        v_mov_b32 v12, s46
        global_store_dwordx4 v12, v[8:11], s[32:33]
        v_lshrrev_b32 v12, 2, v12
        v_add_u32 v12, {WS_DBG + 0x10000 - WS_DBG//4}, v12
        global_store_dword v12, v13, s[32:33]
        """)
    epi(True)
    stamp_out()
    A(f"s_endpgm")
    A.label(Ly)
    epi(False)
    stamp_out()
    A(f"s_endpgm")
    A.label(Lload)
    A(f"""
    s_sub_u32 s42, s40, 4
    v_lshrrev_b32 v1, 5, v0
    v_lshlrev_b32 v1, 3, v1
    v_bfe_u32 v2, v0, 3, 2
    v_add_u32 v1, v1, v2
    s_lshl_b32 s43, s42, 5
    v_add_u32 v1, s43, v1
    v_lshlrev_b32 v1, 12, v1
    v_and_b32 v2, 7, v0
    v_lshrrev_b32 v3, 4, v0
    v_xor_b32 v2, v2, v3
    v_lshlrev_b32 v2, 4, v2
    v_xor_b32 v3, 64, v2
    v_add_u32 v4, v1, v2
    v_add_u32 v5, v1, v3
    v_add_u32 v5, {16*4096 - 1024}, v5
    v_add_u32 v6, {4*4096 - 2048}, v4
    v_add_u32 v7, {4*4096 - 2048}, v5
    s_lshl_b32 s43, s42, 2
    s_cmp_eq_u32 s42, 3
    s_cselect_b32 s43, 11, s43
    s_lshl_b32 s43, s43, 10
    v_lshlrev_b32 v8, 4, v0
    v_add_u32 v8, s43, v8
    s_lshl_b32 s44, s42, 12
    s_add_u32 s45, s43, 16384
    s_mov_b32 s46, 0
    """)
    if ROT == "none":
        A("s_mov_b32 s50, 0")
    elif ROT == "xcd":
        A("s_lshl_b32 s50, s34, 2")
    elif ROT == "mi":
        A("s_lshl_b32 s50, s36, 1\ns_add_u32 s50, s50, s38")
    elif ROT == "h2":
        A("s_and_b32 s50, s37, 1\ns_lshl_b32 s50, s50, 4")
    elif ROT == "h4":
        A("s_and_b32 s50, s37, 3\ns_lshl_b32 s50, s50, 3")
    elif ROT == "h8":
        A("s_and_b32 s50, s37, 3\ns_lshl_b32 s50, s50, 3\ns_lshl_b32 s51, s37, 2\ns_cmp_eq_u32 s38, 0\ns_cselect_b32 s50, s51, s50")
    elif ROT == "wg":
        A("s_mul_i32 s50, s2, 5\ns_and_b32 s50, s50, 31")
    A(f"""
    s_lshl_b32 s47, s50, 7
    s_mul_i32 s48, s50, 14336
    s_cmp_ge_u32 s42, 2
    """)
    Lcls = A.newlabel("k2ldB")
    A(f"s_cbranch_scc1 {Lcls}")
    def issue(nb):
        A(f"""
        s_add_u32 m0, s46, s44
        s_nop 0
        """)
        if "A" not in SKIP: A(f"""
        buffer_load_dwordx4 v4, s[8:11], s47 offen {AMOD} lds
        buffer_load_dwordx4 v5, s[8:11], s47 offen offset:1024 {AMOD} lds
        buffer_load_dwordx4 v6, s[8:11], s47 offen offset:2048 {AMOD} lds
        buffer_load_dwordx4 v7, s[8:11], s47 offen offset:3072 {AMOD} lds
        """)
        A(f"""
        s_add_u32 m0, s46, s45
        s_add_u32 s47, s47, 128
        """)
        for p in range(nb):
            if "B" not in SKIP: A(f"buffer_load_dwordx4 v8, s[12:15], s48 offen offset:{1024*p} {BMOD} lds")
        A(f"""
        s_add_u32 s48, s48, 14336
        s_cmp_eq_u32 s47, 4096
        s_cselect_b32 s47, 0, s47
        s_cselect_b32 s48, 0, s48
        s_add_u32 s46, s46, {STAGE}
        s_cmp_eq_u32 s46, {STAGE*NSLOT}
        s_cselect_b32 s46, 0, s46
        """)
    def loader(nb):
        n = (0 if 'A' in SKIP else 4) + (0 if 'B' in SKIP else nb)
        A("s_mov_b32 s49, 5")
        L0 = A.newlabel("k2pro")
        A.label(L0)
        issue(nb)
        A(f"""
        s_sub_u32 s49, s49, 1
        s_cmp_lg_u32 s49, 0
        s_cbranch_scc1 {L0}
        s_waitcnt vmcnt({4*n})
        s_barrier
        s_mov_b32 s49, 27
        """)
        L1 = A.newlabel("k2ldloop")
        A.label(L1)
        A(f"s_waitcnt vmcnt({3*n})")
        A("s_barrier")
        issue(nb)
        A(f"""
        s_sub_u32 s49, s49, 1
        s_cmp_lg_u32 s49, 0
        s_cbranch_scc1 {L1}
        """)
        ex = 0
        if WPF:
            ex = 1
            A(f"""
            s_lshl_b32 s50, s35, 2
            s_add_u32 s50, s50, s42
            s_mul_i32 s50, s50, {49*128}
            s_add_u32 s16, s32, {WS_WOT}
            s_addc_u32 s17, s33, 0
            s_mov_b32 s18, {WOT_BYTES}
            s_mov_b32 s19, 0x20000
            v_min_u32 v9, 48, v0
            v_lshlrev_b32 v9, 7, v9
            buffer_load_dword v10, v9, s[16:19], s50 offen
            """)
        for w in (3, 2, 1, 0):
            A(f"s_waitcnt vmcnt({w*n + ex})")
            A("s_barrier")
        A("s_endpgm")
    loader(4)
    A.label(Lcls)
    loader(3)
    A.label(Lend)
    A("s_endpgm")
    return kernel_desc(name, 256, 80, 256)
```

```python
import os, struct
from asmlib import *
from k2 import WS_BT, WS_Z1, WS_WOT, WS_G, WS_ST, BT_BYTES, ZH_BYTES, WOT_BYTES, WS_DBG, WS_FL, FLSTRIDE

K1_LDS = 163840
STAMP = os.environ.get("STAMP", "") == "1"
PUB_STEP = int(os.environ.get("K1_PUB", "10"))
PF = os.environ.get("K1_PF", "")
LMOD = os.environ.get("K1_LMOD", "")
PFN = int(os.environ.get("K1_PFN", "8"))
PFX = int(os.environ.get("K1_PFX", "1"))
PFMOD = os.environ.get("K1_PFMOD", "")
PROMO = os.environ.get("K1_PROMO", "") == "1"
SMOD = os.environ.get("K1_SMOD", "")
PFS = int(os.environ.get("K1_PFS", "9"))
SM1 = os.environ.get("K1_SM1", SMOD)
SMA = os.environ.get("K1_SMA", SMOD)
SM2 = os.environ.get("K1_SM2", SMOD)
BARS = [int(x) for x in os.environ.get("K1_BARS", "0,1,2,3,4,5,6,7,9,12,15").split(",")]
WSCH = [int(x) for x in os.environ.get("K1_WSCH", "5,5,5,6,6,6,6,7,7,7,7,8,8,8").split(",")]
CLS = int(os.environ.get("K1_CLS", "3"))
FLS = int(os.environ.get("K1_FLS", "8"))
FCS = int(os.environ.get("K1_FCS", "12"))
DS = int(os.environ.get("K1_DS", "18"))
PFB = int(os.environ.get("K1_PFB", "0"))
PFG = int(os.environ.get("K1_PFG", "2"))
CPF = os.environ.get("K1_CPF", "1") == "1"
KROT = os.environ.get("K1_KROT", "1") == "1"
STB = [int(x) for x in os.environ.get("K1_STB", "0,7,10").split(",")]
PF0N = int(os.environ.get("K1_PF0N", "8"))
PF1N = int(os.environ.get("K1_PF1N", "8"))

def f32(x): return "0x%08x" % struct.unpack("<I", struct.pack("<f", x))[0]
C0 = -2.0 * 0.7978845608028654 * 1.4426950408889634
C1 = C0 * 0.044715
LOG2E = 1.4426950408889634

def slot(ci): return (ci + 14) % 20

def gen_k1(A, name="k1_kernel"):
    kernel_header(A, name)
    Lend = A.newlabel("k1end")
    Lhelp = A.newlabel("k1help")
    SX, SW, SD, SBT, SZ1, SST, SDB = 24, 28, 32, 36, 40, 44, 48
    CPF_CODE = f"s_cbranch_scc1 {Lhelp}" if not CPF else f"""
    s_cbranch_scc0 L_k1gemm
    s_getpc_b64 s[60:61]
    L_cpf:
    s_sub_u32 s60, s60, L_cpf-k1_kernel
    s_subb_u32 s61, s61, 0
    s_lshl_b32 s55, s54, 13
    v_lshlrev_b32 v1, 7, v0
    v_add_u32 v1, s55, v1
    v_min_u32 v1, L_code_end-k1_kernel-4, v1
    global_load_dword v120, v1, s[60:61]
    s_branch {Lhelp}
    L_k1gemm:
    """
    A(f"""
    s_cmp_ge_u32 s2, 256
    s_cbranch_scc1 {Lend}
    """)
    if STAMP: A("s_memrealtime s[80:81]")
    A(f"""
    s_load_dwordx2 s[4:5], s[0:1], 0
    s_load_dwordx4 s[8:11], s[0:1], 24
    s_load_dwordx2 s[12:13], s[0:1], 48
    s_load_dwordx4 s[16:19], s[0:1], 72
    s_load_dwordx4 s[20:23], s[0:1], 96
    s_and_b32 s52, s2, 7
    s_lshr_b32 s53, s2, 3
    v_lshrrev_b32 v1, 6, v0
    v_and_b32 v0, 63, v0
    v_readfirstlane_b32 s54, v1
    s_cmp_ge_u32 s53, 28
    {CPF_CODE}
    s_mul_i32 s55, s53, 37
    s_lshr_b32 s55, s55, 8
    s_mul_i32 s56, s55, 7
    s_sub_u32 s56, s53, s56
    s_lshr_b32 s57, s52, 1
    s_lshl_b32 s57, s57, 2
    s_add_u32 s57, s57, s55
    s_and_b32 s59, s52, 1
    s_mul_i32 s58, s59, 7
    s_add_u32 s58, s58, s56
    """)
    VST, VSL = 2, 3
    VXA = [4, 5, 6, 7]
    VT2, VT1, VX0, VX1, VW, VD, VBT, VZ1 = 8, 9, 10, 11, 12, 13, 14, 15
    XF = 16
    WF = [128, 144]
    ACC2, ACC1, ACCA = 160, 176, 192
    T = 208
    VC1 = 255
    A(f"""
    v_lshrrev_b32 v{T}, 3, v0
    v_lshrrev_b32 v{T+1}, 2, v{T}
    v_lshlrev_b32 v{T+1}, 3, v{T+1}
    v_and_b32 v{T+2}, 3, v{T}
    v_add_u32 v{T+1}, v{T+1}, v{T+2}
    v_and_b32 v{T+2}, 7, v0
    v_lshrrev_b32 v{T+3}, 1, v{T}
    v_xor_b32 v{T+4}, v{T+2}, v{T+3}
    v_lshlrev_b32 v{T+4}, 4, v{T+4}
    s_lshr_b32 s60, s54, 1
    s_and_b32 s61, s54, 1
    s_lshl_b32 s62, s60, 5
    s_lshl_b32 s63, s61, 2
    s_add_u32 s62, s62, s63
    v_add_u32 v{T+5}, s62, v{T+1}
    v_mul_u32_u24 v{T+5}, 896, v{T+5}
    v_add_u32 v{VX0}, v{T+5}, v{T+4}
    v_xor_b32 v{T+6}, 64, v{T+4}
    v_add_u32 v{VX1}, v{T+5}, v{T+6}
    v_add_u32 v{VX1}, {16*896 - 1024}, v{VX1}
    s_lshl_b32 s62, s54, 3
    v_add_u32 v{T+5}, s62, v{T}
    v_mul_u32_u24 v{T+5}, 3584, v{T+5}
    v_and_b32 v{T+6}, 1, v{T+3}
    v_lshlrev_b32 v{T+6}, 2, v{T+6}
    v_xor_b32 v{T+6}, v{T+2}, v{T+6}
    v_lshl_add_u32 v{VW}, v{T+6}, 4, v{T+5}
    s_waitcnt lgkmcnt(0)
    s_mul_i32 s62, s57, {128*896}
    s_add_u32 s{SX}, s4, s62
    s_addc_u32 s{SX+1}, s5, 0
    s_mov_b32 s{SX+2}, {128*896}
    s_mov_b32 s{SX+3}, 0x20000
    s_mov_b32 s{SW}, s12
    s_mov_b32 s{SW+1}, s13
    s_mov_b32 s{SW+2}, {448*3584}
    s_mov_b32 s{SW+3}, 0x20000
    s_lshl_b32 s64, s54, 11
    s_lshl_b32 s65, s54, 10
    s_lshl_b32 s66, s58, 7
    s_add_u32 s67, s66, 1792
    s_mov_b32 s68, 0
    s_add_u32 s69, s65, {14*8192}
    s_mov_b32 s70, 6
    """)
    issued = []
    def wrap(r, lim, n):
        if not KROT: return []
        return [f"s_cmp_ge_u32 s{r}, s{lim}", f"s_cselect_b32 s99, s{lim}, 0", f"s_sub_u32 s{r}, s{r}, s99"]
    def xdma(kc):
        issued.extend([("x", kc), ("x", kc)])
        return ["s_mov_b32 m0, s64", "s_add_u32 s64, s64, 16384",
                f"buffer_load_dwordx4 v{VX0}, s[{SX}:{SX+3}], s94 offen {LMOD} lds",
                f"buffer_load_dwordx4 v{VX1}, s[{SX}:{SX+3}], s94 offen offset:1024 {LMOD} lds",
                "s_add_u32 s94, s94, 128"] + wrap(94, 96, 896)
    def dma(ci):
        issued.append(("w", ci))
        part, kc = divmod(ci, 7)
        r = [f"s_add_u32 m0, s65, {slot(ci)*8192}"]
        if part == 0:
            r += ["s_nop 0", f"buffer_load_dwordx4 v{VW}, s[{SW}:{SW+3}], s67 offen {LMOD} lds", f"s_add_u32 s67, s67, {64*3584}"] + wrap(67, 97, 448*3584)
        elif part == 1:
            r += ["s_nop 0", f"buffer_load_dwordx4 v{VW}, s[{SW}:{SW+3}], s66 offen {LMOD} lds", f"s_add_u32 s66, s66, {64*3584}"] + wrap(66, 97, 448*3584)
        else:
            r += ["s_nop 0", f"buffer_load_dwordx4 v{VD}, s[{SD}:{SD+3}], s68 offen {LMOD} lds", "s_add_u32 s68, s68, 128"] + wrap(68, 96, 896)
        return r
    if KROT:
        A(f"""
        s_lshl_b32 s62, s57, 1
        s_add_u32 s62, s62, s58
        s_mul_i32 s63, s62, 37
        s_lshr_b32 s63, s63, 8
        s_mul_i32 s63, s63, 7
        s_sub_u32 s62, s62, s63
        s_lshl_b32 s94, s62, 7
        s_mov_b32 s98, s94
        s_mul_i32 s62, s62, {64*3584}
        s_add_u32 s66, s66, s62
        s_add_u32 s67, s67, s62
        s_movk_i32 s96, 896
        s_mov_b32 s97, {448*3584}
        """)
    else:
        A("s_mov_b32 s94, 0")
    for x in xdma(0) + dma(0) + xdma(1): A(x)
    A(f"""
    s_lshr_b32 s62, s54, 2
    s_lshl_b32 s62, s62, 5
    s_lshl_b32 s63, s61, 4
    s_add_u32 s62, s62, s63
    s_and_b32 s63, s60, 1
    s_lshl_b32 s63, s63, 2
    s_add_u32 s62, s62, s63
    v_add_u32 v{T+5}, s62, v{T+1}
    v_mul_u32_u24 v{T+5}, 896, v{T+5}
    s_lshl_b32 s63, s61, 6
    v_xor_b32 v{T+6}, s63, v{T+4}
    v_add_u32 v{VD}, v{T+5}, v{T+6}
    s_cmp_eq_u32 s59, 0
    s_cselect_b32 s8, s8, s10
    s_cselect_b32 s9, s9, s11
    s_mul_i32 s62, s56, {64*896}
    s_add_u32 s{SD}, s8, s62
    s_addc_u32 s{SD+1}, s9, 0
    s_mov_b32 s{SD+2}, {64*896}
    s_mov_b32 s{SD+3}, 0x20000
    s_add_u32 s{SBT}, s22, {WS_BT}
    s_addc_u32 s{SBT+1}, s23, 0
    s_mov_b32 s{SBT+2}, {BT_BYTES}
    s_mov_b32 s{SBT+3}, 0x20000
    s_add_u32 s{SZ1}, s22, {WS_Z1}
    s_addc_u32 s{SZ1+1}, s23, 0
    s_mov_b32 s{SZ1+2}, {ZH_BYTES}
    s_mov_b32 s{SZ1+3}, 0x20000
    s_mul_i32 s62, s57, 28672
    s_add_u32 s62, s62, {WS_ST}
    s_add_u32 s{SST}, s22, s62
    s_addc_u32 s{SST+1}, s23, 0
    s_mov_b32 s{SST+2}, 28672
    s_mov_b32 s{SST+3}, 0x20000
    s_mov_b32 s{SDB}, s20
    s_mov_b32 s{SDB+1}, s21
    s_mov_b32 s{SDB+2}, 256
    s_mov_b32 s{SDB+3}, 0x20000
    s_mov_b32 s68, {"s98" if KROT else "0"}
    """)
    A(f"""
    v_and_b32 v{T}, 31, v0
    v_lshrrev_b32 v{T+1}, 5, v0
    v_bfe_u32 v{T+2}, v0, 1, 3
    v_xor_b32 v{T+2}, v{T+2}, v{T+1}
    v_lshlrev_b32 v{T+2}, 4, v{T+2}
    v_lshl_add_u32 v{T+2}, v{T}, 7, v{T+2}
    s_lshl_b32 s62, s60, 12
    v_add_u32 v{VXA[0]}, s62, v{T+2}
    v_xor_b32 v{VXA[1]}, 32, v{VXA[0]}
    v_xor_b32 v{VXA[2]}, 64, v{VXA[0]}
    v_xor_b32 v{VXA[3]}, 96, v{VXA[0]}
    v_bfe_u32 v{T+2}, v0, 2, 2
    v_lshl_add_u32 v{T+3}, v{T+1}, 3, v{T+2}
    v_lshlrev_b32 v{T+3}, 7, v{T+3}
    v_lshrrev_b32 v{T+2}, 1, v{T+2}
    v_xor_b32 v{T+2}, s61, v{T+2}
    v_lshl_add_u32 v{T+3}, v{T+2}, 6, v{T+3}
    v_bfe_u32 v{T+4}, v0, 4, 1
    v_and_b32 v{T+5}, 3, v0
    v_lshlrev_b32 v{T+6}, 5, v{T+4}
    v_lshl_add_u32 v{T+6}, v{T+5}, 3, v{T+6}
    v_add_u32 v{VT2}, v{T+3}, v{T+6}
    v_add_u32 v{VT2}, {14*8192}, v{VT2}
    v_lshrrev_b32 v{T+6}, 1, v{T+5}
    v_lshlrev_b32 v{T+6}, 5, v{T+6}
    v_lshl_add_u32 v{T+6}, v{T+4}, 4, v{T+6}
    v_and_b32 v{T+5}, 1, v{T+5}
    v_lshl_add_u32 v{T+6}, v{T+5}, 3, v{T+6}
    v_add_u32 v{VT1}, v{T+3}, v{T+6}
    """)
    def tile_off(dst, treg):
        return f"""
        s_mul_i32 s62, s{treg}, 37
        s_lshr_b32 s62, s62, 8
        s_mul_i32 s63, s62, 7
        s_sub_u32 s63, s{treg}, s63
        s_add_u32 s71, s63, 6
        s_cmp_ge_u32 s71, 7
        s_cselect_b32 s72, 7, 0
        s_sub_u32 s71, s71, s72
        s_bitcmp1_b32 s62, 0
        s_cselect_b32 s63, s71, s63
        s_mul_i32 s62, s62, {32*14336}
        s_lshl_b32 s63, s63, 10
        s_add_u32 s{dst}, s62, s63
        """
    A(f"""
    s_lshl_b32 s73, s58, 1
    s_add_u32 s73, s73, s61
    s_lshl_b32 s74, s73, 1
    """)
    A(tile_off(75, 74))
    A("s_add_u32 s74, s74, 1")
    A(tile_off(76, 74))
    A(f"""
    s_sub_u32 s76, s76, s75
    v_and_b32 v{T+5}, 15, v0
    v_lshl_add_u32 v{T+5}, v{T+1}, 4, v{T+5}
    v_lshlrev_b32 v{T+5}, 4, v{T+5}
    v_mul_lo_u32 v{T+6}, v{T+4}, s76
    v_add3_u32 v{VBT}, v{T+5}, v{T+6}, s75
    v_mul_u32_u24 v{T+6}, 28672, v{T+4}
    v_add_u32 v{VZ1}, v{T+5}, v{T+6}
    s_lshl_b32 s62, s57, 2
    s_add_u32 s62, s62, s60
    s_mul_i32 s75, s62, 7168
    s_add_u32 s76, s75, {8*32*14336}
    s_mul_i32 s77, s62, {2*28*1024}
    s_lshl_b32 s63, s73, 10
    s_add_u32 s77, s77, s63
    v_bfe_u32 v{T+5}, v0, 2, 2
    v_lshlrev_b32 v{T+5}, 6, v{T+5}
    v_lshl_add_u32 v{T+5}, v{T+1}, 5, v{T+5}
    v_lshl_add_u32 v{T+5}, v{T+4}, 4, v{T+5}
    s_lshl_b32 s62, s60, 8
    s_add_u32 s63, s63, s62
    v_add_u32 v{VST}, s63, v{T+5}
    v_lshrrev_b32 v{T+5}, 4, v0
    v_lshlrev_b32 v{T+5}, 10, v{T+5}
    v_and_b32 v{T+6}, 15, v0
    v_lshl_add_u32 v{T+5}, v{T+6}, 4, v{T+5}
    v_add_u32 v{VSL}, s62, v{T+5}
    v_mov_b32 v{VC1}, {f32(C1)}
    s_mov_b32 s78, 0x11111111
    s_mov_b32 s79, 0x11111111
    s_sub_u32 s73, s61, s60
    s_lshl_b32 s73, s73, 12
    """)

    PFX_LOAD = """
    s_load_dwordx4 s[4:7], s[0:1], 8
    s_load_dwordx2 s[8:9], s[0:1], 56
    """
    def pfx(lo0, n0, lo1, n1):
        mod = PFMOD
        def seg(n):
            if PFG == 1: return ""
            per = n // PFG
            lg = per.bit_length() - 1
            assert per == 1 << lg
            sh = (32 // PFG).bit_length() - 1
            return f"v_lshrrev_b32 v1, {lg}, v253\nv_and_b32 v253, {per-1}, v253\nv_lshl_add_u32 v253, v1, {sh}, v253"
        Lr1 = A.newlabel("k1pr1"); Lpe = A.newlabel("k1pe")
        A(f"""
        s_lshl_b32 s62, s53, 3
        s_add_u32 s62, s62, s54
        s_mov_b32 s10, 0x800000
        s_mov_b32 s11, 0x20000
        s_cmp_ge_u32 s52, 4
        s_cbranch_scc1 {Lr1}
        s_lshl_b32 s62, s62, 13
        s_lshl_b32 s63, s52, 21
        s_add_u32 s62, s62, s63
        v_and_b32 v253, 31, v0
        v_min_u32 v253, {n0 - 1}, v253
        {seg(n0)}
        v_lshrrev_b32 v1, 5, v0
        v_lshlrev_b32 v1, 12, v1
        v_lshl_add_u32 v1, v253, 7, v1
        buffer_load_dword v254, v1, s[8:11], s62 offen offset:{128*lo0} {mod}
        s_branch {Lpe}
        """)
        A.label(Lr1)
        A(f"""
        s_bitcmp1_b32 s52, 1
        s_cselect_b32 s8, s6, s4
        s_cselect_b32 s9, s7, s5
        s_lshl_b32 s62, s62, 14
        s_and_b32 s63, s52, 1
        s_lshl_b32 s63, s63, 22
        s_add_u32 s62, s62, s63
        v_and_b32 v253, 15, v0
        v_min_u32 v253, {n1 - 1}, v253
        {seg(n1)}
        v_lshrrev_b32 v1, 4, v0
        v_lshlrev_b32 v1, 12, v1
        v_lshl_add_u32 v1, v253, 7, v1
        buffer_load_dword v254, v1, s[8:11], s62 offen offset:{128*lo1} {mod}
        """)
        A.label(Lpe)
        issued.append(("pf", 0))
    def reads(ci):
        part, kc = divmod(ci, 7)
        wf = WF[ci & 1]
        r = []
        for ks in range(4):
            if part == 0:
                r.append(f"ds_read_b128 {v(XF + 16*kc + 4*ks, 4)}, v{VXA[ks]} offset:{(kc & 3)*16384}")
            if part < 2:
                base = VT2 if part == 0 else VT1
                so = (ci * 8192 if ci < 6 else 0) if part == 0 else slot(ci) * 8192
                for hf in range(2):
                    r.append(f"ds_read_b64_tr_b16 {v(wf + 4*ks + 2*hf, 2)}, v{base} offset:{so + ks*2048 + hf*512}")
            else:
                r.append(f"ds_read_b128 {v(wf + 4*ks, 4)}, v{VXA[ks]} offset:{(slot(ci) - 8)*8192}")
        return r
    def mfmas(ci):
        part, kc = divmod(ci, 7)
        wf = WF[ci & 1]
        acc = (ACC2, ACC1, ACCA)[part]
        r = []
        for ks in range(4):
            xf = v(XF + 16*kc + 4*ks, 4); w = v(wf + 4*ks, 4)
            c = "0" if (kc == 0 and ks == 0) else v(acc, 16)
            a_, b_ = (w, xf) if part == 1 else (xf, w)
            r.append(f"v_mfma_f32_32x32x16_bf16 {v(acc,16)}, {a_}, {b_}, {c}")
        return r
    def gelu(acc, tmp):
        r = []
        for g in range(4):
            vs = [acc + 4*g + k for k in range(4)]
            ts = [tmp + (4*g + k) % 8 for k in range(4)]
            r += [f"v_mul_f32 v{t}, v{x}, v{x}" for x, t in zip(vs, ts)]
            r += [f"v_fmaak_f32 v{t}, v{VC1}, v{t}, {f32(C0)}" for t in ts]
            r += [f"v_mul_f32 v{t}, v{t}, v{x}" for x, t in zip(vs, ts)]
            r += [f"v_exp_f32 v{t}, v{t}" for t in ts]
            r += [f"v_add_f32 v{t}, 1.0, v{t}" for t in ts]
            r += [f"v_rcp_f32 v{t}, v{t}" for t in ts]
            r += [f"v_mul_f32 v{x}, v{x}, v{t}" for x, t in zip(vs, ts)]
        return r
    def reduce16(src, tmp):
        r = []
        d = "row_mask:0xf bank_mask:"
        for k in range(8):
            r.append(f"v_add_f32_dpp v{tmp+k}, v{src+k}, v{src+k} row_ror:8 {d}0x3")
        for k in range(8):
            r.append(f"v_add_f32_dpp v{tmp+k}, v{src+k+8}, v{src+k+8} row_ror:8 {d}0xc")
        for k in range(4):
            r.append(f"v_add_f32_dpp v{tmp+k}, v{tmp+k}, v{tmp+k} row_half_mirror {d}0x5")
        for k in range(4):
            r.append(f"v_add_f32_dpp v{tmp+k}, v{tmp+k+4}, v{tmp+k+4} row_half_mirror {d}0xa")
        for k in range(2):
            r.append(f"v_permlane16_swap_b32 v{tmp+k}, v{tmp+k+2}")
        for k in range(2):
            r.append(f"v_add_f32 v{tmp+k}, v{tmp+k}, v{tmp+k+2}")
        return r
    def quad(regs):
        r = []
        for qp in ("[1,0,3,2]", "[2,3,0,1]"):
            for x in regs:
                r.append(f"v_add_f32_dpp v{x}, v{x}, v{x} quad_perm:{qp} row_mask:0xf bank_mask:0xf")
        return r
    def pack_store(acc, order, out, vaddr, srd, so, smod):
        r = []
        for half in range(2):
            ga, gb = order[half]
            o = out + 4*half
            r += [f"v_cvt_pk_bf16_f32 v{o}, v{acc+4*ga}, v{acc+4*ga+1}",
                  f"v_cvt_pk_bf16_f32 v{o+1}, v{acc+4*ga+2}, v{acc+4*ga+3}",
                  f"v_cvt_pk_bf16_f32 v{o+2}, v{acc+4*gb}, v{acc+4*gb+1}",
                  f"v_cvt_pk_bf16_f32 v{o+3}, v{acc+4*gb+2}, v{acc+4*gb+3}",
                  f"buffer_store_dwordx4 {v(o,4)}, v{vaddr}, s[{srd}:{srd+3}], s{so} offen offset:{512*half} {smod}"]
        return r
    SQ = T + 8
    RS = T + 24
    RQ = T + 32
    PK = T + 40
    F2 = gelu(ACC2, T)
    F2 += [f"v_mul_f32 v{SQ+k}, v{ACC2+k}, v{ACC2+k}" for k in range(16)]
    ra, rb_ = reduce16(ACC2, RS), reduce16(SQ, RQ)
    for x, y in zip(ra, rb_): F2 += [x, y]
    F2 += quad([RS, RQ, RS+1, RQ+1])
    F2 += [f"v_mov_b32 v{PK}, v{RS}", f"v_mov_b32 v{PK+1}, v{RQ}", f"v_mov_b32 v{PK+2}, v{RS+1}", f"v_mov_b32 v{PK+3}, v{RQ+1}"]
    F2 += ["FLAGCHECK"]
    F2 += [f"s_mov_b64 exec, s[78:79]\nbuffer_store_dwordx4 {v(PK,4)}, v{VST}, s[{SST}:{SST+3}], 0 offen sc1\ns_mov_b64 exec, -1"]
    F1 = gelu(ACC1, T) + pack_store(ACC1, ((0, 1), (2, 3)), T + 8, VZ1, SZ1, 77, SM1)

    bars = sorted(set(BARS))
    assert DS > max(WSCH) and FLS < PUB_STEP
    def split(lst, n):
        k, m = divmod(len(lst), n)
        out, i = [], 0
        for g in range(n):
            e = i + k + (1 if g < m else 0)
            out.append(lst[i:e]); i = e
        return out
    def pending_after(tags):
        last = max(i for i, t in enumerate(issued) if t in tags)
        return len(issued) - 1 - last
    def emit(x):
        if x == "FLAGCHECK":
            A(f"s_waitcnt vmcnt({pending_after([('f', 0)])})")
            A.label(Lp)
            A(f"""
            v_readfirstlane_b32 s62, v{FG}
            s_cmp_eq_u32 s62, 0x0101
            s_cbranch_scc1 {Lok}
            s_sleep 8
            v_mov_b32 v{FG}, 0
            buffer_load_ushort v{FG}, v{FG}, s[{SDB}:{SDB+3}], s95 offen sc1
            s_sub_u32 s70, s70, 1
            s_cmp_lg_u32 s70, 0
            s_waitcnt vmcnt(0)
            s_cbranch_scc1 {Lp}
            """)
            A.label(Lok)
            return
        if "buffer_store" in x: issued.append(("st", 0))
        A(x)
    n2 = 4 * (PUB_STEP - 8) - 1
    f2g = [[]] + split(F2, n2)
    f1g = [[]] + split(F1, 27)
    Lnf = A.newlabel("k1nf")
    Lp = A.newlabel("k1poll")
    Lok = A.newlabel("k1ok")
    LD = T + 16
    for x in dma(1): A(x)
    FG = ACCA
    def stat_loads():
        for i in range(7):
            so = "0" if i == 0 else f"s{62+i}"
            A(f"buffer_load_dwordx4 {v(LD+4*i,4)}, v{VSL}, s[{SST}:{SST+3}], {so} offen sc1")
    for st in range(22):
        if st in bars:
            nxt = min([b for b in bars if b > st] + [21])
            need = [("w", c) for c in range(st, nxt)] + ([("x", st)] if st < 7 else [])
            assert all(t in issued for t in need), (st, need)
            A(f"s_waitcnt vmcnt({pending_after(need)})")
            A("s_barrier")
        if st == 4:
            for r in VXA: A(f"v_add_u32 v{r}, 0x10000, v{r}")
        if st == 6: A(f"v_add_u32 v{VT2}, {-14*8192 & 0xffffffff:#x}, v{VT2}")
        if st == 7:
            for r in VXA: A(f"v_add_u32 v{r}, s73, v{r}")
        if STAMP and st == STB[0]: A("s_memrealtime s[82:83]")
        if STAMP and st == STB[1]: A("s_memrealtime s[84:85]")
        if STAMP and st == STB[2]: A("s_memrealtime s[90:91]")
        if PFX and st == PFS - 1: A(PFX_LOAD)
        if PFX and st == PFS: pfx(0, PF0N, 0, PF1N)
        if st == DS:
            for i in range(1, 7): A(f"s_movk_i32 s{62+i}, {4096*i}")
            stat_loads()
            for i in range(7): issued.append(("s", i))
            if PFX and PFB:
                pfx(PF0N, min(2*PFB, 32 - PF0N), PF1N, PFB)
                A("s_movk_i32 s63, 4096")
        pre = []
        if st <= 4: pre = xdma(st + 2) + dma(st + 2)
        for c in range(7, 21):
            if WSCH[c - 7] == st:
                assert st >= ((c - 6) // 2 + 1 if c < 20 else 1) and (c == 20 or (c - 6) // 2 + 1 in bars)
                pre += dma(c)
        if st == FLS:
            pre += [f"s_lshl_b32 s95, s57, 1", "s_mov_b32 s70, 5000", f"v_mov_b32 v{FG}, 0",
                    f"buffer_load_ushort v{FG}, v{FG}, s[{SDB}:{SDB+3}], s95 offen sc1"]
            issued.append(("f", 0))
        rd = reads(st) if st <= 20 else []
        mf = mfmas(st - 1) if st >= 1 else []
        if not mf:
            for x in rd + pre: A(x)
        else:
            rdg = split(rd, 3) + [[]] if st > 6 else [rd, [], [], []]
            for g in range(4):
                A(mf[g])
                for x in rdg[g]: A(x)
                if g == (2 if st > 6 else 1):
                    for x in pre: A(x)
                gi = 4*(st - 8) + g
                if 0 <= gi < len(f2g):
                    for x in f2g[gi]: emit(x)
                gi = 4*(st - 15) + g
                if 0 <= gi < len(f1g):
                    for x in f1g[gi]: emit(x)
        if rd: A("s_waitcnt lgkmcnt(0)")
    if STAMP: A("s_memrealtime s[86:87]")
    A(f"""
    v_and_b32 v{T}, 15, v0
    v_bfe_u32 v{T+1}, v0, 4, 1
    v_lshlrev_b32 v{T}, 4, v{T}
    v_lshl_add_u32 v{T}, v{T+1}, 3, v{T}
    s_lshl_b32 s62, s54, 8
    s_add_u32 s62, s62, {15*8192}
    v_add_u32 v{T}, s62, v{T}
    v_lshrrev_b32 v{T+1}, 5, v0
    v_lshlrev_b32 v{T+1}, 5, v{T+1}
    v_add_u32 v{T+1}, s62, v{T+1}
    """)
    Lr = A.newlabel("k1re")
    Lgo = A.newlabel("k1go")
    A(f"s_waitcnt vmcnt({pending_after([('s', 6)])})")
    A.label(Lr)
    A(f"v_min_f32 v{T+2}, v{LD+1}, v{LD+3}")
    for i in range(1, 7):
        A(f"v_min3_f32 v{T+2}, v{T+2}, v{LD+4*i+1}, v{LD+4*i+3}")
    A(f"""
    v_cmp_gt_f32 vcc, 0, v{T+2}
    s_nop 1
    s_cmp_eq_u64 vcc, 0
    s_cbranch_scc1 {Lgo}
    s_sleep 4
    """)
    stat_loads()
    A(f"""
    s_sub_u32 s70, s70, 1
    s_cmp_gt_i32 s70, 0
    s_waitcnt vmcnt(0)
    s_cbranch_scc1 {Lr}
    """)
    A.label(Lgo)
    if STAMP: A("s_memrealtime s[92:93]")
    for i in range(1, 7):
        for k in range(4):
            A(f"v_add_f32 v{LD+k}, v{LD+k}, v{LD+4*i+k}")
    A(f"""
    v_permlane16_swap_b32 v{LD}, v{LD+2}
    v_permlane16_swap_b32 v{LD+1}, v{LD+3}
    v_add_f32 v{LD}, v{LD}, v{LD+2}
    v_add_f32 v{LD+1}, v{LD+1}, v{LD+3}
    v_mov_b32 v{LD+2}, v{LD}
    v_mov_b32 v{LD+3}, v{LD+1}
    v_permlane32_swap_b32 v{LD}, v{LD+2}
    v_permlane32_swap_b32 v{LD+1}, v{LD+3}
    v_add_f32 v{LD}, v{LD}, v{LD+2}
    v_add_f32 v{LD+1}, v{LD+1}, v{LD+3}
    v_mul_f32 v{LD}, {f32(1.0/896)}, v{LD}
    v_mul_f32 v{LD+1}, {f32(1.0/896)}, v{LD+1}
    v_fma_f32 v{LD+1}, -v{LD}, v{LD}, v{LD+1}
    v_max_f32 v{LD+1}, 0, v{LD+1}
    v_add_f32 v{LD+1}, {f32(1e-5)}, v{LD+1}
    v_rsq_f32 v{LD+2}, v{LD+1}
    s_nop 0
    v_mul_f32 v{LD+3}, v{LD}, v{LD+2}
    v_xor_b32 v{LD+3}, 0x80000000, v{LD+3}
    ds_write_b64 v{T}, {v(LD+2,2)}
    s_waitcnt lgkmcnt(0)
    """)
    NB = 48
    for g in range(4):
        for hh in range(2):
            A(f"ds_read_b128 {v(NB + 8*g + 4*hh, 4)}, v{T+1} offset:{64*g + 16*hh}")
    for x in pack_store(ACCA, ((0, 2), (1, 3)), T + 24, VBT, SBT, 76, SMA): A(x)
    for g in (0, 2, 1, 3):
        A(f"s_waitcnt lgkmcnt({2*(3-g) if g in (0,) else (2 if g == 2 else 0)})")
        for r in range(4):
            A(f"v_fma_f32 v{ACC2+4*g+r}, v{ACC2+4*g+r}, v{NB+8*g+2*r}, v{NB+8*g+2*r+1}")
    for x in pack_store(ACC2, ((0, 2), (1, 3)), T + 32, VBT, SBT, 75, SM2): A(x)
    if STAMP:
        A(f"""
        s_waitcnt vmcnt(0)
        s_memrealtime s[88:89]
        s_waitcnt lgkmcnt(0)
        v_mov_b32 v8, s80
        v_mov_b32 v9, s82
        v_mov_b32 v10, s84
        v_mov_b32 v11, s86
        v_mov_b32 v12, s88
        v_mov_b32 v13, s70
        v_mov_b32 v14, s90
        v_mov_b32 v15, s92
        s_lshl_b32 s62, s2, 3
        s_add_u32 s62, s62, s54
        s_lshl_b32 s62, s62, 5
        s_add_u32 s62, s62, {WS_DBG + 0x100000}
        v_mov_b32 v7, s62
        global_store_dwordx4 v7, v[8:11], s[22:23]
        global_store_dwordx4 v7, v[12:15], s[22:23] offset:16
        """)
    A("s_endpgm")

    A.label(Lhelp)
    Lgate = A.newlabel("k1gate")
    A(f"""
    s_lshl_b32 s55, s52, 2
    s_add_u32 s55, s55, s53
    s_sub_u32 s55, s55, 28
    s_waitcnt lgkmcnt(0)
    s_mov_b32 s24, s4
    s_mov_b32 s25, s5
    s_mov_b32 s26, {2048*896}
    s_mov_b32 s27, 0x20000
    s_mov_b32 s28, s18
    s_mov_b32 s29, s19
    s_mov_b32 s30, 896
    s_mov_b32 s31, 0x20000
    s_mov_b32 s32, s16
    s_mov_b32 s33, s17
    s_mov_b32 s34, {896*896}
    s_mov_b32 s35, 0x20000
    s_add_u32 s36, s22, {WS_WOT}
    s_addc_u32 s37, s23, 0
    s_mov_b32 s38, {WOT_BYTES}
    s_mov_b32 s39, 0x20000
    s_add_u32 s40, s22, {WS_G}
    s_addc_u32 s41, s23, 0
    s_mov_b32 s42, 8192
    s_mov_b32 s43, 0x20000
    v_lshrrev_b32 v1, 3, v0
    s_lshl_b32 s56, s55, 6
    s_lshl_b32 s57, s54, 3
    s_add_u32 s56, s56, s57
    v_add_u32 v1, s56, v1
    v_and_b32 v2, 7, v0
    v_lshlrev_b32 v2, 4, v2
    v_mul_u32_u24 v3, 896, v1
    v_add_u32 v3, v3, v2
    """)
    def helper_pf():
        A(f"""
        s_load_dwordx4 s[64:67], s[0:1], 8
        s_load_dwordx2 s[68:69], s[0:1], 56
        s_lshl_b32 s62, s55, 18
        s_lshl_b32 s63, s54, 7
        s_add_u32 s62, s62, s63
        v_lshlrev_b32 v7, 12, v0
        s_mov_b32 s46, 0x800000
        s_mov_b32 s47, 0x20000
        s_waitcnt lgkmcnt(0)
        """)
        Lpfe = A.newlabel("k1pfe")
        for i in range((PFN + 7) // 8):
            if PFN - 8*i < 8:
                A(f"s_cmp_ge_u32 s54, {PFN - 8*i}\ns_cbranch_scc1 {Lpfe}")
            for b in (68, 64, 66):
                A(f"""
                s_mov_b32 s44, s{b}
                s_mov_b32 s45, s{b+1}
                buffer_load_dword v100, v7, s[44:47], s62 offen offset:{1024*i}
                """)
        A.label(Lpfe)
    A(f"""
    s_mul_i32 s56, s55, 14336
    s_mul_i32 s57, s54, 1792
    s_add_u32 s56, s56, s57
    s_add_u32 s56, s56, {WS_ST}
    s_add_u32 s44, s22, s56
    s_addc_u32 s45, s23, 0
    s_movk_i32 s46, 1792
    s_mov_b32 s47, 0x20000
    v_lshlrev_b32 v4, 4, v0
    v_mov_b32 v8, -1.0
    v_mov_b32 v9, -1.0
    v_mov_b32 v10, -1.0
    v_mov_b32 v11, -1.0
    buffer_store_dwordx4 v[8:11], v4, s[44:47], 0 offen sc1
    s_mov_b32 exec_hi, 0xffff
    buffer_store_dwordx4 v[8:11], v4, s[44:47], 0 offen offset:1024 sc1
    s_mov_b32 exec_hi, -1
    """)
    for i in range(7):
        A(f"buffer_load_dwordx4 {v(16+4*i,4)}, v3, s[24:27], 0 offen offset:{128*i}")
        A(f"buffer_load_dwordx4 {v(48+4*i,4)}, v2, s[28:31], 0 offen offset:{128*i}")
    Lhf = A.newlabel("k1hf")
    A(f"""
    s_mov_b32 s48, s20
    s_mov_b32 s49, s21
    s_movk_i32 s50, 256
    s_mov_b32 s51, 0x20000
    v_mov_b32 v12, 1
    v_mov_b32 v13, s55
    s_waitcnt vmcnt(14)
    s_barrier
    s_cmp_lg_u32 s54, 0
    s_cbranch_scc1 {Lhf}
    s_mov_b64 exec, 1
    buffer_store_byte v12, v13, s[48:51], 0 offen sc1
    s_mov_b64 exec, -1
    """)
    A.label(Lhf)
    Lhz = A.newlabel("k1hz")
    A(f"""
    s_cmp_lg_u32 s55, 31
    s_cbranch_scc1 {Lhz}
    s_add_u32 s48, s22, {WS_FL}
    s_addc_u32 s49, s23, 0
    s_movk_i32 s50, {16*FLSTRIDE}
    s_lshl_b32 s56, s54, 9
    v_lshlrev_b32 v13, 3, v0
    v_mov_b32 v14, 0
    v_mov_b32 v15, 0
    buffer_store_dwordx2 v[14:15], v13, s[48:51], s56 offen
    """)
    A.label(Lhz)
    A(f"""
    s_cmp_ge_u32 s55, 28
    s_cbranch_scc1 {Lgate}
    s_mul_i32 s58, s55, 28672
    s_lshl_b32 s59, s54, 10
    s_add_u32 s58, s58, s59
    v_lshlrev_b32 v4, 4, v0
    """)
    L3 = A.newlabel("k1h3")
    for p in range(4):
        if p == 3:
            A(f"s_cmp_ge_u32 s54, 4\ns_cbranch_scc1 {L3}")
        A(f"""
        s_add_u32 m0, s59, {8192*p}
        s_nop 0
        buffer_load_dwordx4 v4, s[32:35], s58 offen {LMOD} lds
        s_add_u32 s58, s58, 8192
        """)
    A.label(L3)
    A(f"""
    v_lshrrev_b32 v5, 2, v0
    v_mul_u32_u24 v5, 896, v5
    v_and_b32 v6, 3, v0
    v_lshl_add_u32 v5, v6, 4, v5
    s_lshr_b32 s60, s54, 1
    s_lshl_b32 s60, s60, 6
    s_and_b32 s61, s54, 1
    s_lshl_b32 s61, s61, 3
    s_add_u32 s60, s60, s61
    v_add_u32 v5, s60, v5
    s_mul_i32 s60, s54, 28
    s_add_u32 s60, s60, s55
    s_lshl_b32 s60, s60, 10
    s_waitcnt vmcnt(0)
    s_barrier
    """)
    for p in range(4):
        A(f"ds_read_b64_tr_b16 {v(80+4*p,2)}, v5 offset:{256*p}")
        A(f"ds_read_b64_tr_b16 {v(82+4*p,2)}, v5 offset:{256*p + 16*896}")
    for p in range(4):
        A(f"s_waitcnt lgkmcnt({2*(3-p)})")
        if p == 3:
            A(f"s_cmp_ge_u32 s54, 4\ns_cbranch_scc1 {Lgate}")
        A(f"buffer_store_dwordx4 {v(80+4*p,4)}, v4, s[36:39], s60 offen")
        A(f"s_add_u32 s60, s60, {8*28*1024}")
    A.label(Lgate)
    A("s_waitcnt vmcnt(0)")
    A("v_mov_b32 v8, 0\nv_mov_b32 v9, 0")
    for i in range(28):
        A(f"v_dot2c_f32_bf16 v{8 + (i&1)}, v{16+i}, v{48+i}")
    A(f"""
    s_nop 2
    v_add_f32 v8, v8, v9
    s_nop 1
    v_add_f32_dpp v8, v8, v8 quad_perm:[1,0,3,2] row_mask:0xf bank_mask:0xf
    s_nop 1
    v_add_f32_dpp v8, v8, v8 quad_perm:[2,3,0,1] row_mask:0xf bank_mask:0xf
    s_nop 1
    v_add_f32_dpp v8, v8, v8 row_half_mirror row_mask:0xf bank_mask:0xf
    v_mul_f32 v8, {f32(-LOG2E)}, v8
    v_exp_f32 v8, v8
    s_nop 0
    v_add_f32 v8, 1.0, v8
    v_rcp_f32 v8, v8
    v_lshlrev_b32 v1, 2, v1
    buffer_store_dword v8, v1, s[40:43], 0 offen
    """)
    if PF == "h1": helper_pf()
    if PFX:
        A(PFX_LOAD)
        A("s_waitcnt lgkmcnt(0)")
        pfx(0, PF0N, 0, PF1N)
        if PFB: pfx(PF0N, min(2*PFB, 32 - PF0N), PF1N, PFB)
    A.label(Lend)
    A("s_endpgm")
    return kernel_desc(name, 256, 102, 256)
```

```python
from asmlib import *

WS_BT = 0x0
WS_Z1 = 0x800000
WS_H  = 0xC00000
WS_Y  = 0x1000000
WS_WOT = 0x1400000
WS_G  = 0x1500000
WS_ST = 0x1600000
WS_FL = 0x1700000
FLSTRIDE = 256
BT_BYTES = 16 * 32 * 14336
ZH_BYTES = 128 * 28 * 1024
WOT_BYTES = 28 * 28 * 1024

STAGE = 30720
NSLOT = 5
K2_LDS = STAGE * NSLOT

import os
ROT = os.environ.get("K2_ROT", "h2")
SKIP = os.environ.get("K2_SKIP", "")
STAMP = os.environ.get("STAMP", "") == "1"
WS_DBG = 0x1800000
K2PF = int(os.environ.get("K2_PF", "0"))
K2PFMOD = os.environ.get("K2_PFMOD", "")
AMOD = os.environ.get("K2_AMOD", "")
BMOD = os.environ.get("K2_BMOD", "")
MAP1 = "" if os.environ.get("K2_MAP", "1") == "0" else """
    s_and_b32 s41, s34, 1
    s_lshl_b32 s41, s41, 3
    s_lshr_b32 s42, s35, 2
    s_add_u32 s41, s41, s42
    s_and_b32 s42, s34, 2
    s_lshl_b32 s42, s42, 1
    s_and_b32 s43, s35, 3
    s_add_u32 s42, s42, s43
    s_cmp_lg_u32 s38, 0
    s_cselect_b32 s36, s41, s36
    s_cselect_b32 s37, s42, s37
"""
SMOD2 = os.environ.get("K2_SMOD", "")
WPF = os.environ.get("K2_WPF", "1")
FUSE = os.environ.get("FUSE", "0") == "1"
if FUSE:
    SMOD2 = "sc1"; WPF = ""
K2PF0 = int(os.environ.get("K2_PF0", "8"))
def gen_k2(A, name="k2_kernel"):
    kernel_header(A, name)
    Lend = A.newlabel("k2end")
    Lload = A.newlabel("k2load")
    A(f"""
    s_cmp_ge_u32 s2, 256
    s_cbranch_scc1 {Lend}
    {"s_memrealtime s[54:55]" if STAMP else ""}
    s_load_dwordx4 s[4:7], s[0:1], 8
    s_load_dwordx4 s[28:31], s[0:1], 56
    s_load_dwordx2 s[32:33], s[0:1], 104
    s_and_b32 s34, s2, 7
    s_lshr_b32 s35, s2, 3
    s_and_b32 s36, s34, 3
    s_lshl_b32 s36, s36, 2
    s_lshr_b32 s37, s35, 3
    s_add_u32 s36, s36, s37
    s_and_b32 s37, s35, 7
    s_lshr_b32 s38, s34, 2
    {MAP1}
    s_lshl_b32 s39, s38, 3
    s_add_u32 s39, s39, s37
    v_lshrrev_b32 v1, 6, v0
    v_and_b32 v0, 63, v0
    s_nop 0
    v_readfirstlane_b32 s40, v1
    s_waitcnt lgkmcnt(0)
    s_cmp_lt_u32 s37, 4
    s_cselect_b32 s4, s4, s6
    s_cselect_b32 s5, s5, s7
    s_cmp_eq_u32 s38, 0
    s_cselect_b32 s4, s28, s4
    s_cselect_b32 s5, s29, s5
    s_lshl_b32 s41, s36, 19
    s_add_u32 s8, s4, s41
    s_addc_u32 s9, s5, 0
    s_mov_b32 s10, 0x80000
    s_mov_b32 s11, 0x20000
    s_mul_i32 s41, s39, {32*14336}
    s_add_u32 s12, s32, s41
    s_addc_u32 s13, s33, 0
    s_mov_b32 s14, {32*14336}
    s_mov_b32 s15, 0x20000
    s_cmp_ge_u32 s40, 4
    s_cbranch_scc1 {Lload}
    """)
    FA = [[8 + 16*st + 4*m for m in range(4)] for st in range(2)]
    FB = [[40 + 28*st + 4*n for n in range(7)] for st in range(2)]
    Z1 = 96
    BS = 124
    ACC = 144
    def acc(n, m): return ACC + 4*(n*4 + m)
    VAL, VAH, VB = 2, 3, 4
    WAL, WAH, WB = 5, 6, 7
    VLANE16 = 126
    VPF = 127
    if K2PF:
        A(f"""
        s_lshl_b32 s42, s37, 4
        s_lshl_b32 s43, s40, 2
        s_add_u32 s42, s42, s43
        s_and_b32 s44, s37, 3
        s_lshl_b32 s44, s44, 5
        s_lshl_b32 s43, s40, 3
        s_add_u32 s44, s44, s43
        s_cmp_lg_u32 s38, 0
        s_cselect_b32 s42, s44, s42
        s_cselect_b32 s43, 7, 3
        v_lshrrev_b32 v1, 1, v0
        v_and_b32 v1, s43, v1
        v_add_u32 v1, s42, v1
        v_lshlrev_b32 v1, 12, v1
        v_and_b32 v5, 1, v0
        v_lshl_add_u32 v{VPF}, v5, 7, v1
        s_movk_i32 s66, {128*K2PF0}
        """)
        for i in range((K2PF - K2PF0) // 2):
            A(f"buffer_load_dword v128, v{VPF}, s[8:11], s66 offen {K2PFMOD}")
            A("s_add_u32 s66, s66, 256")
    A(f"""
    s_lshr_b32 s42, s40, 1
    s_and_b32 s43, s40, 1
    v_and_b32 v1, 15, v0
    v_lshrrev_b32 v5, 4, v0
    s_lshl_b32 s44, s43, 2
    v_add_u32 v5, s44, v5
    v_lshrrev_b32 v6, 1, v1
    v_xor_b32 v5, v5, v6
    v_lshlrev_b32 v5, 4, v5
    v_lshl_add_u32 v5, v1, 7, v5
    s_lshl_b32 s44, s42, 13
    s_lshl_b32 s45, s43, 12
    s_add_u32 s46, s44, s45
    s_xor_b32 s47, s46, 0x1000
    v_add_u32 v{VAL}, s46, v5
    v_add_u32 v{VAH}, s47, v5
    s_mul_i32 s44, s43, 7168
    s_add_u32 s44, s44, 16384
    v_lshlrev_b32 v{VLANE16}, 4, v0
    v_add_u32 v{VB}, s44, v{VLANE16}
    """)
    A(f"""
    s_lshl_b32 s44, s36, 3
    s_lshl_b32 s45, s42, 2
    s_add_u32 s44, s44, s45
    s_lshl_b32 s45, s43, 1
    s_add_u32 s44, s44, s45
    s_mul_i32 s45, s37, 7
    s_add_u32 s45, s45, 1
    s_lshr_b32 s45, s45, 1
    s_mul_i32 s46, s44, 28
    s_add_u32 s46, s46, s45
    s_lshl_b32 s48, s46, 10
    s_add_u32 s49, s48, {28*1024}
    s_and_b32 s47, s37, 1
    s_movk_i32 s46, 3072
    s_cmp_eq_u32 s47, 0
    s_cselect_b32 s47, s46, -1016
    s_add_u32 s50, s48, s47
    s_add_u32 s51, s49, s47
    s_add_u32 s16, s32, {WS_Z1}
    s_addc_u32 s17, s33, 0
    s_mov_b32 s18, {ZH_BYTES}
    s_mov_b32 s19, 0x20000
    s_mov_b32 s46, {WS_H}
    s_cmp_eq_u32 s38, 0
    s_cselect_b32 s47, s46, {WS_Y}
    s_add_u32 s20, s32, s47
    s_addc_u32 s21, s33, 0
    s_mov_b32 s22, {ZH_BYTES}
    s_mov_b32 s23, 0x20000
    s_mov_b32 s24, s30
    s_mov_b32 s25, s31
    s_mov_b32 s26, 4096
    s_mov_b32 s27, 0x20000
    """)
    Lnoz = A.newlabel("k2noz")
    A(f"""
    s_cmp_lg_u32 s38, 0
    s_cbranch_scc1 {Lnoz}
    v_lshrrev_b32 v5, 2, v1
    v_lshlrev_b32 v5, 3, v5
    v_and_b32 v6, 3, v1
    v_add_u32 v5, v5, v6
    s_lshl_b32 s47, s44, 4
    v_add_u32 v5, s47, v5
    v_lshlrev_b32 v5, 1, v5
    buffer_load_ushort v{BS}, v5, s[24:27], 0 offen
    buffer_load_ushort v{BS+1}, v5, s[24:27], 0 offen offset:8
    """)
    for mm in range(2):
        so = 48 + mm
        for p in range(3):
            A(f"buffer_load_dwordx4 {v(Z1 + 14*mm + 4*p, 4)}, v{VLANE16}, s[16:19], s{so} offen offset:{1024*p}")
        A(f"buffer_load_dwordx2 {v(Z1 + 14*mm + 12, 2)}, v{VLANE16}, s[16:19], s{50+mm} offen")
    A.label(Lnoz)
    for r in range(112):
        A(f"v_mov_b32 v{ACC + r}, 0")
    A("s_mov_b32 s52, 0")
    def reads(st):
        r = []
        for m in range(4):
            base = WAL if m < 2 else WAH
            r.append(f"ds_read_b128 {v(FA[st][m],4)}, v{base} offset:{2048*(m&1)}")
        for n in range(7):
            r.append(f"ds_read_b128 {v(FB[st][n],4)}, v{WB} offset:{1024*n}")
        return [r[0], r[4], r[1], r[2], r[3]] + r[5:]
    def addr_update():
        return f"""
        v_add_u32 v{WAL}, s52, v{VAL}
        v_add_u32 v{WAH}, s52, v{VAH}
        v_add_u32 v{WB}, s52, v{VB}
        s_add_u32 s52, s52, {STAGE}
        s_cmp_eq_u32 s52, {STAGE*NSLOT}
        s_cselect_b32 s52, 0, s52
        """
    def mfmas(st):
        if "mfma" in SKIP: return ["s_nop 0"] * 28
        return [f"v_mfma_f32_16x16x32_bf16 {v(acc(n,m),4)}, {v(FB[st][n],4)}, {v(FA[st][m],4)}, {v(acc(n,m),4)}"
                for n in range(7) for m in range(4)]
    def iteration(st, with_reads=True):
        if with_reads:
            A("s_barrier")
            A(addr_update())
            for ins in interleave(mfmas(st), reads(st ^ 1), start=0, every=2):
                A(ins)
            A("s_waitcnt lgkmcnt(0)")
        else:
            for ins in mfmas(st):
                A(ins)
    A("s_barrier")
    if STAMP: A("s_memrealtime s[56:57]\ns_memtime s[62:63]")
    A(addr_update())
    for ins in reads(0):
        A(ins)
    A("s_waitcnt lgkmcnt(0)")
    A("s_mov_b32 s53, 15")
    Lloop = A.newlabel("k2loop")
    A.label(Lloop)
    iteration(0)
    if K2PF:
        Lsk = A.newlabel("k2pfs")
        A(f"""
        s_cmp_ge_u32 s66, 4096
        s_cbranch_scc1 {Lsk}
        buffer_load_dword v128, v{VPF}, s[8:11], s66 offen {K2PFMOD}
        s_add_u32 s66, s66, 256
        """)
        A.label(Lsk)
    iteration(1)
    A(f"""
    s_sub_u32 s53, s53, 1
    s_cmp_lg_u32 s53, 0
    s_cbranch_scc1 {Lloop}
    """)
    iteration(0)
    iteration(1, with_reads=False)
    if STAMP: A("s_memrealtime s[58:59]\ns_memtime s[64:65]\ns_waitcnt lgkmcnt(0)\ns_sub_u32 s62, s64, s62")
    XB = 2 * STAGE
    A(f"""
    s_mul_i32 s47, s40, 14336
    s_add_u32 s47, s47, {XB}
    v_add_u32 v5, s47, v{VLANE16}
    s_xor_b32 s46, s40, 1
    s_mul_i32 s46, s46, 14336
    s_add_u32 s46, s46, {XB}
    v_add_u32 v6, s46, v{VLANE16}
    s_nop 4
    """)
    for n in range(7):
        for mm in range(2):
            A(f"ds_write_b128 v5, {v(acc(n, 2+mm),4)} offset:{(n*2+mm)*1024}")
    A("s_waitcnt lgkmcnt(0)")
    A("s_barrier")
    RX = 8
    for n in range(7):
        for mm in range(2):
            A(f"ds_read_b128 {v(RX + 4*(n*2+mm),4)}, v6 offset:{(n*2+mm)*1024}")
    Ly = A.newlabel("k2y")
    Lfin = A.newlabel("k2fin")
    A(f"""
    s_cmp_lg_u32 s38, 0
    s_cbranch_scc1 {Ly}
    s_waitcnt vmcnt(0)
    v_lshlrev_b32 v{BS}, 16, v{BS}
    v_lshlrev_b32 v{BS+1}, 16, v{BS+1}
    """)
    OUT = 64
    def epi(g2):
        cnt = 14
        for n in range(7):
            for mm in range(2):
                cnt -= 1
                A(f"s_waitcnt lgkmcnt({cnt})")
                rx = RX + 4*(n*2+mm)
                zr = Z1 + 14*mm + 2*n
                o = OUT + 14*mm + 2*n
                for r in range(4):
                    A(f"v_add_f32 v{rx+r}, v{rx+r}, v{acc(n,mm)+r}")
                if g2:
                    for r in range(4):
                        A(f"v_add_f32 v{rx+r}, v{rx+r}, v{BS+mm}")
                    A(f"""
                    v_lshlrev_b32 v92, 16, v{zr}
                    v_and_b32 v93, 0xffff0000, v{zr}
                    v_lshlrev_b32 v94, 16, v{zr+1}
                    v_and_b32 v95, 0xffff0000, v{zr+1}
                    v_mul_f32 v{rx}, v{rx}, v92
                    v_mul_f32 v{rx+1}, v{rx+1}, v93
                    v_mul_f32 v{rx+2}, v{rx+2}, v94
                    v_mul_f32 v{rx+3}, v{rx+3}, v95
                    """)
                A(f"v_cvt_pk_bf16_f32 v{o}, v{rx}, v{rx+1}")
                A(f"v_cvt_pk_bf16_f32 v{o+1}, v{rx+2}, v{rx+3}")
                if n % 2 == 1:
                    p = n // 2
                    A(f"buffer_store_dwordx4 {v(OUT + 14*mm + 4*p,4)}, v{VLANE16}, s[20:23], s{48+mm} offen offset:{1024*p} {SMOD2}")
                if n == 6:
                    A(f"buffer_store_dwordx2 {v(OUT + 14*mm + 12,2)}, v{VLANE16}, s[20:23], s{50+mm} offen {SMOD2}")
    def stamp_out():
        if not STAMP: return
        A(f"""
        s_waitcnt vmcnt(0)
        s_memrealtime s[60:61]
        s_waitcnt lgkmcnt(0)
        v_mov_b32 v8, s54
        v_mov_b32 v13, s62
        v_mov_b32 v9, s56
        v_mov_b32 v10, s58
        v_mov_b32 v11, s60
        s_lshl_b32 s46, s2, 2
        s_add_u32 s46, s46, s40
        s_lshl_b32 s46, s46, 4
        s_add_u32 s46, s46, {WS_DBG}
        v_mov_b32 v12, s46
        global_store_dwordx4 v12, v[8:11], s[32:33]
        v_lshrrev_b32 v12, 2, v12
        v_add_u32 v12, {WS_DBG + 0x10000 - WS_DBG//4}, v12
        global_store_dword v12, v13, s[32:33]
        """)
    def fin():
        if FUSE: A("s_waitcnt vmcnt(0)\ns_barrier")
        stamp_out()
        A(f"s_endpgm")
    epi(True)
    fin()
    A.label(Ly)
    epi(False)
    fin()
    A.label(Lload)
    A(f"""
    s_sub_u32 s42, s40, 4
    v_lshrrev_b32 v1, 5, v0
    v_lshlrev_b32 v1, 3, v1
    v_bfe_u32 v2, v0, 3, 2
    v_add_u32 v1, v1, v2
    s_lshl_b32 s43, s42, 5
    v_add_u32 v1, s43, v1
    v_lshlrev_b32 v1, 12, v1
    v_and_b32 v2, 7, v0
    v_lshrrev_b32 v3, 4, v0
    v_xor_b32 v2, v2, v3
    v_lshlrev_b32 v2, 4, v2
    v_xor_b32 v3, 64, v2
    v_add_u32 v4, v1, v2
    v_add_u32 v5, v1, v3
    v_add_u32 v5, {16*4096 - 1024}, v5
    v_add_u32 v6, {4*4096 - 2048}, v4
    v_add_u32 v7, {4*4096 - 2048}, v5
    s_lshl_b32 s43, s42, 2
    s_cmp_eq_u32 s42, 3
    s_cselect_b32 s43, 11, s43
    s_lshl_b32 s43, s43, 10
    v_lshlrev_b32 v8, 4, v0
    v_add_u32 v8, s43, v8
    s_lshl_b32 s44, s42, 12
    s_add_u32 s45, s43, 16384
    s_mov_b32 s46, 0
    """)
    if ROT == "none":
        A("s_mov_b32 s50, 0")
    elif ROT == "xcd":
        A("s_lshl_b32 s50, s34, 2")
    elif ROT == "mi":
        A("s_lshl_b32 s50, s36, 1\ns_add_u32 s50, s50, s38")
    elif ROT == "h2":
        A("s_and_b32 s50, s37, 1\ns_lshl_b32 s50, s50, 4")
    elif ROT == "h4":
        A("s_and_b32 s50, s37, 3\ns_lshl_b32 s50, s50, 3")
    elif ROT == "h8":
        A("s_and_b32 s50, s37, 3\ns_lshl_b32 s50, s50, 3\ns_lshl_b32 s51, s37, 2\ns_cmp_eq_u32 s38, 0\ns_cselect_b32 s50, s51, s50")
    elif ROT == "wg":
        A("s_mul_i32 s50, s2, 5\ns_and_b32 s50, s50, 31")
    A(f"""
    s_lshl_b32 s47, s50, 7
    s_mul_i32 s48, s50, 14336
    s_cmp_ge_u32 s42, 2
    """)
    Lcls = A.newlabel("k2ldB")
    A(f"s_cbranch_scc1 {Lcls}")
    def issue(nb):
        A(f"""
        s_add_u32 m0, s46, s44
        s_nop 0
        """)
        if "A" not in SKIP: A(f"""
        buffer_load_dwordx4 v4, s[8:11], s47 offen {AMOD} lds
        buffer_load_dwordx4 v5, s[8:11], s47 offen offset:1024 {AMOD} lds
        buffer_load_dwordx4 v6, s[8:11], s47 offen offset:2048 {AMOD} lds
        buffer_load_dwordx4 v7, s[8:11], s47 offen offset:3072 {AMOD} lds
        """)
        A(f"""
        s_add_u32 m0, s46, s45
        s_add_u32 s47, s47, 128
        """)
        for p in range(nb):
            if "B" not in SKIP: A(f"buffer_load_dwordx4 v8, s[12:15], s48 offen offset:{1024*p} {BMOD} lds")
        A(f"""
        s_add_u32 s48, s48, 14336
        s_cmp_eq_u32 s47, 4096
        s_cselect_b32 s47, 0, s47
        s_cselect_b32 s48, 0, s48
        s_add_u32 s46, s46, {STAGE}
        s_cmp_eq_u32 s46, {STAGE*NSLOT}
        s_cselect_b32 s46, 0, s46
        """)
    def loader(nb):
        n = (0 if 'A' in SKIP else 4) + (0 if 'B' in SKIP else nb)
        A("s_mov_b32 s49, 5")
        L0 = A.newlabel("k2pro")
        A.label(L0)
        issue(nb)
        A(f"""
        s_sub_u32 s49, s49, 1
        s_cmp_lg_u32 s49, 0
        s_cbranch_scc1 {L0}
        """)
        if FUSE: K23.setup(A)
        A(f"""
        s_waitcnt vmcnt({4*n})
        s_barrier
        s_mov_b32 s49, 27
        """)
        L1 = A.newlabel("k2ldloop")
        A.label(L1)
        A(f"s_waitcnt vmcnt({3*n})")
        A("s_barrier")
        issue(nb)
        A(f"""
        s_sub_u32 s49, s49, 1
        s_cmp_lg_u32 s49, 0
        s_cbranch_scc1 {L1}
        """)
        ex = 0
        if WPF:
            ex = 1
            A(f"""
            s_lshl_b32 s50, s35, 2
            s_add_u32 s50, s50, s42
            s_mul_i32 s50, s50, {49*128}
            s_add_u32 s16, s32, {WS_WOT}
            s_addc_u32 s17, s33, 0
            s_mov_b32 s18, {WOT_BYTES}
            s_mov_b32 s19, 0x20000
            v_min_u32 v9, 48, v0
            v_lshlrev_b32 v9, 7, v9
            buffer_load_dword v10, v9, s[16:19], s50 offen
            """)
        if FUSE:
            Lnt = A.newlabel("k2nt")
            A(f"s_cmp_ge_u32 s53, 7\ns_cbranch_scc1 {Lnt}")
            wl = K23.wot_loads()
            for i, w in enumerate((3, 2, 1, 0)):
                A(f"s_waitcnt vmcnt({w*n + 7*i})")
                A("s_barrier")
                for x in wl[7*i:7*i+7]: A(x)
            A(f"s_branch {L3}")
            A.label(Lnt)
        for w in (3, 2, 1, 0):
            A(f"s_waitcnt vmcnt({w*n + ex})")
            A("s_barrier")
        if FUSE:
            A("s_barrier\ns_barrier")
            K23.flag_store(A)
        A("s_endpgm")
    if FUSE:
        import k23 as K23
    L3 = A.newlabel("k2p3")
    loader(4)
    A.label(Lcls)
    loader(3)
    if FUSE:
        A.label(L3)
        A("s_barrier\ns_barrier")
        K23.flag_store(A)
        K23.body(A)
    A.label(Lend)
    A("s_endpgm")
    return kernel_desc(name, 256, 102, 256)
```

```python
from asmlib import *
from k2 import WS_H, WS_Y, WS_WOT, WS_G, ZH_BYTES, WOT_BYTES, WS_DBG, STAMP, WS_FL, FLSTRIDE
import os
HMOD = os.environ.get("K3_HMOD", "sc1")
SLP = int(os.environ.get("K3_SLP", "2"))
OMOD = os.environ.get("K3_OMOD", "")

WFB, HFB, ACC = 16, 128, 192
def wf(uu, n): return v(WFB + 16*uu + 4*n, 4)
def hf(uu, mm): return v((HFB + 16*uu if uu < 4 else WFB + 16*(uu - 4)) + 4*mm, 4)
def acc(mm, n): return ACC + 16*mm + 4*n
YR = WFB + 48
G = 12

def setup(A):
    A(f"""
    s_load_dwordx2 s[92:93], s[0:1], 88
    s_lshl_b32 s57, s38, 3
    s_add_u32 s57, s57, s37
    s_mul_i32 s96, s36, {FLSTRIDE}
    s_add_u32 s97, s96, s57
    s_cmp_ge_u32 s57, 7
    s_cselect_b32 s58, 1, 0
    s_cselect_b32 s59, 7, 0
    s_lshl_b32 s52, s36, 1
    s_add_u32 s52, s52, s58
    s_sub_u32 s53, s57, s59
    s_mul_i32 s55, s42, 7168
    s_lshl_b32 s56, s52, 2
    v_lshlrev_b32 v2, 4, v0
    v_add_u32 v3, 0x1000, v2
    """)
    for mm in range(4):
        A(f"""
        s_add_u32 s58, s42, {mm}
        s_and_b32 s58, s58, 3
        s_add_u32 s58, s58, s56
        s_mul_i32 s58, s58, 28672
        s_add_u32 s{60+mm}, s58, s55
        """)
    A(f"""
    s_mul_i32 s58, s53, {4*28672}
    s_add_u32 s64, s58, s55
    s_add_u32 s65, s64, 28672
    s_add_u32 s66, s65, 28672
    s_add_u32 s67, s66, 28672
    s_add_u32 s68, s32, {WS_H}
    s_addc_u32 s69, s33, 0
    s_mov_b32 s70, {ZH_BYTES}
    s_mov_b32 s71, 0x20000
    s_add_u32 s72, s32, {WS_WOT}
    s_addc_u32 s73, s33, 0
    s_mov_b32 s74, {WOT_BYTES}
    s_mov_b32 s75, 0x20000
    s_add_u32 s76, s32, {WS_Y}
    s_addc_u32 s77, s33, 0
    s_mov_b32 s78, {ZH_BYTES}
    s_mov_b32 s79, 0x20000
    s_add_u32 s80, s32, {WS_G}
    s_addc_u32 s81, s33, 0
    s_mov_b32 s82, 8192
    s_mov_b32 s83, 0x20000
    s_waitcnt lgkmcnt(0)
    s_mov_b32 s84, s92
    s_mov_b32 s85, s93
    s_mov_b32 s86, {2048*896}
    s_mov_b32 s87, 0x20000
    s_add_u32 s88, s32, {WS_FL}
    s_addc_u32 s89, s33, 0
    s_movk_i32 s90, {16*FLSTRIDE}
    s_mov_b32 s91, 0x20000
    """)

def wot_loads():
    r = []
    for uu in range(7):
        vo = 2 if uu < 4 else 3
        for k in range(4):
            r.append(f"buffer_load_dwordx4 {wf(uu,k)}, v{vo}, s[72:75], s{64+k} offen offset:{1024*(uu&3)}")
    return r

def flag_store(A):
    L = A.newlabel("k3fs")
    A(f"""
    s_cmp_lg_u32 s42, 0
    s_cbranch_scc1 {L}
    v_mov_b32 v10, 1
    v_mov_b32 v11, s97
    s_mov_b64 exec, 1
    buffer_store_byte v10, v11, s[88:91], 0 offen sc1
    s_mov_b64 exec, -1
    """)
    A.label(L)

def body(A):
    Lp = A.newlabel("k3poll"); Lok = A.newlabel("k3ok")
    A(f"""
    s_add_u32 s58, s56, s42
    s_mul_i32 s98, s58, 28672
    s_lshl_b32 s59, s53, 11
    s_add_u32 s98, s98, s59
    s_add_u32 s99, s98, {14*1024}
    s_lshr_b32 s59, s58, 1
    s_lshl_b32 s59, s59, 5
    s_and_b32 s58, s58, 1
    s_lshl_b32 s58, s58, 2
    s_add_u32 s59, s59, s58
    v_bfe_u32 v4, v0, 2, 2
    v_lshlrev_b32 v4, 3, v4
    v_and_b32 v5, 3, v0
    v_add3_u32 v4, v4, v5, s59
    v_lshlrev_b32 v5, 2, v4
    buffer_load_dword v{G}, v5, s[80:83], 0 offen
    v_mul_u32_u24 v4, 896, v4
    v_lshrrev_b32 v5, 4, v0
    v_lshl_add_u32 v4, v5, 4, v4
    s_lshl_b32 s59, s53, 7
    v_add_u32 v4, s59, v4
    """)
    for mm in range(1, 4):
        A(f"""
        s_add_u32 s58, s42, {mm}
        s_and_b32 s58, s58, 3
        s_mul_i32 s58, s58, 12288
        s_add_u32 s58, s58, {4096*(mm-1)}
        v_add_u32 v{5+mm}, s58, v2
        """)
    A(f"""
    s_mul_i32 s58, s42, 12288
    v_add_u32 v9, s58, v2
    s_cmp_lg_u32 s42, 0
    s_cbranch_scc1 {Lok}
    s_mov_b32 s57, 20000
    v_mov_b32 v10, 0
    """)
    A.label(Lp)
    A(f"""
    buffer_load_dwordx4 {v(ACC,4)}, v10, s[88:91], s96 offen sc1
    s_waitcnt vmcnt(0)
    v_and_b32 v{ACC}, v{ACC}, v{ACC+1}
    v_and_b32 v{ACC+2}, v{ACC+2}, v{ACC+3}
    v_and_b32 v{ACC}, v{ACC}, v{ACC+2}
    s_nop 0
    v_readfirstlane_b32 s58, v{ACC}
    s_cmp_eq_u32 s58, 0x01010101
    s_cbranch_scc1 {Lok}
    s_sleep {SLP}
    s_sub_u32 s57, s57, 1
    s_cmp_lg_u32 s57, 0
    s_cbranch_scc1 {Lp}
    """)
    A.label(Lok)
    A("s_barrier")
    if STAMP: A("s_memrealtime s[46:47]")
    issued = []
    def hload(uu):
        vo = 2 if uu < 4 else 3
        for k in range(4):
            A(f"buffer_load_dwordx4 {hf(uu,k)}, v{vo}, s[68:71], s{60+k} offen offset:{1024*(uu&3)} {HMOD}")
            issued.append(uu)
    for uu in range(4): hload(uu)
    for uu in range(7):
        last = max(i for i, t in enumerate(issued) if t == uu)
        A(f"s_waitcnt vmcnt({len(issued) - 1 - last})")
        if STAMP and uu == 0: A("s_memrealtime s[48:49]")
        order = [(mm, n) for mm in (1, 2, 3, 0) for n in range(4)]
        for mm, n in order:
            c = "0" if uu == 0 else v(acc(mm, n), 4)
            A(f"v_mfma_f32_16x16x32_bf16 {v(acc(mm,n),4)}, {wf(uu,n)}, {hf(uu,mm)}, {c}")
        if uu < 3: hload(uu + 4)
        if uu == 3:
            for k, so in enumerate((98, 98, 99, 99)):
                A(f"buffer_load_dwordx4 {v(YR+4*k,4)}, v2, s[76:79], s{so} offen offset:{1024*(k&1)} {HMOD}")
                issued.append("y")
    if STAMP: A("s_memrealtime s[50:51]")
    for mm in range(1, 4):
        for n in range(4):
            A(f"ds_write_b128 v{5+mm}, {v(acc(mm,n),4)} offset:{1024*n}")
    A(f"""
    s_waitcnt vmcnt(0)
    v_sub_f32 v{G+1}, 1.0, v{G}
    """)
    YF = 96
    for pp in range(2):
        for k in range(4):
            r, i_ = YR + 4*pp + k, YR + 8 + 4*pp + k
            o = YF + 8*pp + 2*k
            A(f"""
            v_lshlrev_b32 v{o}, 16, v{r}
            v_lshlrev_b32 v10, 16, v{i_}
            v_and_b32 v{o+1}, 0xffff0000, v{r}
            v_and_b32 v11, 0xffff0000, v{i_}
            v_sub_f32 v{o}, v{o}, v10
            v_sub_f32 v{o+1}, v{o+1}, v11
            v_mul_f32 v{o}, v{o}, v{G}
            v_mul_f32 v{o+1}, v{o+1}, v{G}
            """)
    A("s_waitcnt lgkmcnt(0)\ns_barrier")
    RX = 128
    for n in range(4):
        for sl in range(3):
            A(f"ds_read_b128 {v(RX + 12*n + 4*sl, 4)}, v9 offset:{4096*sl + 1024*n}")
    OUT = 80
    for n in range(4):
        A(f"s_waitcnt lgkmcnt({3*(3-n)})")
        for r in range(4):
            x = acc(0, n) + r
            A(f"v_add_f32 v{x}, v{x}, v{RX+12*n+r}")
            A(f"v_add_f32 v{RX+12*n+4+r}, v{RX+12*n+4+r}, v{RX+12*n+8+r}")
        for r in range(4):
            x = acc(0, n) + r
            A(f"v_add_f32 v{x}, v{x}, v{RX+12*n+4+r}")
        for r in range(4):
            x = acc(0, n) + r
            A(f"v_fma_f32 v{x}, v{x}, v{G+1}, v{YF + 4*n + r}")
        A(f"v_cvt_pk_bf16_f32 v{OUT+2*n}, v{acc(0,n)}, v{acc(0,n)+1}")
        A(f"v_cvt_pk_bf16_f32 v{OUT+2*n+1}, v{acc(0,n)+2}, v{acc(0,n)+3}")
        if n & 1:
            A(f"buffer_store_dwordx4 {v(OUT + 4*(n>>1), 4)}, v4, s[84:87], 0 offen offset:{64*(n>>1)} {OMOD}")
    if STAMP:
        A(f"""
        s_waitcnt vmcnt(0)
        s_memrealtime s[44:45]
        s_waitcnt lgkmcnt(0)
        v_mov_b32 v8, s46
        v_mov_b32 v9, s48
        v_mov_b32 v10, s50
        v_mov_b32 v11, s44
        s_mul_i32 s58, s52, 7
        s_add_u32 s58, s58, s53
        s_lshl_b32 s58, s58, 2
        s_add_u32 s58, s58, s42
        s_lshl_b32 s58, s58, 4
        s_add_u32 s58, s58, {WS_DBG + 0x200000}
        v_mov_b32 v12, s58
        global_store_dwordx4 v12, v[8:11], s[32:33]
        """)
    A("s_endpgm")
```

```python
import os, struct
from asmlib import *
from k2 import WS_BT, WS_Z1, WS_WOT, WS_G, WS_ST, BT_BYTES, ZH_BYTES, WOT_BYTES, WS_DBG, WS_FL, FLSTRIDE
import k2 as K2

K1_LDS = 163840
STAMP = os.environ.get("STAMP", "") == "1"
PUB_STEP = int(os.environ.get("K1_PUB", "10"))
PF = os.environ.get("K1_PF", "")
LMOD = os.environ.get("K1_LMOD", "")
PFN = int(os.environ.get("K1_PFN", "8"))
PFX = int(os.environ.get("K1_PFX", "1"))
PFMOD = os.environ.get("K1_PFMOD", "")
PROMO = os.environ.get("K1_PROMO", "") == "1"
SMOD = os.environ.get("K1_SMOD", "sc1")
PFS = int(os.environ.get("K1_PFS", "9"))
SM1 = os.environ.get("K1_SM1", SMOD)
SMA = os.environ.get("K1_SMA", SMOD)
SM2 = os.environ.get("K1_SM2", SMOD)
BARS = [int(x) for x in os.environ.get("K1_BARS", "0,1,2,3,4,5,6,7,9,12,15").split(",")]
WSCH = [int(x) for x in os.environ.get("K1_WSCH", "5,5,5,6,6,6,6,7,7,7,7,8,8,8").split(",")]
CLS = int(os.environ.get("K1_CLS", "3"))
FLS = int(os.environ.get("K1_FLS", "8"))
FCS = int(os.environ.get("K1_FCS", "12"))
DS = int(os.environ.get("K1_DS", "18"))
PFB = int(os.environ.get("K1_PFB", "0"))
PFG = int(os.environ.get("K1_PFG", "1"))
CPF = os.environ.get("K1_CPF", "1") == "1"
KROT = os.environ.get("K1_KROT", "1") == "1"
STB = [int(x) for x in os.environ.get("K1_STB", "0,7,10").split(",")]
PF0N = int(os.environ.get("K1_PF0N", "8"))
PFSP = int(os.environ.get("K1_PFSP", "32"))
HSM = os.environ.get("K1_HSM", "sc1")
FILLMOD = os.environ.get("K1_FILLMOD", "nt")
PF1N = int(os.environ.get("K1_PF1N", "8"))

def f32(x): return "0x%08x" % struct.unpack("<I", struct.pack("<f", x))[0]
C0 = -2.0 * 0.7978845608028654 * 1.4426950408889634
C1 = C0 * 0.044715
LOG2E = 1.4426950408889634

def slot(ci): return (ci + 14) % 20

def gen_k1(A, name="k1_kernel"):
    kernel_header(A, name)
    Lend = A.newlabel("k1end")
    Lhelp = A.newlabel("k1help")
    SX, SW, SD, SBT, SZ1, SST, SDB = 24, 28, 32, 36, 40, 44, 48
    CPF_CODE = f"s_cbranch_scc1 {Lhelp}" if not CPF else f"""
    s_cbranch_scc0 L_k1gemm
    s_getpc_b64 s[60:61]
    L_cpf:
    s_sub_u32 s60, s60, L_cpf-k1_kernel
    s_subb_u32 s61, s61, 0
    s_lshl_b32 s55, s54, 13
    v_lshlrev_b32 v1, 7, v0
    v_add_u32 v1, s55, v1
    v_min_u32 v1, L_code_end-k1_kernel-4, v1
    global_load_dword v120, v1, s[60:61]
    s_branch {Lhelp}
    L_k1gemm:
    """
    A(f"""
    s_cmp_ge_u32 s2, 256
    s_cbranch_scc1 {Lend}
    """)
    if STAMP: A("s_memrealtime s[80:81]")
    A(f"""
    s_load_dwordx2 s[4:5], s[0:1], 0
    s_load_dwordx4 s[8:11], s[0:1], 24
    s_load_dwordx2 s[12:13], s[0:1], 48
    s_load_dwordx4 s[16:19], s[0:1], 72
    s_load_dwordx4 s[20:23], s[0:1], 96
    s_and_b32 s52, s2, 7
    s_lshr_b32 s53, s2, 3
    v_lshrrev_b32 v1, 6, v0
    v_and_b32 v0, 63, v0
    v_readfirstlane_b32 s54, v1
    s_cmp_ge_u32 s53, 28
    {CPF_CODE}
    s_mul_i32 s55, s53, 37
    s_lshr_b32 s55, s55, 8
    s_mul_i32 s56, s55, 7
    s_sub_u32 s56, s53, s56
    s_lshr_b32 s57, s52, 1
    s_lshl_b32 s57, s57, 2
    s_add_u32 s57, s57, s55
    s_and_b32 s59, s52, 1
    s_mul_i32 s58, s59, 7
    s_add_u32 s58, s58, s56
    """)
    VST, VSL = 2, 3
    VXA = [4, 5, 6, 7]
    VT2, VT1, VX0, VX1, VW, VD, VBT, VZ1 = 8, 9, 10, 11, 12, 13, 14, 15
    XF = 16
    WF = [128, 144]
    ACC2, ACC1, ACCA = 160, 176, 192
    T = 208
    VC1 = 255
    A(f"""
    v_lshrrev_b32 v{T}, 3, v0
    v_lshrrev_b32 v{T+1}, 2, v{T}
    v_lshlrev_b32 v{T+1}, 3, v{T+1}
    v_and_b32 v{T+2}, 3, v{T}
    v_add_u32 v{T+1}, v{T+1}, v{T+2}
    v_and_b32 v{T+2}, 7, v0
    v_lshrrev_b32 v{T+3}, 1, v{T}
    v_xor_b32 v{T+4}, v{T+2}, v{T+3}
    v_lshlrev_b32 v{T+4}, 4, v{T+4}
    s_lshr_b32 s60, s54, 1
    s_and_b32 s61, s54, 1
    s_lshl_b32 s62, s60, 5
    s_lshl_b32 s63, s61, 2
    s_add_u32 s62, s62, s63
    v_add_u32 v{T+5}, s62, v{T+1}
    v_mul_u32_u24 v{T+5}, 896, v{T+5}
    v_add_u32 v{VX0}, v{T+5}, v{T+4}
    v_xor_b32 v{T+6}, 64, v{T+4}
    v_add_u32 v{VX1}, v{T+5}, v{T+6}
    v_add_u32 v{VX1}, {16*896 - 1024}, v{VX1}
    s_lshl_b32 s62, s54, 3
    v_add_u32 v{T+5}, s62, v{T}
    v_mul_u32_u24 v{T+5}, 3584, v{T+5}
    v_and_b32 v{T+6}, 1, v{T+3}
    v_lshlrev_b32 v{T+6}, 2, v{T+6}
    v_xor_b32 v{T+6}, v{T+2}, v{T+6}
    v_lshl_add_u32 v{VW}, v{T+6}, 4, v{T+5}
    s_waitcnt lgkmcnt(0)
    s_mul_i32 s62, s57, {128*896}
    s_add_u32 s{SX}, s4, s62
    s_addc_u32 s{SX+1}, s5, 0
    s_mov_b32 s{SX+2}, {128*896}
    s_mov_b32 s{SX+3}, 0x20000
    s_mov_b32 s{SW}, s12
    s_mov_b32 s{SW+1}, s13
    s_mov_b32 s{SW+2}, {448*3584}
    s_mov_b32 s{SW+3}, 0x20000
    s_lshl_b32 s64, s54, 11
    s_lshl_b32 s65, s54, 10
    s_lshl_b32 s66, s58, 7
    s_add_u32 s67, s66, 1792
    s_mov_b32 s68, 0
    s_add_u32 s69, s65, {14*8192}
    s_mov_b32 s70, 6
    """)
    issued = []
    def wrap(r, lim, n):
        if not KROT: return []
        return [f"s_cmp_ge_u32 s{r}, s{lim}", f"s_cselect_b32 s99, s{lim}, 0", f"s_sub_u32 s{r}, s{r}, s99"]
    def xdma(kc):
        issued.extend([("x", kc), ("x", kc)])
        return ["s_mov_b32 m0, s64", "s_add_u32 s64, s64, 16384",
                f"buffer_load_dwordx4 v{VX0}, s[{SX}:{SX+3}], s94 offen {LMOD} lds",
                f"buffer_load_dwordx4 v{VX1}, s[{SX}:{SX+3}], s94 offen offset:1024 {LMOD} lds",
                "s_add_u32 s94, s94, 128"] + wrap(94, 96, 896)
    def dma(ci):
        issued.append(("w", ci))
        part, kc = divmod(ci, 7)
        r = [f"s_add_u32 m0, s65, {slot(ci)*8192}"]
        if part == 0:
            r += ["s_nop 0", f"buffer_load_dwordx4 v{VW}, s[{SW}:{SW+3}], s67 offen {LMOD} lds", f"s_add_u32 s67, s67, {64*3584}"] + wrap(67, 97, 448*3584)
        elif part == 1:
            r += ["s_nop 0", f"buffer_load_dwordx4 v{VW}, s[{SW}:{SW+3}], s66 offen {LMOD} lds", f"s_add_u32 s66, s66, {64*3584}"] + wrap(66, 97, 448*3584)
        else:
            r += ["s_nop 0", f"buffer_load_dwordx4 v{VD}, s[{SD}:{SD+3}], s68 offen {LMOD} lds", "s_add_u32 s68, s68, 128"] + wrap(68, 96, 896)
        return r
    if KROT:
        A(f"""
        s_lshl_b32 s62, s57, 1
        s_add_u32 s62, s62, s58
        s_mul_i32 s63, s62, 37
        s_lshr_b32 s63, s63, 8
        s_mul_i32 s63, s63, 7
        s_sub_u32 s62, s62, s63
        s_lshl_b32 s94, s62, 7
        s_mov_b32 s98, s94
        s_mul_i32 s62, s62, {64*3584}
        s_add_u32 s66, s66, s62
        s_add_u32 s67, s67, s62
        s_movk_i32 s96, 896
        s_mov_b32 s97, {448*3584}
        """)
    else:
        A("s_mov_b32 s94, 0")
    for x in xdma(0) + dma(0) + xdma(1): A(x)
    A(f"""
    s_lshr_b32 s62, s54, 2
    s_lshl_b32 s62, s62, 5
    s_lshl_b32 s63, s61, 4
    s_add_u32 s62, s62, s63
    s_and_b32 s63, s60, 1
    s_lshl_b32 s63, s63, 2
    s_add_u32 s62, s62, s63
    v_add_u32 v{T+5}, s62, v{T+1}
    v_mul_u32_u24 v{T+5}, 896, v{T+5}
    s_lshl_b32 s63, s61, 6
    v_xor_b32 v{T+6}, s63, v{T+4}
    v_add_u32 v{VD}, v{T+5}, v{T+6}
    s_cmp_eq_u32 s59, 0
    s_cselect_b32 s8, s8, s10
    s_cselect_b32 s9, s9, s11
    s_mul_i32 s62, s56, {64*896}
    s_add_u32 s{SD}, s8, s62
    s_addc_u32 s{SD+1}, s9, 0
    s_mov_b32 s{SD+2}, {64*896}
    s_mov_b32 s{SD+3}, 0x20000
    s_add_u32 s{SBT}, s22, {WS_BT}
    s_addc_u32 s{SBT+1}, s23, 0
    s_mov_b32 s{SBT+2}, {BT_BYTES}
    s_mov_b32 s{SBT+3}, 0x20000
    s_add_u32 s{SZ1}, s22, {WS_Z1}
    s_addc_u32 s{SZ1+1}, s23, 0
    s_mov_b32 s{SZ1+2}, {ZH_BYTES}
    s_mov_b32 s{SZ1+3}, 0x20000
    s_mul_i32 s62, s57, 28672
    s_add_u32 s62, s62, {WS_ST}
    s_add_u32 s{SST}, s22, s62
    s_addc_u32 s{SST+1}, s23, 0
    s_mov_b32 s{SST+2}, 28672
    s_mov_b32 s{SST+3}, 0x20000
    s_mov_b32 s{SDB}, s20
    s_mov_b32 s{SDB+1}, s21
    s_mov_b32 s{SDB+2}, 256
    s_mov_b32 s{SDB+3}, 0x20000
    s_mov_b32 s68, {"s98" if KROT else "0"}
    """)
    A(f"""
    v_and_b32 v{T}, 31, v0
    v_lshrrev_b32 v{T+1}, 5, v0
    v_bfe_u32 v{T+2}, v0, 1, 3
    v_xor_b32 v{T+2}, v{T+2}, v{T+1}
    v_lshlrev_b32 v{T+2}, 4, v{T+2}
    v_lshl_add_u32 v{T+2}, v{T}, 7, v{T+2}
    s_lshl_b32 s62, s60, 12
    v_add_u32 v{VXA[0]}, s62, v{T+2}
    v_xor_b32 v{VXA[1]}, 32, v{VXA[0]}
    v_xor_b32 v{VXA[2]}, 64, v{VXA[0]}
    v_xor_b32 v{VXA[3]}, 96, v{VXA[0]}
    v_bfe_u32 v{T+2}, v0, 2, 2
    v_lshl_add_u32 v{T+3}, v{T+1}, 3, v{T+2}
    v_lshlrev_b32 v{T+3}, 7, v{T+3}
    v_lshrrev_b32 v{T+2}, 1, v{T+2}
    v_xor_b32 v{T+2}, s61, v{T+2}
    v_lshl_add_u32 v{T+3}, v{T+2}, 6, v{T+3}
    v_bfe_u32 v{T+4}, v0, 4, 1
    v_and_b32 v{T+5}, 3, v0
    v_lshlrev_b32 v{T+6}, 5, v{T+4}
    v_lshl_add_u32 v{T+6}, v{T+5}, 3, v{T+6}
    v_add_u32 v{VT2}, v{T+3}, v{T+6}
    v_add_u32 v{VT2}, {14*8192}, v{VT2}
    v_lshrrev_b32 v{T+6}, 1, v{T+5}
    v_lshlrev_b32 v{T+6}, 5, v{T+6}
    v_lshl_add_u32 v{T+6}, v{T+4}, 4, v{T+6}
    v_and_b32 v{T+5}, 1, v{T+5}
    v_lshl_add_u32 v{T+6}, v{T+5}, 3, v{T+6}
    v_add_u32 v{VT1}, v{T+3}, v{T+6}
    """)
    def tile_off(dst, treg):
        return f"""
        s_mul_i32 s62, s{treg}, 37
        s_lshr_b32 s62, s62, 8
        s_mul_i32 s63, s62, 7
        s_sub_u32 s63, s{treg}, s63
        s_add_u32 s71, s63, 6
        s_cmp_ge_u32 s71, 7
        s_cselect_b32 s72, 7, 0
        s_sub_u32 s71, s71, s72
        s_bitcmp1_b32 s62, 0
        s_cselect_b32 s63, s71, s63
        s_mul_i32 s62, s62, {32*14336}
        s_lshl_b32 s63, s63, 10
        s_add_u32 s{dst}, s62, s63
        """
    A(f"""
    s_lshl_b32 s73, s58, 1
    s_add_u32 s73, s73, s61
    s_lshl_b32 s74, s73, 1
    """)
    A(tile_off(75, 74))
    A("s_add_u32 s74, s74, 1")
    A(tile_off(76, 74))
    A(f"""
    s_sub_u32 s76, s76, s75
    v_and_b32 v{T+5}, 15, v0
    v_lshl_add_u32 v{T+5}, v{T+1}, 4, v{T+5}
    v_lshlrev_b32 v{T+5}, 4, v{T+5}
    v_mul_lo_u32 v{T+6}, v{T+4}, s76
    v_add3_u32 v{VBT}, v{T+5}, v{T+6}, s75
    v_mul_u32_u24 v{T+6}, 28672, v{T+4}
    v_add_u32 v{VZ1}, v{T+5}, v{T+6}
    s_lshl_b32 s62, s57, 2
    s_add_u32 s62, s62, s60
    s_mul_i32 s75, s62, 7168
    s_add_u32 s76, s75, {8*32*14336}
    s_mul_i32 s77, s62, {2*28*1024}
    s_lshl_b32 s63, s73, 10
    s_add_u32 s77, s77, s63
    v_bfe_u32 v{T+5}, v0, 2, 2
    v_lshlrev_b32 v{T+5}, 6, v{T+5}
    v_lshl_add_u32 v{T+5}, v{T+1}, 5, v{T+5}
    v_lshl_add_u32 v{T+5}, v{T+4}, 4, v{T+5}
    s_lshl_b32 s62, s60, 8
    s_add_u32 s63, s63, s62
    v_add_u32 v{VST}, s63, v{T+5}
    v_lshrrev_b32 v{T+5}, 4, v0
    v_lshlrev_b32 v{T+5}, 10, v{T+5}
    v_and_b32 v{T+6}, 15, v0
    v_lshl_add_u32 v{T+5}, v{T+6}, 4, v{T+5}
    v_add_u32 v{VSL}, s62, v{T+5}
    v_mov_b32 v{VC1}, {f32(C1)}
    s_mov_b32 s78, 0x11111111
    s_mov_b32 s79, 0x11111111
    s_sub_u32 s73, s61, s60
    s_lshl_b32 s73, s73, 12
    """)

    PFX_LOAD = """
    s_load_dwordx4 s[4:7], s[0:1], 8
    s_load_dwordx2 s[8:9], s[0:1], 56
    """
    def pfx(lo0, n0, lo1, n1):
        mod = PFMOD
        def seg(n):
            if PFG == 1: return ""
            per = n // PFG
            lg = per.bit_length() - 1
            assert per == 1 << lg
            sh = (PFSP // PFG).bit_length() - 1
            return f"v_lshrrev_b32 v1, {lg}, v253\nv_and_b32 v253, {per-1}, v253\nv_lshl_add_u32 v253, v1, {sh}, v253"
        Lr1 = A.newlabel("k1pr1"); Lpe = A.newlabel("k1pe")
        A(f"""
        s_lshl_b32 s62, s53, 3
        s_add_u32 s62, s62, s54
        s_mov_b32 s10, 0x800000
        s_mov_b32 s11, 0x20000
        s_cmp_ge_u32 s52, {0 if K2.MAP2 else 4}
        s_cbranch_scc1 {Lr1}
        s_lshl_b32 s62, s62, 13
        s_lshl_b32 s63, s52, 21
        s_add_u32 s62, s62, s63
        v_and_b32 v253, 31, v0
        v_min_u32 v253, {n0 - 1}, v253
        {seg(n0)}
        v_lshrrev_b32 v1, 5, v0
        v_lshlrev_b32 v1, 12, v1
        v_lshl_add_u32 v1, v253, 7, v1
        buffer_load_dword v254, v1, s[8:11], s62 offen offset:{128*lo0} {mod}
        s_branch {Lpe}
        """)
        A.label(Lr1)
        A(f"""
        s_bitcmp1_b32 s52, 1
        s_cselect_b32 s4, s6, s4
        s_cselect_b32 s5, s7, s5
        s_cmp_ge_u32 s52, 4
        s_cselect_b32 s8, s4, s8
        s_cselect_b32 s9, s5, s9
        s_lshl_b32 s62, s62, 14
        s_and_b32 s63, s52, 1
        s_lshl_b32 s63, s63, 22
        s_add_u32 s62, s62, s63
        v_and_b32 v253, 15, v0
        v_min_u32 v253, {n1 - 1}, v253
        {seg(n1)}
        v_lshrrev_b32 v1, 4, v0
        v_lshlrev_b32 v1, 12, v1
        v_lshl_add_u32 v1, v253, 7, v1
        buffer_load_dword v254, v1, s[8:11], s62 offen offset:{128*lo1} {mod}
        """)
        A.label(Lpe)
        issued.append(("pf", 0))
    def reads(ci):
        part, kc = divmod(ci, 7)
        wf = WF[ci & 1]
        r = []
        for ks in range(4):
            if part == 0:
                r.append(f"ds_read_b128 {v(XF + 16*kc + 4*ks, 4)}, v{VXA[ks]} offset:{(kc & 3)*16384}")
            if part < 2:
                base = VT2 if part == 0 else VT1
                so = (ci * 8192 if ci < 6 else 0) if part == 0 else slot(ci) * 8192
                for hf in range(2):
                    r.append(f"ds_read_b64_tr_b16 {v(wf + 4*ks + 2*hf, 2)}, v{base} offset:{so + ks*2048 + hf*512}")
            else:
                r.append(f"ds_read_b128 {v(wf + 4*ks, 4)}, v{VXA[ks]} offset:{(slot(ci) - 8)*8192}")
        return r
    def mfmas(ci):
        part, kc = divmod(ci, 7)
        wf = WF[ci & 1]
        acc = (ACC2, ACC1, ACCA)[part]
        r = []
        for ks in range(4):
            xf = v(XF + 16*kc + 4*ks, 4); w = v(wf + 4*ks, 4)
            c = "0" if (kc == 0 and ks == 0) else v(acc, 16)
            a_, b_ = (w, xf) if part == 1 else (xf, w)
            r.append(f"v_mfma_f32_32x32x16_bf16 {v(acc,16)}, {a_}, {b_}, {c}")
        return r
    def gelu(acc, tmp):
        r = []
        for g in range(4):
            vs = [acc + 4*g + k for k in range(4)]
            ts = [tmp + (4*g + k) % 8 for k in range(4)]
            r += [f"v_mul_f32 v{t}, v{x}, v{x}" for x, t in zip(vs, ts)]
            r += [f"v_fmaak_f32 v{t}, v{VC1}, v{t}, {f32(C0)}" for t in ts]
            r += [f"v_mul_f32 v{t}, v{t}, v{x}" for x, t in zip(vs, ts)]
            r += [f"v_exp_f32 v{t}, v{t}" for t in ts]
            r += [f"v_add_f32 v{t}, 1.0, v{t}" for t in ts]
            r += [f"v_rcp_f32 v{t}, v{t}" for t in ts]
            r += [f"v_mul_f32 v{x}, v{x}, v{t}" for x, t in zip(vs, ts)]
        return r
    def reduce16(src, tmp):
        r = []
        d = "row_mask:0xf bank_mask:"
        for k in range(8):
            r.append(f"v_add_f32_dpp v{tmp+k}, v{src+k}, v{src+k} row_ror:8 {d}0x3")
        for k in range(8):
            r.append(f"v_add_f32_dpp v{tmp+k}, v{src+k+8}, v{src+k+8} row_ror:8 {d}0xc")
        for k in range(4):
            r.append(f"v_add_f32_dpp v{tmp+k}, v{tmp+k}, v{tmp+k} row_half_mirror {d}0x5")
        for k in range(4):
            r.append(f"v_add_f32_dpp v{tmp+k}, v{tmp+k+4}, v{tmp+k+4} row_half_mirror {d}0xa")
        for k in range(2):
            r.append(f"v_permlane16_swap_b32 v{tmp+k}, v{tmp+k+2}")
        for k in range(2):
            r.append(f"v_add_f32 v{tmp+k}, v{tmp+k}, v{tmp+k+2}")
        return r
    def quad(regs):
        r = []
        for qp in ("[1,0,3,2]", "[2,3,0,1]"):
            for x in regs:
                r.append(f"v_add_f32_dpp v{x}, v{x}, v{x} quad_perm:{qp} row_mask:0xf bank_mask:0xf")
        return r
    def pack_store(acc, order, out, vaddr, srd, so, smod):
        r = []
        for half in range(2):
            ga, gb = order[half]
            o = out + 4*half
            r += [f"v_cvt_pk_bf16_f32 v{o}, v{acc+4*ga}, v{acc+4*ga+1}",
                  f"v_cvt_pk_bf16_f32 v{o+1}, v{acc+4*ga+2}, v{acc+4*ga+3}",
                  f"v_cvt_pk_bf16_f32 v{o+2}, v{acc+4*gb}, v{acc+4*gb+1}",
                  f"v_cvt_pk_bf16_f32 v{o+3}, v{acc+4*gb+2}, v{acc+4*gb+3}",
                  f"buffer_store_dwordx4 {v(o,4)}, v{vaddr}, s[{srd}:{srd+3}], s{so} offen offset:{512*half} {smod}"]
        return r
    SQ = T + 8
    RS = T + 24
    RQ = T + 32
    PK = T + 40
    F2 = gelu(ACC2, T)
    F2 += [f"v_mul_f32 v{SQ+k}, v{ACC2+k}, v{ACC2+k}" for k in range(16)]
    ra, rb_ = reduce16(ACC2, RS), reduce16(SQ, RQ)
    for x, y in zip(ra, rb_): F2 += [x, y]
    F2 += quad([RS, RQ, RS+1, RQ+1])
    F2 += [f"v_mov_b32 v{PK}, v{RS}", f"v_mov_b32 v{PK+1}, v{RQ}", f"v_mov_b32 v{PK+2}, v{RS+1}", f"v_mov_b32 v{PK+3}, v{RQ+1}"]
    F2 += ["FLAGCHECK"]
    F2 += [f"s_mov_b64 exec, s[78:79]\nbuffer_store_dwordx4 {v(PK,4)}, v{VST}, s[{SST}:{SST+3}], 0 offen sc1\ns_mov_b64 exec, -1"]
    F1 = gelu(ACC1, T) + pack_store(ACC1, ((0, 1), (2, 3)), T + 8, VZ1, SZ1, 77, SM1)

    bars = sorted(set(BARS))
    assert DS > max(WSCH) and FLS < PUB_STEP
    def split(lst, n):
        k, m = divmod(len(lst), n)
        out, i = [], 0
        for g in range(n):
            e = i + k + (1 if g < m else 0)
            out.append(lst[i:e]); i = e
        return out
    def pending_after(tags):
        last = max(i for i, t in enumerate(issued) if t in tags)
        return len(issued) - 1 - last
    def emit(x):
        if x == "FLAGCHECK":
            A(f"s_waitcnt vmcnt({pending_after([('f', 0)])})")
            A.label(Lp)
            A(f"""
            v_readfirstlane_b32 s62, v{FG}
            s_cmp_eq_u32 s62, 0x0101
            s_cbranch_scc1 {Lok}
            s_sleep 8
            v_mov_b32 v{FG}, 0
            buffer_load_ushort v{FG}, v{FG}, s[{SDB}:{SDB+3}], s95 offen sc1
            s_sub_u32 s70, s70, 1
            s_cmp_lg_u32 s70, 0
            s_waitcnt vmcnt(0)
            s_cbranch_scc1 {Lp}
            """)
            A.label(Lok)
            return
        if "buffer_store" in x: issued.append(("st", 0))
        A(x)
    n2 = 4 * (PUB_STEP - 8) - 1
    f2g = [[]] + split(F2, n2)
    f1g = [[]] + split(F1, 27)
    Lnf = A.newlabel("k1nf")
    Lp = A.newlabel("k1poll")
    Lok = A.newlabel("k1ok")
    LD = T + 16
    for x in dma(1): A(x)
    FG = ACCA
    def stat_loads():
        for i in range(7):
            so = "0" if i == 0 else f"s{62+i}"
            A(f"buffer_load_dwordx4 {v(LD+4*i,4)}, v{VSL}, s[{SST}:{SST+3}], {so} offen sc1")
    for st in range(22):
        if st in bars:
            nxt = min([b for b in bars if b > st] + [21])
            need = [("w", c) for c in range(st, nxt)] + ([("x", st)] if st < 7 else [])
            assert all(t in issued for t in need), (st, need)
            A(f"s_waitcnt vmcnt({pending_after(need)})")
            A("s_barrier")
        if st == 4:
            for r in VXA: A(f"v_add_u32 v{r}, 0x10000, v{r}")
        if st == 6: A(f"v_add_u32 v{VT2}, {-14*8192 & 0xffffffff:#x}, v{VT2}")
        if st == 7:
            for r in VXA: A(f"v_add_u32 v{r}, s73, v{r}")
        if STAMP and st == STB[0]: A("s_memrealtime s[82:83]")
        if STAMP and st == STB[1]: A("s_memrealtime s[84:85]")
        if STAMP and st == STB[2]: A("s_memrealtime s[90:91]")
        if PFX and st == PFS - 1: A(PFX_LOAD)
        if PFX and st == PFS: pfx(0, PF0N, 0, PF1N)
        if st == DS:
            for i in range(1, 7): A(f"s_movk_i32 s{62+i}, {4096*i}")
            stat_loads()
            for i in range(7): issued.append(("s", i))
            if PFX and PFB:
                pfx(PF0N, min(2*PFB, 32 - PF0N), PF1N, PFB)
                A("s_movk_i32 s63, 4096")
        pre = []
        if st <= 4: pre = xdma(st + 2) + dma(st + 2)
        for c in range(7, 21):
            if WSCH[c - 7] == st:
                assert st >= ((c - 6) // 2 + 1 if c < 20 else 1) and (c == 20 or (c - 6) // 2 + 1 in bars)
                pre += dma(c)
        if st == FLS:
            pre += [f"s_lshl_b32 s95, s57, 1", "s_mov_b32 s70, 5000", f"v_mov_b32 v{FG}, 0",
                    f"buffer_load_ushort v{FG}, v{FG}, s[{SDB}:{SDB+3}], s95 offen sc1"]
            issued.append(("f", 0))
        rd = reads(st) if st <= 20 else []
        mf = mfmas(st - 1) if st >= 1 else []
        if not mf:
            for x in rd + pre: A(x)
        else:
            rdg = split(rd, 3) + [[]] if st > 6 else [rd, [], [], []]
            for g in range(4):
                A(mf[g])
                for x in rdg[g]: A(x)
                if g == (2 if st > 6 else 1):
                    for x in pre: A(x)
                gi = 4*(st - 8) + g
                if 0 <= gi < len(f2g):
                    for x in f2g[gi]: emit(x)
                gi = 4*(st - 15) + g
                if 0 <= gi < len(f1g):
                    for x in f1g[gi]: emit(x)
        if rd: A("s_waitcnt lgkmcnt(0)")
    if STAMP: A("s_memrealtime s[86:87]")
    A(f"""
    v_and_b32 v{T}, 15, v0
    v_bfe_u32 v{T+1}, v0, 4, 1
    v_lshlrev_b32 v{T}, 4, v{T}
    v_lshl_add_u32 v{T}, v{T+1}, 3, v{T}
    s_lshl_b32 s62, s54, 8
    s_add_u32 s62, s62, {15*8192}
    v_add_u32 v{T}, s62, v{T}
    v_lshrrev_b32 v{T+1}, 5, v0
    v_lshlrev_b32 v{T+1}, 5, v{T+1}
    v_add_u32 v{T+1}, s62, v{T+1}
    """)
    Lr = A.newlabel("k1re")
    Lgo = A.newlabel("k1go")
    A(f"s_waitcnt vmcnt({pending_after([('s', 6)])})")
    A.label(Lr)
    A(f"v_min_f32 v{T+2}, v{LD+1}, v{LD+3}")
    for i in range(1, 7):
        A(f"v_min3_f32 v{T+2}, v{T+2}, v{LD+4*i+1}, v{LD+4*i+3}")
    A(f"""
    v_cmp_gt_f32 vcc, 0, v{T+2}
    s_nop 1
    s_cmp_eq_u64 vcc, 0
    s_cbranch_scc1 {Lgo}
    s_sleep 4
    """)
    stat_loads()
    A(f"""
    s_sub_u32 s70, s70, 1
    s_cmp_gt_i32 s70, 0
    s_waitcnt vmcnt(0)
    s_cbranch_scc1 {Lr}
    """)
    A.label(Lgo)
    if STAMP: A("s_memrealtime s[92:93]")
    for i in range(1, 7):
        for k in range(4):
            A(f"v_add_f32 v{LD+k}, v{LD+k}, v{LD+4*i+k}")
    A(f"""
    v_permlane16_swap_b32 v{LD}, v{LD+2}
    v_permlane16_swap_b32 v{LD+1}, v{LD+3}
    v_add_f32 v{LD}, v{LD}, v{LD+2}
    v_add_f32 v{LD+1}, v{LD+1}, v{LD+3}
    v_mov_b32 v{LD+2}, v{LD}
    v_mov_b32 v{LD+3}, v{LD+1}
    v_permlane32_swap_b32 v{LD}, v{LD+2}
    v_permlane32_swap_b32 v{LD+1}, v{LD+3}
    v_add_f32 v{LD}, v{LD}, v{LD+2}
    v_add_f32 v{LD+1}, v{LD+1}, v{LD+3}
    v_mul_f32 v{LD}, {f32(1.0/896)}, v{LD}
    v_mul_f32 v{LD+1}, {f32(1.0/896)}, v{LD+1}
    v_fma_f32 v{LD+1}, -v{LD}, v{LD}, v{LD+1}
    v_max_f32 v{LD+1}, 0, v{LD+1}
    v_add_f32 v{LD+1}, {f32(1e-5)}, v{LD+1}
    v_rsq_f32 v{LD+2}, v{LD+1}
    s_nop 0
    v_mul_f32 v{LD+3}, v{LD}, v{LD+2}
    v_xor_b32 v{LD+3}, 0x80000000, v{LD+3}
    ds_write_b64 v{T}, {v(LD+2,2)}
    s_waitcnt lgkmcnt(0)
    """)
    NB = 48
    for g in range(4):
        for hh in range(2):
            A(f"ds_read_b128 {v(NB + 8*g + 4*hh, 4)}, v{T+1} offset:{64*g + 16*hh}")
    for x in pack_store(ACCA, ((0, 2), (1, 3)), T + 24, VBT, SBT, 76, SMA): A(x)
    for g in (0, 2, 1, 3):
        A(f"s_waitcnt lgkmcnt({2*(3-g) if g in (0,) else (2 if g == 2 else 0)})")
        for r in range(4):
            A(f"v_fma_f32 v{ACC2+4*g+r}, v{ACC2+4*g+r}, v{NB+8*g+2*r}, v{NB+8*g+2*r+1}")
    for x in pack_store(ACC2, ((0, 2), (1, 3)), T + 32, VBT, SBT, 75, SM2): A(x)
    if STAMP:
        A(f"""
        s_waitcnt vmcnt(0)
        s_memrealtime s[88:89]
        s_waitcnt lgkmcnt(0)
        v_mov_b32 v8, s80
        v_mov_b32 v9, s82
        v_mov_b32 v10, s84
        v_mov_b32 v11, s86
        v_mov_b32 v12, s88
        v_mov_b32 v13, s70
        v_mov_b32 v14, s90
        v_mov_b32 v15, s92
        s_lshl_b32 s62, s2, 3
        s_add_u32 s62, s62, s54
        s_lshl_b32 s62, s62, 5
        s_add_u32 s62, s62, {WS_DBG + 0x100000}
        v_mov_b32 v7, s62
        global_store_dwordx4 v7, v[8:11], s[22:23]
        global_store_dwordx4 v7, v[12:15], s[22:23] offset:16
        """)
    A("s_endpgm")

    A.label(Lhelp)
    Lgate = A.newlabel("k1gate")
    A(f"""
    s_lshl_b32 s55, s52, 2
    s_add_u32 s55, s55, s53
    s_sub_u32 s55, s55, 28
    s_waitcnt lgkmcnt(0)
    s_mov_b32 s24, s4
    s_mov_b32 s25, s5
    s_mov_b32 s26, {2048*896}
    s_mov_b32 s27, 0x20000
    s_mov_b32 s28, s18
    s_mov_b32 s29, s19
    s_mov_b32 s30, 896
    s_mov_b32 s31, 0x20000
    s_mov_b32 s32, s16
    s_mov_b32 s33, s17
    s_mov_b32 s34, {896*896}
    s_mov_b32 s35, 0x20000
    s_add_u32 s36, s22, {WS_WOT}
    s_addc_u32 s37, s23, 0
    s_mov_b32 s38, {WOT_BYTES}
    s_mov_b32 s39, 0x20000
    s_add_u32 s40, s22, {WS_G}
    s_addc_u32 s41, s23, 0
    s_mov_b32 s42, 8192
    s_mov_b32 s43, 0x20000
    v_lshrrev_b32 v1, 3, v0
    s_lshl_b32 s56, s55, 6
    s_lshl_b32 s57, s54, 3
    s_add_u32 s56, s56, s57
    v_add_u32 v1, s56, v1
    v_and_b32 v2, 7, v0
    v_lshlrev_b32 v2, 4, v2
    v_mul_u32_u24 v3, 896, v1
    v_add_u32 v3, v3, v2
    """)
    def helper_pf():
        A(f"""
        s_load_dwordx4 s[64:67], s[0:1], 8
        s_load_dwordx2 s[68:69], s[0:1], 56
        s_lshl_b32 s62, s55, 18
        s_lshl_b32 s63, s54, 7
        s_add_u32 s62, s62, s63
        v_lshlrev_b32 v7, 12, v0
        s_mov_b32 s46, 0x800000
        s_mov_b32 s47, 0x20000
        s_waitcnt lgkmcnt(0)
        """)
        Lpfe = A.newlabel("k1pfe")
        for i in range((PFN + 7) // 8):
            if PFN - 8*i < 8:
                A(f"s_cmp_ge_u32 s54, {PFN - 8*i}\ns_cbranch_scc1 {Lpfe}")
            for b in (68, 64, 66):
                A(f"""
                s_mov_b32 s44, s{b}
                s_mov_b32 s45, s{b+1}
                buffer_load_dword v100, v7, s[44:47], s62 offen offset:{1024*i}
                """)
        A.label(Lpfe)
    A(f"""
    s_mul_i32 s56, s55, 14336
    s_mul_i32 s57, s54, 1792
    s_add_u32 s56, s56, s57
    s_add_u32 s56, s56, {WS_ST}
    s_add_u32 s44, s22, s56
    s_addc_u32 s45, s23, 0
    s_movk_i32 s46, 1792
    s_mov_b32 s47, 0x20000
    v_lshlrev_b32 v4, 4, v0
    v_mov_b32 v8, -1.0
    v_mov_b32 v9, -1.0
    v_mov_b32 v10, -1.0
    v_mov_b32 v11, -1.0
    buffer_store_dwordx4 v[8:11], v4, s[44:47], 0 offen sc1
    s_mov_b32 exec_hi, 0xffff
    buffer_store_dwordx4 v[8:11], v4, s[44:47], 0 offen offset:1024 sc1
    s_mov_b32 exec_hi, -1
    """)
    for i in range(7):
        A(f"buffer_load_dwordx4 {v(16+4*i,4)}, v3, s[24:27], 0 offen offset:{128*i}")
        A(f"buffer_load_dwordx4 {v(48+4*i,4)}, v2, s[28:31], 0 offen offset:{128*i}")
    Lhf = A.newlabel("k1hf")
    A(f"""
    s_mov_b32 s48, s20
    s_mov_b32 s49, s21
    s_movk_i32 s50, 256
    s_mov_b32 s51, 0x20000
    v_mov_b32 v12, 1
    v_mov_b32 v13, s55
    s_waitcnt vmcnt(14)
    s_barrier
    s_cmp_lg_u32 s54, 0
    s_cbranch_scc1 {Lhf}
    s_mov_b64 exec, 1
    buffer_store_byte v12, v13, s[48:51], 0 offen sc1
    s_mov_b64 exec, -1
    """)
    A.label(Lhf)
    Lhz = A.newlabel("k1hz")
    A(f"""
    s_cmp_lg_u32 s55, 31
    s_cbranch_scc1 {Lhz}
    s_add_u32 s48, s22, {WS_FL}
    s_addc_u32 s49, s23, 0
    s_mov_b32 s50, {16*FLSTRIDE}
    v_mov_b32 v14, 0
    v_mov_b32 v15, 0
    """)
    if K2.FM:
        A("""
        s_lshl_b32 s56, s54, 12
        v_lshlrev_b32 v13, 4, v0
        v_mov_b32 v200, 0
        v_mov_b32 v201, 0
        v_mov_b32 v202, 0
        v_mov_b32 v203, 0
        """)
        for i in range(4): A(f"buffer_store_dwordx4 v[200:203], v13, s[48:51], s56 offen offset:{1024*i} {HSM}")
    else: A("""
    s_lshl_b32 s56, s54, 9
    v_lshlrev_b32 v13, 3, v0
    buffer_store_dwordx2 v[14:15], v13, s[48:51], s56 offen
    """)
    A.label(Lhz)
    A(f"""
    s_cmp_ge_u32 s55, 28
    s_cbranch_scc1 {Lgate}
    s_mul_i32 s58, s55, 28672
    s_lshl_b32 s59, s54, 10
    s_add_u32 s58, s58, s59
    v_lshlrev_b32 v4, 4, v0
    """)
    L3 = A.newlabel("k1h3")
    for p in range(4):
        if p == 3:
            A(f"s_cmp_ge_u32 s54, 4\ns_cbranch_scc1 {L3}")
        A(f"""
        s_add_u32 m0, s59, {8192*p}
        s_nop 0
        buffer_load_dwordx4 v4, s[32:35], s58 offen {LMOD} lds
        s_add_u32 s58, s58, 8192
        """)
    A.label(L3)
    A(f"""
    v_lshrrev_b32 v5, 2, v0
    v_mul_u32_u24 v5, 896, v5
    v_and_b32 v6, 3, v0
    v_lshl_add_u32 v5, v6, 4, v5
    s_lshr_b32 s60, s54, 1
    s_lshl_b32 s60, s60, 6
    s_and_b32 s61, s54, 1
    s_lshl_b32 s61, s61, 3
    s_add_u32 s60, s60, s61
    v_add_u32 v5, s60, v5
    s_mul_i32 s60, s54, 28
    s_add_u32 s60, s60, s55
    s_lshl_b32 s60, s60, 10
    s_waitcnt vmcnt(0)
    s_barrier
    """)
    for p in range(4):
        A(f"ds_read_b64_tr_b16 {v(80+4*p,2)}, v5 offset:{256*p}")
        A(f"ds_read_b64_tr_b16 {v(82+4*p,2)}, v5 offset:{256*p + 16*896}")
    for p in range(4):
        A(f"s_waitcnt lgkmcnt({2*(3-p)})")
        if p == 3:
            A(f"s_cmp_ge_u32 s54, 4\ns_cbranch_scc1 {Lgate}")
        A(f"buffer_store_dwordx4 {v(80+4*p,4)}, v4, s[36:39], s60 offen {HSM}")
        A(f"s_add_u32 s60, s60, {8*28*1024}")
    A.label(Lgate)
    A("s_waitcnt vmcnt(0)")
    A("v_mov_b32 v8, 0\nv_mov_b32 v9, 0")
    for i in range(28):
        A(f"v_dot2c_f32_bf16 v{8 + (i&1)}, v{16+i}, v{48+i}")
    A(f"""
    s_nop 2
    v_add_f32 v8, v8, v9
    s_nop 1
    v_add_f32_dpp v8, v8, v8 quad_perm:[1,0,3,2] row_mask:0xf bank_mask:0xf
    s_nop 1
    v_add_f32_dpp v8, v8, v8 quad_perm:[2,3,0,1] row_mask:0xf bank_mask:0xf
    s_nop 1
    v_add_f32_dpp v8, v8, v8 row_half_mirror row_mask:0xf bank_mask:0xf
    v_mul_f32 v8, {f32(-LOG2E)}, v8
    v_exp_f32 v8, v8
    s_nop 0
    v_add_f32 v8, 1.0, v8
    v_rcp_f32 v8, v8
    v_lshlrev_b32 v1, 2, v1
    buffer_store_dword v8, v1, s[40:43], 0 offen {HSM}
    """)
    if PF == "h1": helper_pf()
    if PFX:
        A(PFX_LOAD)
        A("s_waitcnt lgkmcnt(0)")
        pfx(0, PF0N, 0, PF1N)
        if PFB: pfx(PF0N, min(2*PFB, 32 - PF0N), PF1N, PFB)
    if K2.SV >= 2:
        A(f"""
        s_add_u32 s48, s22, {K2.WS_H}
        s_addc_u32 s49, s23, 0
        s_mov_b32 s50, {K2.WS_Y - K2.WS_H + ZH_BYTES}
        s_mov_b32 s51, 0x20000
        s_lshl_b32 s56, s55, 3
        s_add_u32 s56, s56, s54
        s_mul_i32 s56, s56, 14336
        v_lshlrev_b32 v13, 4, v0
        v_add_u32 v13, s56, v13
        v_mov_b32 v200, -1
        v_mov_b32 v201, -1
        v_mov_b32 v202, -1
        v_mov_b32 v203, -1
        """)
        for ar in range(K2.SV - 1):
            if ar: A(f"v_add_u32 v13, {K2.WS_Y - K2.WS_H - 0x3000}, v13")
            for i in range(14):
                A(f"buffer_store_dwordx4 v[200:203], v13, s[48:51], 0 offen offset:{1024*(i&3)} {FILLMOD}")
                if i & 3 == 3: A("v_add_u32 v13, 0x1000, v13")
    A.label(Lend)
    A("s_endpgm")
    return kernel_desc(name, 256, 102, 256)
```

```python
from asmlib import *

WS_BT = 0x0
WS_Z1 = 0x800000
WS_H  = 0xC00000
WS_Y  = 0x1000000
WS_WOT = 0x1400000
WS_G  = 0x1500000
WS_ST = 0x1600000
WS_FL = 0x1700000
import os
FM = int(os.environ.get("K2_FM", "1"))
FLSTRIDE = 2048 if FM else 256
BT_BYTES = 16 * 32 * 14336
ZH_BYTES = 128 * 28 * 1024
WOT_BYTES = 28 * 28 * 1024

STAGE = 30720
NSLOT = 5
K2_LDS = STAGE * NSLOT

import os
ROT = os.environ.get("K2_ROT", "lat")
SKIP = os.environ.get("K2_SKIP", "")
STAMP = os.environ.get("STAMP", "") == "1"
WS_DBG = 0x1800000
K2PF = int(os.environ.get("K2_PF", "0"))
K2PFMOD = os.environ.get("K2_PFMOD", "")
AMOD = os.environ.get("K2_AMOD", "")
BMOD = os.environ.get("K2_BMOD", "")
MAP1 = "" if os.environ.get("K2_MAP", "1") == "0" else """
    s_and_b32 s41, s34, 1
    s_lshl_b32 s41, s41, 3
    s_lshr_b32 s42, s35, 2
    s_add_u32 s41, s41, s42
    s_and_b32 s42, s34, 2
    s_lshl_b32 s42, s42, 1
    s_and_b32 s43, s35, 3
    s_add_u32 s42, s42, s43
    s_cmp_lg_u32 s38, 0
    s_cselect_b32 s36, s41, s36
    s_cselect_b32 s37, s42, s37
"""
MAP2 = os.environ.get("K2_MAP", "1") == "2"
if MAP2:
    MAP1 = MAP1.replace("s_cmp_lg_u32 s38, 0", "s_cmp_eq_u32 s38, s38")
SMOD2 = os.environ.get("K2_SMOD", "")
WPF = os.environ.get("K2_WPF", "1")
FUSE = os.environ.get("FUSE", "1") == "1"
if FUSE:
    SMOD2 = "sc1"; WPF = ""
K2PF0 = int(os.environ.get("K2_PF0", "8"))
SBL = int(os.environ.get("K2_SBL", "4"))
LG = int(os.environ.get("K2_G", "4"))
ZC = int(os.environ.get("K2_ZC", "3"))
WLE = int(os.environ.get("K2_WLE", "28"))
WFL = os.environ.get("K2_WF", "0") == "1"
SV = int(os.environ.get("K2_SV", "2"))
FC = int(os.environ.get("K2_FC", "12"))
def gen_k2(A, name="k2_kernel"):
    kernel_header(A, name)
    Lend = A.newlabel("k2end")
    Lload = A.newlabel("k2load")
    A(f"""
    s_cmp_ge_u32 s2, 256
    s_cbranch_scc1 {Lend}
    {"s_memrealtime s[54:55]" if STAMP else ""}
    s_load_dwordx4 s[4:7], s[0:1], 8
    s_load_dwordx4 s[28:31], s[0:1], 56
    s_load_dwordx2 s[32:33], s[0:1], 104
    s_and_b32 s34, s2, 7
    s_lshr_b32 s35, s2, 3
    s_and_b32 s36, s34, 3
    s_lshl_b32 s36, s36, 2
    s_lshr_b32 s37, s35, 3
    s_add_u32 s36, s36, s37
    s_and_b32 s37, s35, 7
    s_lshr_b32 s38, s34, 2
    {MAP1}
    s_lshl_b32 s39, s38, 3
    s_add_u32 s39, s39, s37
    v_lshrrev_b32 v1, 6, v0
    v_and_b32 v0, 63, v0
    s_nop 0
    v_readfirstlane_b32 s40, v1
    s_waitcnt lgkmcnt(0)
    s_cmp_lt_u32 s37, 4
    s_cselect_b32 s4, s4, s6
    s_cselect_b32 s5, s5, s7
    s_cmp_eq_u32 s38, 0
    s_cselect_b32 s4, s28, s4
    s_cselect_b32 s5, s29, s5
    s_lshl_b32 s41, s36, 19
    s_add_u32 s8, s4, s41
    s_addc_u32 s9, s5, 0
    s_mov_b32 s10, 0x80000
    s_mov_b32 s11, 0x20000
    s_mul_i32 s41, s39, {32*14336}
    s_add_u32 s12, s32, s41
    s_addc_u32 s13, s33, 0
    s_mov_b32 s14, {32*14336}
    s_mov_b32 s15, 0x20000
    s_cmp_ge_u32 s40, 4
    s_cbranch_scc1 {Lload}
    """)
    FA = [[8 + 16*st + 4*m for m in range(4)] for st in range(2)]
    FB = [[40 + 28*st + 4*n for n in range(7)] for st in range(2)]
    Z1 = 96
    BS = 124
    ACC = 144
    def acc(n, m): return ACC + 4*(n*4 + m)
    VAL, VAH, VB = 2, 3, 4
    WAL, WAH, WB = 5, 6, 7
    VLANE16 = 126
    VPF = 127
    if K2PF:
        A(f"""
        s_lshl_b32 s42, s37, 4
        s_lshl_b32 s43, s40, 2
        s_add_u32 s42, s42, s43
        s_and_b32 s44, s37, 3
        s_lshl_b32 s44, s44, 5
        s_lshl_b32 s43, s40, 3
        s_add_u32 s44, s44, s43
        s_cmp_lg_u32 s38, 0
        s_cselect_b32 s42, s44, s42
        s_cselect_b32 s43, 7, 3
        v_lshrrev_b32 v1, 1, v0
        v_and_b32 v1, s43, v1
        v_add_u32 v1, s42, v1
        v_lshlrev_b32 v1, 12, v1
        v_and_b32 v5, 1, v0
        v_lshl_add_u32 v{VPF}, v5, 7, v1
        s_movk_i32 s66, {128*K2PF0}
        """)
        for i in range((K2PF - K2PF0) // 2):
            A(f"buffer_load_dword v128, v{VPF}, s[8:11], s66 offen {K2PFMOD}")
            A("s_add_u32 s66, s66, 256")
    A(f"""
    s_lshr_b32 s42, s40, 1
    s_and_b32 s43, s40, 1
    v_and_b32 v1, 15, v0
    v_lshrrev_b32 v5, 4, v0
    s_lshl_b32 s44, s43, 2
    v_add_u32 v5, s44, v5
    v_lshrrev_b32 v6, 1, v1
    v_xor_b32 v5, v5, v6
    v_lshlrev_b32 v5, 4, v5
    v_lshl_add_u32 v5, v1, 7, v5
    s_lshl_b32 s44, s42, 13
    s_lshl_b32 s45, s43, 12
    s_add_u32 s46, s44, s45
    s_xor_b32 s47, s46, 0x1000
    v_add_u32 v{VAL}, s46, v5
    v_add_u32 v{VAH}, s47, v5
    s_mul_i32 s44, s43, 7168
    s_add_u32 s44, s44, 16384
    v_lshlrev_b32 v{VLANE16}, 4, v0
    v_add_u32 v{VB}, s44, v{VLANE16}
    """)
    A(f"""
    s_lshl_b32 s44, s36, 3
    s_lshl_b32 s45, s42, 2
    s_add_u32 s44, s44, s45
    s_lshl_b32 s45, s43, 1
    s_add_u32 s44, s44, s45
    s_mul_i32 s45, s37, 7
    s_add_u32 s45, s45, 1
    s_lshr_b32 s45, s45, 1
    s_mul_i32 s46, s44, 28
    s_add_u32 s46, s46, s45
    s_lshl_b32 s48, s46, 10
    s_add_u32 s49, s48, {28*1024}
    s_and_b32 s47, s37, 1
    s_movk_i32 s46, 3072
    s_cmp_eq_u32 s47, 0
    s_cselect_b32 s47, s46, -1016
    s_add_u32 s50, s48, s47
    s_add_u32 s51, s49, s47
    s_add_u32 s16, s32, {WS_Z1}
    s_addc_u32 s17, s33, 0
    s_mov_b32 s18, {ZH_BYTES}
    s_mov_b32 s19, 0x20000
    s_mov_b32 s46, {WS_H}
    s_cmp_eq_u32 s38, 0
    s_cselect_b32 s47, s46, {WS_Y}
    s_add_u32 s20, s32, s47
    s_addc_u32 s21, s33, 0
    s_mov_b32 s22, {ZH_BYTES}
    s_mov_b32 s23, 0x20000
    s_mov_b32 s24, s30
    s_mov_b32 s25, s31
    s_mov_b32 s26, 4096
    s_mov_b32 s27, 0x20000
    """)
    Lnoz = A.newlabel("k2noz")
    A(f"""
    v_lshrrev_b32 v5, 2, v1
    v_lshlrev_b32 v5, 3, v5
    v_and_b32 v6, 3, v1
    v_add_u32 v5, v5, v6
    s_lshl_b32 s47, s44, 4
    v_add_u32 v5, s47, v5
    v_lshlrev_b32 v129, 1, v5
    s_cmp_lg_u32 s38, 0
    s_cselect_b32 s67, 0, {ZC}
    """)
    def zloads():
        A(f"""
        buffer_load_ushort v{BS}, v129, s[24:27], 0 offen
        buffer_load_ushort v{BS+1}, v129, s[24:27], 0 offen offset:8
        """)
        for mm in range(2):
            so = 48 + mm
            for p in range(3):
                A(f"buffer_load_dwordx4 {v(Z1 + 14*mm + 4*p, 4)}, v{VLANE16}, s[16:19], s{so} offen offset:{1024*p}")
            A(f"buffer_load_dwordx2 {v(Z1 + 14*mm + 12, 2)}, v{VLANE16}, s[16:19], s{50+mm} offen")
    if ZC == 0:
        A(f"s_cbranch_scc1 {Lnoz}")
        zloads()
        A.label(Lnoz)
    if SV == 1:
        for r in range(132, 136): A(f"v_mov_b32 v{r}, -1")
    for r in range(112):
        A(f"v_mov_b32 v{ACC + r}, 0")
    A("s_mov_b32 s52, 0")
    def reads(st):
        r = []
        for m in range(4):
            base = WAL if m < 2 else WAH
            r.append(f"ds_read_b128 {v(FA[st][m],4)}, v{base} offset:{2048*(m&1)}")
        for n in range(7):
            r.append(f"ds_read_b128 {v(FB[st][n],4)}, v{WB} offset:{1024*n}")
        return [r[0], r[4], r[1], r[2], r[3]] + r[5:]
    def addr_update():
        return f"""
        v_add_u32 v{WAL}, s52, v{VAL}
        v_add_u32 v{WAH}, s52, v{VAH}
        v_add_u32 v{WB}, s52, v{VB}
        s_add_u32 s52, s52, {STAGE}
        s_cmp_eq_u32 s52, {STAGE*NSLOT}
        s_cselect_b32 s52, 0, s52
        """
    def mfmas(st):
        if "mfma" in SKIP: return ["s_nop 0"] * 28
        return [f"v_mfma_f32_16x16x32_bf16 {v(acc(n,m),4)}, {v(FB[st][n],4)}, {v(FA[st][m],4)}, {v(acc(n,m),4)}"
                for n in range(7) for m in range(4)]
    def iteration(st, with_reads=True):
        if with_reads:
            A("s_barrier")
            A(addr_update())
            for ins in interleave(mfmas(st), reads(st ^ 1), start=0, every=2):
                A(ins)
            A("s_waitcnt lgkmcnt(0)")
        else:
            for ins in mfmas(st):
                A(ins)
    A("s_barrier")
    if STAMP: A("s_memrealtime s[56:57]\ns_memtime s[62:63]")
    A(addr_update())
    for ins in reads(0):
        A(ins)
    A("s_waitcnt lgkmcnt(0)")
    A("s_mov_b32 s53, 15")
    Lloop = A.newlabel("k2loop")
    A.label(Lloop)
    iteration(0)
    if SV == 1:
        Lnf = A.newlabel("k2nf")
        A(f"s_cmp_lg_u32 s53, {FC}\ns_cbranch_scc1 {Lnf}")
        for mm in range(2):
            for p in range(3):
                A(f"buffer_store_dwordx4 v[132:135], v{VLANE16}, s[20:23], s{48+mm} offen offset:{1024*p} {SMOD2}")
            A(f"buffer_store_dwordx2 v[132:133], v{VLANE16}, s[20:23], s{50+mm} offen {SMOD2}")
        A.label(Lnf)
    if ZC:
        A(f"s_cmp_lg_u32 s53, s67\ns_cbranch_scc1 {Lnoz}")
        zloads()
        A.label(Lnoz)
    if K2PF:
        Lsk = A.newlabel("k2pfs")
        A(f"""
        s_cmp_ge_u32 s66, 4096
        s_cbranch_scc1 {Lsk}
        buffer_load_dword v128, v{VPF}, s[8:11], s66 offen {K2PFMOD}
        s_add_u32 s66, s66, 256
        """)
        A.label(Lsk)
    iteration(1)
    A(f"""
    s_sub_u32 s53, s53, 1
    s_cmp_lg_u32 s53, 0
    s_cbranch_scc1 {Lloop}
    """)
    iteration(0)
    iteration(1, with_reads=False)
    if STAMP: A("s_memrealtime s[58:59]\ns_memtime s[64:65]\ns_waitcnt lgkmcnt(0)\ns_sub_u32 s62, s64, s62")
    XB = 2 * STAGE
    A(f"""
    s_mul_i32 s47, s40, 14336
    s_add_u32 s47, s47, {XB}
    v_add_u32 v5, s47, v{VLANE16}
    s_xor_b32 s46, s40, 1
    s_mul_i32 s46, s46, 14336
    s_add_u32 s46, s46, {XB}
    v_add_u32 v6, s46, v{VLANE16}
    s_nop 4
    """)
    for n in range(7):
        for mm in range(2):
            A(f"ds_write_b128 v5, {v(acc(n, 2+mm),4)} offset:{(n*2+mm)*1024}")
    A("s_waitcnt lgkmcnt(0)")
    A("s_barrier")
    RX = 8
    for n in range(7):
        for mm in range(2):
            A(f"ds_read_b128 {v(RX + 4*(n*2+mm),4)}, v6 offset:{(n*2+mm)*1024}")
    Ly = A.newlabel("k2y")
    Lfin = A.newlabel("k2fin")
    A(f"""
    s_cmp_lg_u32 s38, 0
    s_waitcnt vmcnt(0)
    s_cbranch_scc1 {Ly}
    v_lshlrev_b32 v{BS}, 16, v{BS}
    v_lshlrev_b32 v{BS+1}, 16, v{BS+1}
    """)
    OUT = 64
    def epi(g2):
        cnt = 14
        for n in range(7):
            for mm in range(2):
                cnt -= 1
                A(f"s_waitcnt lgkmcnt({cnt})")
                rx = RX + 4*(n*2+mm)
                zr = Z1 + 14*mm + 2*n
                o = OUT + 14*mm + 2*n
                for r in range(4):
                    A(f"v_add_f32 v{rx+r}, v{rx+r}, v{acc(n,mm)+r}")
                if g2:
                    for r in range(4):
                        A(f"v_add_f32 v{rx+r}, v{rx+r}, v{BS+mm}")
                    A(f"""
                    v_lshlrev_b32 v92, 16, v{zr}
                    v_and_b32 v93, 0xffff0000, v{zr}
                    v_lshlrev_b32 v94, 16, v{zr+1}
                    v_and_b32 v95, 0xffff0000, v{zr+1}
                    v_mul_f32 v{rx}, v{rx}, v92
                    v_mul_f32 v{rx+1}, v{rx+1}, v93
                    v_mul_f32 v{rx+2}, v{rx+2}, v94
                    v_mul_f32 v{rx+3}, v{rx+3}, v95
                    """)
                A(f"v_cvt_pk_bf16_f32 v{o}, v{rx}, v{rx+1}")
                A(f"v_cvt_pk_bf16_f32 v{o+1}, v{rx+2}, v{rx+3}")
                if n % 2 == 1:
                    p = n // 2
                    A(f"buffer_store_dwordx4 {v(OUT + 14*mm + 4*p,4)}, v{VLANE16}, s[20:23], s{48+mm} offen offset:{1024*p} {SMOD2}")
                if n == 6:
                    A(f"buffer_store_dwordx2 {v(OUT + 14*mm + 12,2)}, v{VLANE16}, s[20:23], s{50+mm} offen {SMOD2}")
    def stamp_out():
        if not STAMP: return
        A(f"""
        s_waitcnt vmcnt(0)
        s_memrealtime s[60:61]
        s_waitcnt lgkmcnt(0)
        v_mov_b32 v8, s54
        v_mov_b32 v13, s62
        v_mov_b32 v9, s56
        v_mov_b32 v10, s58
        v_mov_b32 v11, s60
        s_lshl_b32 s46, s2, 2
        s_add_u32 s46, s46, s40
        s_lshl_b32 s46, s46, 4
        s_add_u32 s46, s46, {WS_DBG}
        v_mov_b32 v12, s46
        global_store_dwordx4 v12, v[8:11], s[32:33]
        v_lshrrev_b32 v12, 2, v12
        v_add_u32 v12, {WS_DBG + 0x10000 - WS_DBG//4}, v12
        global_store_dword v12, v13, s[32:33]
        """)
    def fin(g2):
        if FUSE and WLE < 28: A("s_barrier")
        if FUSE and WFL:
            A(f"""
            s_add_u32 s68, s32, {WS_FL}
            s_addc_u32 s69, s33, 0
            s_mov_b32 s70, {16*FLSTRIDE}
            s_mov_b32 s71, 0x20000
            s_mul_i32 s72, s36, {FLSTRIDE}
            s_lshl_b32 s73, s39, {7 if FM == 2 else 2}
            s_add_u32 s72, s72, s73
            s_add_u32 s72, s72, s40
            v_mov_b32 v10, 1
            v_lshlrev_b32 v11, 3, v{VLANE16}
            v_add_u32 v11, s72, v11
            s_mov_b64 exec, {0x3fff if FM == 1 else 1}
            s_waitcnt vmcnt(0)
            buffer_store_byte v10, v11, s[68:71], 0 offen sc1
            s_mov_b64 exec, -1
            """)
        elif FUSE and (SV in (1, 3) or (SV == 2 and g2)): A("s_barrier")
        elif FUSE: A("s_waitcnt vmcnt(0)\ns_barrier")
        stamp_out()
        A(f"s_endpgm")
    epi(True)
    fin(True)
    A.label(Ly)
    epi(False)
    fin(False)
    A.label(Lload)
    A(f"""
    s_sub_u32 s42, s40, 4
    v_lshrrev_b32 v1, 5, v0
    v_lshlrev_b32 v1, 3, v1
    v_bfe_u32 v2, v0, 3, 2
    v_add_u32 v1, v1, v2
    s_lshl_b32 s43, s42, 5
    v_add_u32 v1, s43, v1
    v_lshlrev_b32 v1, 12, v1
    v_and_b32 v2, 7, v0
    v_lshrrev_b32 v3, 4, v0
    v_xor_b32 v2, v2, v3
    v_lshlrev_b32 v2, 4, v2
    v_xor_b32 v3, 64, v2
    v_add_u32 v4, v1, v2
    v_add_u32 v5, v1, v3
    v_add_u32 v5, {16*4096 - 1024}, v5
    v_add_u32 v6, {4*4096 - 2048}, v4
    v_add_u32 v7, {4*4096 - 2048}, v5
    s_lshl_b32 s43, s42, 2
    s_cmp_eq_u32 s42, 3
    s_cselect_b32 s43, 11, s43
    s_lshl_b32 s43, s43, 10
    v_lshlrev_b32 v8, 4, v0
    v_add_u32 v8, s43, v8
    s_lshl_b32 s44, s42, 12
    s_add_u32 s45, s43, 16384
    s_mov_b32 s46, 0
    """)
    if ROT == "none":
        A("s_mov_b32 s50, 0")
    elif ROT == "xcd":
        A("s_lshl_b32 s50, s34, 2")
    elif ROT == "mi":
        A("s_lshl_b32 s50, s36, 1\ns_add_u32 s50, s50, s38")
    elif ROT == "h2":
        A("s_and_b32 s50, s37, 1\ns_lshl_b32 s50, s50, 4")
    elif ROT == "h4":
        A("s_and_b32 s50, s37, 3\ns_lshl_b32 s50, s50, 3")
    elif ROT == "h8":
        A("s_and_b32 s50, s37, 3\ns_lshl_b32 s50, s50, 3\ns_lshl_b32 s51, s37, 2\ns_cmp_eq_u32 s38, 0\ns_cselect_b32 s50, s51, s50")
    elif ROT == "wg":
        A("s_mul_i32 s50, s2, 5\ns_and_b32 s50, s50, 31")
    elif ROT == "lat":
        A("s_add_u32 s50, s36, s37")
        if LG == 8 and MAP2: A("s_add_u32 s50, s50, s37")
        elif LG == 8: A("s_cmp_eq_u32 s38, 0\ns_cselect_b32 s51, s36, s37\ns_add_u32 s50, s50, s51")
        A(f"""
        s_and_b32 s50, s50, {LG-1}
        s_mul_i32 s50, s50, {SBL//LG}
        s_mov_b32 s51, 0
        """)
    A(f"""
    s_lshl_b32 s47, s50, 7
    s_mul_i32 s48, s50, 14336
    s_cmp_ge_u32 s42, 2
    """)
    Lcls = A.newlabel("k2ldB")
    A(f"s_cbranch_scc1 {Lcls}")
    def issue(nb):
        A(f"""
        s_add_u32 m0, s46, s44
        s_nop 0
        """)
        if "A" not in SKIP: A(f"""
        buffer_load_dwordx4 v4, s[8:11], s47 offen {AMOD} lds
        buffer_load_dwordx4 v5, s[8:11], s47 offen offset:1024 {AMOD} lds
        buffer_load_dwordx4 v6, s[8:11], s47 offen offset:2048 {AMOD} lds
        buffer_load_dwordx4 v7, s[8:11], s47 offen offset:3072 {AMOD} lds
        """)
        A(f"""
        s_add_u32 m0, s46, s45
        s_add_u32 s47, s47, 128
        """)
        for p in range(nb):
            if "B" not in SKIP: A(f"buffer_load_dwordx4 v8, s[12:15], s48 offen offset:{1024*p} {BMOD} lds")
        if ROT == "lat": A(f"""
        s_add_u32 s51, s51, 1
        s_add_u32 s47, s51, s50
        s_and_b32 s47, s47, {SBL-1}
        s_andn2_b32 s48, s51, {SBL-1}
        s_or_b32 s47, s47, s48
        s_mul_i32 s48, s47, 14336
        s_lshl_b32 s47, s47, 7
        """)
        else: A(f"""
        s_add_u32 s48, s48, 14336
        s_cmp_eq_u32 s47, 4096
        s_cselect_b32 s47, 0, s47
        s_cselect_b32 s48, 0, s48
        """)
        A(f"""
        s_add_u32 s46, s46, {STAGE}
        s_cmp_eq_u32 s46, {STAGE*NSLOT}
        s_cselect_b32 s46, 0, s46
        """)
    def loader(nb):
        n = (0 if 'A' in SKIP else 4) + (0 if 'B' in SKIP else nb)
        A("s_mov_b32 s49, 5")
        L0 = A.newlabel("k2pro")
        A.label(L0)
        issue(nb)
        A(f"""
        s_sub_u32 s49, s49, 1
        s_cmp_lg_u32 s49, 0
        s_cbranch_scc1 {L0}
        """)
        if FUSE: K23.setup(A)
        A(f"""
        s_waitcnt vmcnt({4*n})
        s_barrier
        s_mov_b32 s49, 27
        """)
        L1 = A.newlabel("k2ldloop")
        A.label(L1)
        A(f"s_waitcnt vmcnt({3*n})")
        A("s_barrier")
        issue(nb)
        A(f"""
        s_sub_u32 s49, s49, 1
        s_cmp_lg_u32 s49, 0
        s_cbranch_scc1 {L1}
        """)
        ex = 0
        if WPF:
            ex = 1
            A(f"""
            s_lshl_b32 s50, s35, 2
            s_add_u32 s50, s50, s42
            s_mul_i32 s50, s50, {49*128}
            s_add_u32 s16, s32, {WS_WOT}
            s_addc_u32 s17, s33, 0
            s_mov_b32 s18, {WOT_BYTES}
            s_mov_b32 s19, 0x20000
            v_min_u32 v9, 48, v0
            v_lshlrev_b32 v9, 7, v9
            buffer_load_dword v10, v9, s[16:19], s50 offen
            """)
        if FUSE:
            Lnt = A.newlabel("k2nt")
            A(f"s_cmp_ge_u32 s53, 7\ns_cbranch_scc1 {Lnt}")
            wl = K23.wot_loads()
            done = 0
            for i, w in enumerate((3, 2, 1, 0)):
                A(f"s_waitcnt vmcnt({w*n + done})")
                A("s_barrier")
                k = min(7, WLE - done)
                for x in wl[done:done+k]: A(x)
                done += k
            A(f"s_branch {L3}")
            A.label(Lnt)
        for w in (3, 2, 1, 0):
            A(f"s_waitcnt vmcnt({w*n + ex})")
            A("s_barrier")
        if FUSE:
            if WLE < 28: A("s_barrier")
            A("s_barrier")
            if not WFL:
                A("s_barrier")
                K23.flag_store(A)
        A("s_endpgm")
    if FUSE:
        import k23 as K23
    L3 = A.newlabel("k2p3")
    loader(4)
    A.label(Lcls)
    loader(3)
    if FUSE:
        A.label(L3)
        A("s_barrier")
        if WLE < 28:
            A("s_barrier")
            for x in K23.wot_loads()[WLE:]: A(x)
        if not WFL:
            A("s_barrier")
            K23.flag_store(A)
        K23.body(A)
    A.label(Lend)
    A("s_endpgm")
    return kernel_desc(name, 256, 102, 256)
```

```python
from asmlib import *
from k2 import WS_H, WS_Y, WS_WOT, WS_G, ZH_BYTES, WOT_BYTES, WS_DBG, STAMP, WS_FL, FLSTRIDE, WFL, FM, SV
import os
HMOD = os.environ.get("K3_HMOD", "sc1")
YMOD = os.environ.get("K3_YMOD", "sc1")
SLP = int(os.environ.get("K3_SLP", "2"))
OMOD = os.environ.get("K3_OMOD", "sc1")

WFB, HFB, ACC = 16, 128, 192
def wf(uu, n): return v(WFB + 16*uu + 4*n, 4)
def hf(uu, mm): return v((HFB + 16*uu if uu < 4 else WFB + 16*(uu - 4)) + 4*mm, 4)
def acc(mm, n): return ACC + 16*mm + 4*n
YR = WFB + 48
G = 12

def setup(A):
    A(f"""
    s_load_dwordx2 s[92:93], s[0:1], 88
    s_lshl_b32 s57, s38, 3
    s_add_u32 s57, s57, s37
    s_mul_i32 s96, s36, {FLSTRIDE}
    s_lshl_b32 s58, s57, 7
    s_add_u32 s97, s96, {"s58" if FM == 2 else "s57"}
    {"s_add_u32 s96, s96, s58" if FM == 1 else ""}
    s_cmp_ge_u32 s57, 7
    s_cselect_b32 s58, 1, 0
    s_cselect_b32 s59, 7, 0
    s_lshl_b32 s52, s36, 1
    s_add_u32 s52, s52, s58
    s_sub_u32 s53, s57, s59
    s_mul_i32 s55, s42, 7168
    s_lshl_b32 s56, s52, 2
    v_lshlrev_b32 v2, 4, v0
    v_add_u32 v3, 0x1000, v2
    """)
    for mm in range(4):
        A(f"""
        s_add_u32 s58, s42, {mm}
        s_and_b32 s58, s58, 3
        s_add_u32 s58, s58, s56
        s_mul_i32 s58, s58, 28672
        s_add_u32 s{60+mm}, s58, s55
        """)
    A(f"""
    s_mul_i32 s58, s53, {4*28672}
    s_add_u32 s64, s58, s55
    s_add_u32 s65, s64, 28672
    s_add_u32 s66, s65, 28672
    s_add_u32 s67, s66, 28672
    s_add_u32 s68, s32, {WS_H}
    s_addc_u32 s69, s33, 0
    s_mov_b32 s70, {ZH_BYTES}
    s_mov_b32 s71, 0x20000
    s_add_u32 s72, s32, {WS_WOT}
    s_addc_u32 s73, s33, 0
    s_mov_b32 s74, {WOT_BYTES}
    s_mov_b32 s75, 0x20000
    s_add_u32 s76, s32, {WS_Y}
    s_addc_u32 s77, s33, 0
    s_mov_b32 s78, {ZH_BYTES}
    s_mov_b32 s79, 0x20000
    s_add_u32 s80, s32, {WS_G}
    s_addc_u32 s81, s33, 0
    s_mov_b32 s82, 8192
    s_mov_b32 s83, 0x20000
    s_waitcnt lgkmcnt(0)
    s_mov_b32 s84, s92
    s_mov_b32 s85, s93
    s_mov_b32 s86, {2048*896}
    s_mov_b32 s87, 0x20000
    s_add_u32 s88, s32, {WS_FL}
    s_addc_u32 s89, s33, 0
    s_mov_b32 s90, {16*FLSTRIDE}
    s_mov_b32 s91, 0x20000
    """)

def wot_loads():
    r = []
    for uu in range(7):
        vo = 2 if uu < 4 else 3
        for k in range(4):
            r.append(f"buffer_load_dwordx4 {wf(uu,k)}, v{vo}, s[72:75], s{64+k} offen offset:{1024*(uu&3)}")
    return r

def flag_store(A):
    L = A.newlabel("k3fs")
    A(f"""
    s_cmp_lg_u32 s42, 0
    s_cbranch_scc1 {L}
    v_mov_b32 v10, 1
    v_lshlrev_b32 v11, 7, v0
    v_add_u32 v11, s97, v11
    s_mov_b64 exec, {0x3fff if FM == 1 else 1}
    buffer_store_byte v10, v11, s[88:91], 0 offen sc1
    s_mov_b64 exec, -1
    """)
    A.label(L)

def body(A):
    Lp = A.newlabel("k3poll"); Lok = A.newlabel("k3ok")
    A(f"""
    s_add_u32 s58, s56, s42
    s_mul_i32 s98, s58, 28672
    s_lshl_b32 s59, s53, 11
    s_add_u32 s98, s98, s59
    s_add_u32 s99, s98, {14*1024}
    s_lshr_b32 s59, s58, 1
    s_lshl_b32 s59, s59, 5
    s_and_b32 s58, s58, 1
    s_lshl_b32 s58, s58, 2
    s_add_u32 s59, s59, s58
    v_bfe_u32 v4, v0, 2, 2
    v_lshlrev_b32 v4, 3, v4
    v_and_b32 v5, 3, v0
    v_add3_u32 v4, v4, v5, s59
    v_lshlrev_b32 v5, 2, v4
    buffer_load_dword v{G}, v5, s[80:83], 0 offen
    v_mul_u32_u24 v4, 896, v4
    v_lshrrev_b32 v5, 4, v0
    v_lshl_add_u32 v4, v5, 4, v4
    s_lshl_b32 s59, s53, 7
    v_add_u32 v4, s59, v4
    """)
    for mm in range(1, 4):
        A(f"""
        s_add_u32 s58, s42, {mm}
        s_and_b32 s58, s58, 3
        s_mul_i32 s58, s58, 12288
        s_add_u32 s58, s58, {4096*(mm-1)}
        v_add_u32 v{5+mm}, s58, v2
        """)
    A(f"""
    s_mul_i32 s58, s42, 12288
    v_add_u32 v9, s58, v2
    s_cmp_lg_u32 s42, 0
    s_cbranch_scc1 {Lok}
    s_mov_b32 s57, 20000
    v_mov_b32 v10, 0
    """)
    LANEP = WFL or FM == 2
    if LANEP: A(f"v_lshlrev_b32 v10, {7 if FM == 2 else 2}, v0\nv_mov_b32 v11, {0x01010101 if WFL else 1}\ns_mov_b64 exec, 0xffff")
    A.label(Lp)
    if LANEP: A(f"""
    buffer_load_dword v{ACC}, v10, s[88:91], s96 offen sc1
    s_waitcnt vmcnt(0)
    v_cmp_ne_u32 vcc, v{ACC}, v11
    s_nop 0
    s_cmp_eq_u64 vcc, 0
    """)
    else: A(f"""
    buffer_load_dwordx4 {v(ACC,4)}, v10, s[88:91], s96 offen sc1
    s_waitcnt vmcnt(0)
    v_and_b32 v{ACC}, v{ACC}, v{ACC+1}
    v_and_b32 v{ACC+2}, v{ACC+2}, v{ACC+3}
    v_and_b32 v{ACC}, v{ACC}, v{ACC+2}
    s_nop 0
    v_readfirstlane_b32 s58, v{ACC}
    s_cmp_eq_u32 s58, 0x01010101
    """)
    A(f"""
    s_cbranch_scc1 {Lok}
    s_sleep {SLP}
    s_sub_u32 s57, s57, 1
    s_cmp_lg_u32 s57, 0
    s_cbranch_scc1 {Lp}
    """)
    A.label(Lok)
    if LANEP: A("s_mov_b64 exec, -1")
    A("s_barrier")
    if STAMP: A("s_memrealtime s[46:47]")
    issued = []
    stubs = []
    def hl(uu):
        vo = 2 if uu < 4 else 3
        return [f"buffer_load_dwordx4 {hf(uu,k)}, v{vo}, s[68:71], s{60+k} offen offset:{1024*(uu&3)} {HMOD}" for k in range(4)]
    def yl():
        return [f"buffer_load_dwordx4 {v(YR+4*k,4)}, v2, s[76:79], s{so} offen offset:{1024*(k&1)} {YMOD}" for k, so in enumerate((98, 98, 99, 99))]
    def hload(uu):
        for x in hl(uu):
            A(x); issued.append(uu)
    def check(base, loads):
        if not SV: return
        Lc = A.newlabel("k3c"); Lr = A.newlabel("k3r"); Lg = A.newlabel("k3g")
        A.label(Lc)
        A(f"""
        v_max3_u32 v10, v{base}, v{base+2}, v{base+4}
        v_max3_u32 v11, v{base+6}, v{base+8}, v{base+10}
        v_max3_u32 v10, v10, v{base+12}, v{base+14}
        v_max_u32 v10, v10, v11
        v_cmp_eq_u32 vcc, -1, v10
        s_cbranch_vccnz {Lr}
        """)
        A.label(Lg)
        stubs.append((Lr, Lc, Lg, loads))
    if SV: A("s_movk_i32 s57, 400")
    for uu in range(4): hload(uu)
    for uu in range(7):
        last = max(i for i, t in enumerate(issued) if t == uu)
        A(f"s_waitcnt vmcnt({len(issued) - 1 - last})")
        if STAMP and uu == 0: A("s_memrealtime s[48:49]")
        check(HFB + 16*uu if uu < 4 else WFB + 16*(uu - 4), hl(uu))
        order = [(mm, n) for mm in (1, 2, 3, 0) for n in range(4)]
        for mm, n in order:
            c = "0" if uu == 0 else v(acc(mm, n), 4)
            A(f"v_mfma_f32_16x16x32_bf16 {v(acc(mm,n),4)}, {wf(uu,n)}, {hf(uu,mm)}, {c}")
        if uu < 3: hload(uu + 4)
        if uu == 3:
            for x in yl():
                A(x); issued.append("y")
    if STAMP: A("s_memrealtime s[50:51]")
    for mm in range(1, 4):
        for n in range(4):
            A(f"ds_write_b128 v{5+mm}, {v(acc(mm,n),4)} offset:{1024*n}")
    A(f"""
    s_waitcnt vmcnt(0)
    v_sub_f32 v{G+1}, 1.0, v{G}
    """)
    if SV in (1, 3): check(YR, yl())
    YF = 96
    for pp in range(2):
        for k in range(4):
            r, i_ = YR + 4*pp + k, YR + 8 + 4*pp + k
            o = YF + 8*pp + 2*k
            A(f"""
            v_lshlrev_b32 v{o}, 16, v{r}
            v_lshlrev_b32 v10, 16, v{i_}
            v_and_b32 v{o+1}, 0xffff0000, v{r}
            v_and_b32 v11, 0xffff0000, v{i_}
            v_sub_f32 v{o}, v{o}, v10
            v_sub_f32 v{o+1}, v{o+1}, v11
            v_mul_f32 v{o}, v{o}, v{G}
            v_mul_f32 v{o+1}, v{o+1}, v{G}
            """)
    A("s_waitcnt lgkmcnt(0)\ns_barrier")
    RX = 128
    for n in range(4):
        for sl in range(3):
            A(f"ds_read_b128 {v(RX + 12*n + 4*sl, 4)}, v9 offset:{4096*sl + 1024*n}")
    OUT = 80
    for n in range(4):
        A(f"s_waitcnt lgkmcnt({3*(3-n)})")
        for r in range(4):
            x = acc(0, n) + r
            A(f"v_add_f32 v{x}, v{x}, v{RX+12*n+r}")
            A(f"v_add_f32 v{RX+12*n+4+r}, v{RX+12*n+4+r}, v{RX+12*n+8+r}")
        for r in range(4):
            x = acc(0, n) + r
            A(f"v_add_f32 v{x}, v{x}, v{RX+12*n+4+r}")
        for r in range(4):
            x = acc(0, n) + r
            A(f"v_fma_f32 v{x}, v{x}, v{G+1}, v{YF + 4*n + r}")
        A(f"v_cvt_pk_bf16_f32 v{OUT+2*n}, v{acc(0,n)}, v{acc(0,n)+1}")
        A(f"v_cvt_pk_bf16_f32 v{OUT+2*n+1}, v{acc(0,n)+2}, v{acc(0,n)+3}")
        if n & 1:
            A(f"buffer_store_dwordx4 {v(OUT + 4*(n>>1), 4)}, v4, s[84:87], 0 offen offset:{64*(n>>1)} {OMOD}")
    if STAMP:
        A(f"""
        s_waitcnt vmcnt(0)
        s_memrealtime s[44:45]
        s_waitcnt lgkmcnt(0)
        v_mov_b32 v8, s46
        v_mov_b32 v9, s48
        v_mov_b32 v10, s50
        v_mov_b32 v11, s44
        s_mul_i32 s58, s52, 7
        s_add_u32 s58, s58, s53
        s_lshl_b32 s58, s58, 2
        s_add_u32 s58, s58, s42
        s_lshl_b32 s58, s58, 4
        s_add_u32 s58, s58, {WS_DBG + 0x200000}
        v_mov_b32 v12, s58
        global_store_dwordx4 v12, v[8:11], s[32:33]
        v_mov_b32 v8, s57
        v_add_u32 v12, 0x10000, v12
        global_store_dword v12, v8, s[32:33]
        """)
    A("s_endpgm")
    for Lr, Lc, Lg, loads in stubs:
        A.label(Lr)
        A(f"s_sub_u32 s57, s57, 1\ns_cmp_lt_i32 s57, 0\ns_cbranch_scc1 {Lg}")
        for x in loads: A(x if "sc1" in x else x + " sc1")
        A(f"s_waitcnt vmcnt(0)\ns_branch {Lc}")
```

```python
import os, struct
from asmlib import *
from k2 import WS_BT, WS_Z1, WS_WOT, WS_G, WS_ST, BT_BYTES, ZH_BYTES, WOT_BYTES, WS_DBG, WS_FL, FLSTRIDE
import k2 as K2

K1_LDS = 163840
STAMP = os.environ.get("STAMP", "") == "1"
PUB_STEP = int(os.environ.get("K1_PUB", "10"))
PF = os.environ.get("K1_PF", "")
LMOD = os.environ.get("K1_LMOD", "")
PFN = int(os.environ.get("K1_PFN", "8"))
PFX = int(os.environ.get("K1_PFX", "1"))
PFMOD = os.environ.get("K1_PFMOD", "")
PROMO = os.environ.get("K1_PROMO", "") == "1"
SMOD = os.environ.get("K1_SMOD", "sc1")
PFS = int(os.environ.get("K1_PFS", "9"))
SM1 = os.environ.get("K1_SM1", SMOD)
SMA = os.environ.get("K1_SMA", SMOD)
SM2 = os.environ.get("K1_SM2", SMOD)
BARS = [int(x) for x in os.environ.get("K1_BARS", "0,1,2,3,4,5,6,7,9,12,15").split(",")]
WSCH = [int(x) for x in os.environ.get("K1_WSCH", "5,5,5,6,6,6,6,7,7,7,7,8,8,8").split(",")]
CLS = int(os.environ.get("K1_CLS", "3"))
FLS = int(os.environ.get("K1_FLS", "8"))
FCS = int(os.environ.get("K1_FCS", "12"))
DS = int(os.environ.get("K1_DS", "18"))
PFB = int(os.environ.get("K1_PFB", "0"))
PFG = int(os.environ.get("K1_PFG", "1"))
CPF = os.environ.get("K1_CPF", "1") == "1"
KROT = os.environ.get("K1_KROT", "1") == "1"
STB = [int(x) for x in os.environ.get("K1_STB", "0,7,10").split(",")]
PF0N = int(os.environ.get("K1_PF0N", "8"))
PFSP = int(os.environ.get("K1_PFSP", "32"))
HSM = os.environ.get("K1_HSM", "sc1")
FILLMOD = "sc1" if K2.ONE else os.environ.get("K1_FILLMOD", "nt")
PF1N = int(os.environ.get("K1_PF1N", "8"))

def f32(x): return "0x%08x" % struct.unpack("<I", struct.pack("<f", x))[0]
C0 = -2.0 * 0.7978845608028654 * 1.4426950408889634
C1 = C0 * 0.044715
LOG2E = 1.4426950408889634

def slot(ci): return (ci + 14) % 20

def done_load(A):
    L = A.newlabel("k1dl")
    A(f"""
    s_cmp_lg_u32 s54, 4
    s_cbranch_scc1 {L}
    s_mov_b32 s48, s20
    s_mov_b32 s49, s21
    s_movk_i32 s50, 256
    s_mov_b32 s51, 0x20000
    v_min_u32 v21, 7, v0
    v_lshl_add_u32 v21, v21, 2, 32
    buffer_load_dword v20, v21, s[48:51], 0 offen sc1
    """)
    A.label(L)

def gen_k1(A, name="k1_kernel"):
    kernel_header(A, name)
    Lend = A.newlabel("k1end")
    Lhelp = A.newlabel("k1help")
    SX, SW, SD, SBT, SZ1, SST, SDB = 24, 28, 32, 36, 40, 44, 48
    CPF_CODE = f"s_cbranch_scc1 {Lhelp}" if not CPF else f"""
    s_cbranch_scc0 L_k1gemm
    s_getpc_b64 s[60:61]
    L_cpf:
    s_sub_u32 s60, s60, L_cpf-k1_kernel
    s_subb_u32 s61, s61, 0
    s_lshl_b32 s55, s54, 13
    v_lshlrev_b32 v1, 7, v0
    v_add_u32 v1, s55, v1
    v_min_u32 v1, L_code_end-k1_kernel-4, v1
    global_load_dword v120, v1, s[60:61]
    s_branch {Lhelp}
    L_k1gemm:
    """
    A(f"""
    s_cmp_ge_u32 s2, 256
    s_cbranch_scc1 {Lend}
    """)
    if STAMP: A("s_memrealtime s[80:81]")
    A(f"""
    s_load_dwordx2 s[4:5], s[0:1], 0
    s_load_dwordx4 s[8:11], s[0:1], 24
    s_load_dwordx2 s[12:13], s[0:1], 48
    s_load_dwordx4 s[16:19], s[0:1], 72
    s_load_dwordx4 s[20:23], s[0:1], 96
    s_and_b32 s52, s2, 7
    s_lshr_b32 s53, s2, 3
    v_lshrrev_b32 v1, 6, v0
    v_and_b32 v0, 63, v0
    v_readfirstlane_b32 s54, v1
    s_cmp_ge_u32 s53, 28
    {CPF_CODE}
    s_mul_i32 s55, s53, 37
    s_lshr_b32 s55, s55, 8
    s_mul_i32 s56, s55, 7
    s_sub_u32 s56, s53, s56
    s_lshr_b32 s57, s52, 1
    s_lshl_b32 s57, s57, 2
    s_add_u32 s57, s57, s55
    s_and_b32 s59, s52, 1
    s_mul_i32 s58, s59, 7
    s_add_u32 s58, s58, s56
    """)
    VST, VSL = 2, 3
    VXA = [4, 5, 6, 7]
    VT2, VT1, VX0, VX1, VW, VD, VBT, VZ1 = 8, 9, 10, 11, 12, 13, 14, 15
    XF = 16
    WF = [128, 144]
    ACC2, ACC1, ACCA = 160, 176, 192
    T = 208
    VC1 = 255
    A(f"""
    v_lshrrev_b32 v{T}, 3, v0
    v_lshrrev_b32 v{T+1}, 2, v{T}
    v_lshlrev_b32 v{T+1}, 3, v{T+1}
    v_and_b32 v{T+2}, 3, v{T}
    v_add_u32 v{T+1}, v{T+1}, v{T+2}
    v_and_b32 v{T+2}, 7, v0
    v_lshrrev_b32 v{T+3}, 1, v{T}
    v_xor_b32 v{T+4}, v{T+2}, v{T+3}
    v_lshlrev_b32 v{T+4}, 4, v{T+4}
    s_lshr_b32 s60, s54, 1
    s_and_b32 s61, s54, 1
    s_lshl_b32 s62, s60, 5
    s_lshl_b32 s63, s61, 2
    s_add_u32 s62, s62, s63
    v_add_u32 v{T+5}, s62, v{T+1}
    v_mul_u32_u24 v{T+5}, 896, v{T+5}
    v_add_u32 v{VX0}, v{T+5}, v{T+4}
    v_xor_b32 v{T+6}, 64, v{T+4}
    v_add_u32 v{VX1}, v{T+5}, v{T+6}
    v_add_u32 v{VX1}, {16*896 - 1024}, v{VX1}
    s_lshl_b32 s62, s54, 3
    v_add_u32 v{T+5}, s62, v{T}
    v_mul_u32_u24 v{T+5}, 3584, v{T+5}
    v_and_b32 v{T+6}, 1, v{T+3}
    v_lshlrev_b32 v{T+6}, 2, v{T+6}
    v_xor_b32 v{T+6}, v{T+2}, v{T+6}
    v_lshl_add_u32 v{VW}, v{T+6}, 4, v{T+5}
    s_waitcnt lgkmcnt(0)
    s_mul_i32 s62, s57, {128*896}
    s_add_u32 s{SX}, s4, s62
    s_addc_u32 s{SX+1}, s5, 0
    s_mov_b32 s{SX+2}, {128*896}
    s_mov_b32 s{SX+3}, 0x20000
    s_mov_b32 s{SW}, s12
    s_mov_b32 s{SW+1}, s13
    s_mov_b32 s{SW+2}, {448*3584}
    s_mov_b32 s{SW+3}, 0x20000
    s_lshl_b32 s64, s54, 11
    s_lshl_b32 s65, s54, 10
    s_lshl_b32 s66, s58, 7
    s_add_u32 s67, s66, 1792
    s_mov_b32 s68, 0
    s_add_u32 s69, s65, {14*8192}
    s_mov_b32 s70, 6
    """)
    issued = []
    def wrap(r, lim, n):
        if not KROT: return []
        return [f"s_cmp_ge_u32 s{r}, s{lim}", f"s_cselect_b32 s99, s{lim}, 0", f"s_sub_u32 s{r}, s{r}, s99"]
    def xdma(kc):
        issued.extend([("x", kc), ("x", kc)])
        return ["s_mov_b32 m0, s64", "s_add_u32 s64, s64, 16384",
                f"buffer_load_dwordx4 v{VX0}, s[{SX}:{SX+3}], s94 offen {LMOD} lds",
                f"buffer_load_dwordx4 v{VX1}, s[{SX}:{SX+3}], s94 offen offset:1024 {LMOD} lds",
                "s_add_u32 s94, s94, 128"] + wrap(94, 96, 896)
    def dma(ci):
        issued.append(("w", ci))
        part, kc = divmod(ci, 7)
        r = [f"s_add_u32 m0, s65, {slot(ci)*8192}"]
        if part == 0:
            r += ["s_nop 0", f"buffer_load_dwordx4 v{VW}, s[{SW}:{SW+3}], s67 offen {LMOD} lds", f"s_add_u32 s67, s67, {64*3584}"] + wrap(67, 97, 448*3584)
        elif part == 1:
            r += ["s_nop 0", f"buffer_load_dwordx4 v{VW}, s[{SW}:{SW+3}], s66 offen {LMOD} lds", f"s_add_u32 s66, s66, {64*3584}"] + wrap(66, 97, 448*3584)
        else:
            r += ["s_nop 0", f"buffer_load_dwordx4 v{VD}, s[{SD}:{SD+3}], s68 offen {LMOD} lds", "s_add_u32 s68, s68, 128"] + wrap(68, 96, 896)
        return r
    if KROT:
        A(f"""
        s_lshl_b32 s62, s57, 1
        s_add_u32 s62, s62, s58
        s_mul_i32 s63, s62, 37
        s_lshr_b32 s63, s63, 8
        s_mul_i32 s63, s63, 7
        s_sub_u32 s62, s62, s63
        s_lshl_b32 s94, s62, 7
        s_mov_b32 s98, s94
        s_mul_i32 s62, s62, {64*3584}
        s_add_u32 s66, s66, s62
        s_add_u32 s67, s67, s62
        s_movk_i32 s96, 896
        s_mov_b32 s97, {448*3584}
        """)
    else:
        A("s_mov_b32 s94, 0")
    for x in xdma(0) + dma(0) + xdma(1): A(x)
    A(f"""
    s_lshr_b32 s62, s54, 2
    s_lshl_b32 s62, s62, 5
    s_lshl_b32 s63, s61, 4
    s_add_u32 s62, s62, s63
    s_and_b32 s63, s60, 1
    s_lshl_b32 s63, s63, 2
    s_add_u32 s62, s62, s63
    v_add_u32 v{T+5}, s62, v{T+1}
    v_mul_u32_u24 v{T+5}, 896, v{T+5}
    s_lshl_b32 s63, s61, 6
    v_xor_b32 v{T+6}, s63, v{T+4}
    v_add_u32 v{VD}, v{T+5}, v{T+6}
    s_cmp_eq_u32 s59, 0
    s_cselect_b32 s8, s8, s10
    s_cselect_b32 s9, s9, s11
    s_mul_i32 s62, s56, {64*896}
    s_add_u32 s{SD}, s8, s62
    s_addc_u32 s{SD+1}, s9, 0
    s_mov_b32 s{SD+2}, {64*896}
    s_mov_b32 s{SD+3}, 0x20000
    s_add_u32 s{SBT}, s22, {WS_BT}
    s_addc_u32 s{SBT+1}, s23, 0
    s_mov_b32 s{SBT+2}, {BT_BYTES}
    s_mov_b32 s{SBT+3}, 0x20000
    s_add_u32 s{SZ1}, s22, {WS_Z1}
    s_addc_u32 s{SZ1+1}, s23, 0
    s_mov_b32 s{SZ1+2}, {ZH_BYTES}
    s_mov_b32 s{SZ1+3}, 0x20000
    s_mul_i32 s62, s57, 28672
    s_add_u32 s62, s62, {WS_ST}
    s_add_u32 s{SST}, s22, s62
    s_addc_u32 s{SST+1}, s23, 0
    s_mov_b32 s{SST+2}, 28672
    s_mov_b32 s{SST+3}, 0x20000
    s_mov_b32 s{SDB}, s20
    s_mov_b32 s{SDB+1}, s21
    s_mov_b32 s{SDB+2}, 256
    s_mov_b32 s{SDB+3}, 0x20000
    s_mov_b32 s68, {"s98" if KROT else "0"}
    """)
    A(f"""
    v_and_b32 v{T}, 31, v0
    v_lshrrev_b32 v{T+1}, 5, v0
    v_bfe_u32 v{T+2}, v0, 1, 3
    v_xor_b32 v{T+2}, v{T+2}, v{T+1}
    v_lshlrev_b32 v{T+2}, 4, v{T+2}
    v_lshl_add_u32 v{T+2}, v{T}, 7, v{T+2}
    s_lshl_b32 s62, s60, 12
    v_add_u32 v{VXA[0]}, s62, v{T+2}
    v_xor_b32 v{VXA[1]}, 32, v{VXA[0]}
    v_xor_b32 v{VXA[2]}, 64, v{VXA[0]}
    v_xor_b32 v{VXA[3]}, 96, v{VXA[0]}
    v_bfe_u32 v{T+2}, v0, 2, 2
    v_lshl_add_u32 v{T+3}, v{T+1}, 3, v{T+2}
    v_lshlrev_b32 v{T+3}, 7, v{T+3}
    v_lshrrev_b32 v{T+2}, 1, v{T+2}
    v_xor_b32 v{T+2}, s61, v{T+2}
    v_lshl_add_u32 v{T+3}, v{T+2}, 6, v{T+3}
    v_bfe_u32 v{T+4}, v0, 4, 1
    v_and_b32 v{T+5}, 3, v0
    v_lshlrev_b32 v{T+6}, 5, v{T+4}
    v_lshl_add_u32 v{T+6}, v{T+5}, 3, v{T+6}
    v_add_u32 v{VT2}, v{T+3}, v{T+6}
    v_add_u32 v{VT2}, {14*8192}, v{VT2}
    v_lshrrev_b32 v{T+6}, 1, v{T+5}
    v_lshlrev_b32 v{T+6}, 5, v{T+6}
    v_lshl_add_u32 v{T+6}, v{T+4}, 4, v{T+6}
    v_and_b32 v{T+5}, 1, v{T+5}
    v_lshl_add_u32 v{T+6}, v{T+5}, 3, v{T+6}
    v_add_u32 v{VT1}, v{T+3}, v{T+6}
    """)
    def tile_off(dst, treg):
        return f"""
        s_mul_i32 s62, s{treg}, 37
        s_lshr_b32 s62, s62, 8
        s_mul_i32 s63, s62, 7
        s_sub_u32 s63, s{treg}, s63
        s_add_u32 s71, s63, 6
        s_cmp_ge_u32 s71, 7
        s_cselect_b32 s72, 7, 0
        s_sub_u32 s71, s71, s72
        s_bitcmp1_b32 s62, 0
        s_cselect_b32 s63, s71, s63
        s_mul_i32 s62, s62, {32*14336}
        s_lshl_b32 s63, s63, 10
        s_add_u32 s{dst}, s62, s63
        """
    A(f"""
    s_lshl_b32 s73, s58, 1
    s_add_u32 s73, s73, s61
    s_lshl_b32 s74, s73, 1
    """)
    A(tile_off(75, 74))
    A("s_add_u32 s74, s74, 1")
    A(tile_off(76, 74))
    A(f"""
    s_sub_u32 s76, s76, s75
    v_and_b32 v{T+5}, 15, v0
    v_lshl_add_u32 v{T+5}, v{T+1}, 4, v{T+5}
    v_lshlrev_b32 v{T+5}, 4, v{T+5}
    v_mul_lo_u32 v{T+6}, v{T+4}, s76
    v_add3_u32 v{VBT}, v{T+5}, v{T+6}, s75
    v_mul_u32_u24 v{T+6}, 28672, v{T+4}
    v_add_u32 v{VZ1}, v{T+5}, v{T+6}
    s_lshl_b32 s62, s57, 2
    s_add_u32 s62, s62, s60
    s_mul_i32 s75, s62, 7168
    s_add_u32 s76, s75, {8*32*14336}
    s_mul_i32 s77, s62, {2*28*1024}
    s_lshl_b32 s63, s73, 10
    s_add_u32 s77, s77, s63
    v_bfe_u32 v{T+5}, v0, 2, 2
    v_lshlrev_b32 v{T+5}, 6, v{T+5}
    v_lshl_add_u32 v{T+5}, v{T+1}, 5, v{T+5}
    v_lshl_add_u32 v{T+5}, v{T+4}, 4, v{T+5}
    s_lshl_b32 s62, s60, 8
    s_add_u32 s63, s63, s62
    v_add_u32 v{VST}, s63, v{T+5}
    v_lshrrev_b32 v{T+5}, 4, v0
    v_lshlrev_b32 v{T+5}, 10, v{T+5}
    v_and_b32 v{T+6}, 15, v0
    v_lshl_add_u32 v{T+5}, v{T+6}, 4, v{T+5}
    v_add_u32 v{VSL}, s62, v{T+5}
    v_mov_b32 v{VC1}, {f32(C1)}
    s_mov_b32 s78, 0x11111111
    s_mov_b32 s79, 0x11111111
    s_sub_u32 s73, s61, s60
    s_lshl_b32 s73, s73, 12
    """)

    PFX_LOAD = """
    s_load_dwordx4 s[4:7], s[0:1], 8
    s_load_dwordx2 s[8:9], s[0:1], 56
    """
    def pfx(lo0, n0, lo1, n1):
        mod = PFMOD
        def seg(n):
            if PFG == 1: return ""
            per = n // PFG
            lg = per.bit_length() - 1
            assert per == 1 << lg
            sh = (PFSP // PFG).bit_length() - 1
            return f"v_lshrrev_b32 v1, {lg}, v253\nv_and_b32 v253, {per-1}, v253\nv_lshl_add_u32 v253, v1, {sh}, v253"
        Lr1 = A.newlabel("k1pr1"); Lpe = A.newlabel("k1pe")
        A(f"""
        s_lshl_b32 s62, s53, 3
        s_add_u32 s62, s62, s54
        s_mov_b32 s10, 0x800000
        s_mov_b32 s11, 0x20000
        s_cmp_ge_u32 s52, {0 if K2.MAP2 else 4}
        s_cbranch_scc1 {Lr1}
        s_lshl_b32 s62, s62, 13
        s_lshl_b32 s63, s52, 21
        s_add_u32 s62, s62, s63
        v_and_b32 v253, 31, v0
        v_min_u32 v253, {n0 - 1}, v253
        {seg(n0)}
        v_lshrrev_b32 v1, 5, v0
        v_lshlrev_b32 v1, 12, v1
        v_lshl_add_u32 v1, v253, 7, v1
        buffer_load_dword v254, v1, s[8:11], s62 offen offset:{128*lo0} {mod}
        s_branch {Lpe}
        """)
        A.label(Lr1)
        A(f"""
        s_bitcmp1_b32 s52, 1
        s_cselect_b32 s4, s6, s4
        s_cselect_b32 s5, s7, s5
        s_cmp_ge_u32 s52, 4
        s_cselect_b32 s8, s4, s8
        s_cselect_b32 s9, s5, s9
        s_lshl_b32 s62, s62, 14
        s_and_b32 s63, s52, 1
        s_lshl_b32 s63, s63, 22
        s_add_u32 s62, s62, s63
        v_and_b32 v253, 15, v0
        v_min_u32 v253, {n1 - 1}, v253
        {seg(n1)}
        v_lshrrev_b32 v1, 4, v0
        v_lshlrev_b32 v1, 12, v1
        v_lshl_add_u32 v1, v253, 7, v1
        buffer_load_dword v254, v1, s[8:11], s62 offen offset:{128*lo1} {mod}
        """)
        A.label(Lpe)
        issued.append(("pf", 0))
    def reads(ci):
        part, kc = divmod(ci, 7)
        wf = WF[ci & 1]
        r = []
        for ks in range(4):
            if part == 0:
                r.append(f"ds_read_b128 {v(XF + 16*kc + 4*ks, 4)}, v{VXA[ks]} offset:{(kc & 3)*16384}")
            if part < 2:
                base = VT2 if part == 0 else VT1
                so = (ci * 8192 if ci < 6 else 0) if part == 0 else slot(ci) * 8192
                for hf in range(2):
                    r.append(f"ds_read_b64_tr_b16 {v(wf + 4*ks + 2*hf, 2)}, v{base} offset:{so + ks*2048 + hf*512}")
            else:
                r.append(f"ds_read_b128 {v(wf + 4*ks, 4)}, v{VXA[ks]} offset:{(slot(ci) - 8)*8192}")
        return r
    def mfmas(ci):
        part, kc = divmod(ci, 7)
        wf = WF[ci & 1]
        acc = (ACC2, ACC1, ACCA)[part]
        r = []
        for ks in range(4):
            xf = v(XF + 16*kc + 4*ks, 4); w = v(wf + 4*ks, 4)
            c = "0" if (kc == 0 and ks == 0) else v(acc, 16)
            a_, b_ = (w, xf) if part == 1 else (xf, w)
            r.append(f"v_mfma_f32_32x32x16_bf16 {v(acc,16)}, {a_}, {b_}, {c}")
        return r
    def gelu(acc, tmp):
        r = []
        for g in range(4):
            vs = [acc + 4*g + k for k in range(4)]
            ts = [tmp + (4*g + k) % 8 for k in range(4)]
            r += [f"v_mul_f32 v{t}, v{x}, v{x}" for x, t in zip(vs, ts)]
            r += [f"v_fmaak_f32 v{t}, v{VC1}, v{t}, {f32(C0)}" for t in ts]
            r += [f"v_mul_f32 v{t}, v{t}, v{x}" for x, t in zip(vs, ts)]
            r += [f"v_exp_f32 v{t}, v{t}" for t in ts]
            r += [f"v_add_f32 v{t}, 1.0, v{t}" for t in ts]
            r += [f"v_rcp_f32 v{t}, v{t}" for t in ts]
            r += [f"v_mul_f32 v{x}, v{x}, v{t}" for x, t in zip(vs, ts)]
        return r
    def reduce16(src, tmp):
        r = []
        d = "row_mask:0xf bank_mask:"
        for k in range(8):
            r.append(f"v_add_f32_dpp v{tmp+k}, v{src+k}, v{src+k} row_ror:8 {d}0x3")
        for k in range(8):
            r.append(f"v_add_f32_dpp v{tmp+k}, v{src+k+8}, v{src+k+8} row_ror:8 {d}0xc")
        for k in range(4):
            r.append(f"v_add_f32_dpp v{tmp+k}, v{tmp+k}, v{tmp+k} row_half_mirror {d}0x5")
        for k in range(4):
            r.append(f"v_add_f32_dpp v{tmp+k}, v{tmp+k+4}, v{tmp+k+4} row_half_mirror {d}0xa")
        for k in range(2):
            r.append(f"v_permlane16_swap_b32 v{tmp+k}, v{tmp+k+2}")
        for k in range(2):
            r.append(f"v_add_f32 v{tmp+k}, v{tmp+k}, v{tmp+k+2}")
        return r
    def quad(regs):
        r = []
        for qp in ("[1,0,3,2]", "[2,3,0,1]"):
            for x in regs:
                r.append(f"v_add_f32_dpp v{x}, v{x}, v{x} quad_perm:{qp} row_mask:0xf bank_mask:0xf")
        return r
    def pack_store(acc, order, out, vaddr, srd, so, smod):
        r = []
        for half in range(2):
            ga, gb = order[half]
            o = out + 4*half
            r += [f"v_cvt_pk_bf16_f32 v{o}, v{acc+4*ga}, v{acc+4*ga+1}",
                  f"v_cvt_pk_bf16_f32 v{o+1}, v{acc+4*ga+2}, v{acc+4*ga+3}",
                  f"v_cvt_pk_bf16_f32 v{o+2}, v{acc+4*gb}, v{acc+4*gb+1}",
                  f"v_cvt_pk_bf16_f32 v{o+3}, v{acc+4*gb+2}, v{acc+4*gb+3}",
                  f"buffer_store_dwordx4 {v(o,4)}, v{vaddr}, s[{srd}:{srd+3}], s{so} offen offset:{512*half} {smod}"]
        return r
    SQ = T + 8
    RS = T + 24
    RQ = T + 32
    PK = T + 40
    F2 = gelu(ACC2, T)
    F2 += [f"v_mul_f32 v{SQ+k}, v{ACC2+k}, v{ACC2+k}" for k in range(16)]
    ra, rb_ = reduce16(ACC2, RS), reduce16(SQ, RQ)
    for x, y in zip(ra, rb_): F2 += [x, y]
    F2 += quad([RS, RQ, RS+1, RQ+1])
    F2 += [f"v_mov_b32 v{PK}, v{RS}", f"v_mov_b32 v{PK+1}, v{RQ}", f"v_mov_b32 v{PK+2}, v{RS+1}", f"v_mov_b32 v{PK+3}, v{RQ+1}"]
    F2 += ["FLAGCHECK"]
    F2 += [f"s_mov_b64 exec, s[78:79]\nbuffer_store_dwordx4 {v(PK,4)}, v{VST}, s[{SST}:{SST+3}], 0 offen sc1\ns_mov_b64 exec, -1"]
    F1 = gelu(ACC1, T) + pack_store(ACC1, ((0, 1), (2, 3)), T + 8, VZ1, SZ1, 77, SM1)

    bars = sorted(set(BARS))
    assert DS > max(WSCH) and FLS < PUB_STEP
    def split(lst, n):
        k, m = divmod(len(lst), n)
        out, i = [], 0
        for g in range(n):
            e = i + k + (1 if g < m else 0)
            out.append(lst[i:e]); i = e
        return out
    def pending_after(tags):
        last = max(i for i, t in enumerate(issued) if t in tags)
        return len(issued) - 1 - last
    def emit(x):
        if x == "FLAGCHECK":
            A(f"s_waitcnt vmcnt({pending_after([('f', 0)])})")
            A.label(Lp)
            A(f"""
            v_readfirstlane_b32 s62, v{FG}
            s_cmp_eq_u32 s62, 0x0101
            s_cbranch_scc1 {Lok}
            s_sleep 8
            v_mov_b32 v{FG}, 0
            buffer_load_ushort v{FG}, v{FG}, s[{SDB}:{SDB+3}], s95 offen sc1
            s_sub_u32 s70, s70, 1
            s_cmp_lg_u32 s70, 0
            s_waitcnt vmcnt(0)
            s_cbranch_scc1 {Lp}
            """)
            A.label(Lok)
            return
        if "buffer_store" in x: issued.append(("st", 0))
        A(x)
    n2 = 4 * (PUB_STEP - 8) - 1
    f2g = [[]] + split(F2, n2)
    f1g = [[]] + split(F1, 27)
    Lnf = A.newlabel("k1nf")
    Lp = A.newlabel("k1poll")
    Lok = A.newlabel("k1ok")
    LD = T + 16
    for x in dma(1): A(x)
    FG = ACCA
    def stat_loads():
        for i in range(7):
            so = "0" if i == 0 else f"s{62+i}"
            A(f"buffer_load_dwordx4 {v(LD+4*i,4)}, v{VSL}, s[{SST}:{SST+3}], {so} offen sc1")
    for st in range(22):
        if st in bars:
            nxt = min([b for b in bars if b > st] + [21])
            need = [("w", c) for c in range(st, nxt)] + ([("x", st)] if st < 7 else [])
            assert all(t in issued for t in need), (st, need)
            A(f"s_waitcnt vmcnt({pending_after(need)})")
            A("s_barrier")
        if st == 4:
            for r in VXA: A(f"v_add_u32 v{r}, 0x10000, v{r}")
        if st == 6: A(f"v_add_u32 v{VT2}, {-14*8192 & 0xffffffff:#x}, v{VT2}")
        if st == 7:
            for r in VXA: A(f"v_add_u32 v{r}, s73, v{r}")
        if STAMP and st == STB[0]: A("s_memrealtime s[82:83]")
        if STAMP and st == STB[1]: A("s_memrealtime s[84:85]")
        if STAMP and st == STB[2]: A("s_memrealtime s[90:91]")
        if PFX and st == PFS - 1: A(PFX_LOAD)
        if PFX and st == PFS: pfx(0, PF0N, 0, PF1N)
        if st == DS:
            for i in range(1, 7): A(f"s_movk_i32 s{62+i}, {4096*i}")
            stat_loads()
            for i in range(7): issued.append(("s", i))
            if PFX and PFB:
                pfx(PF0N, min(2*PFB, 32 - PF0N), PF1N, PFB)
                A("s_movk_i32 s63, 4096")
        pre = []
        if st <= 4: pre = xdma(st + 2) + dma(st + 2)
        for c in range(7, 21):
            if WSCH[c - 7] == st:
                assert st >= ((c - 6) // 2 + 1 if c < 20 else 1) and (c == 20 or (c - 6) // 2 + 1 in bars)
                pre += dma(c)
        if st == FLS:
            pre += [f"s_lshl_b32 s95, s57, 1", "s_mov_b32 s70, 5000", f"v_mov_b32 v{FG}, 0",
                    f"buffer_load_ushort v{FG}, v{FG}, s[{SDB}:{SDB+3}], s95 offen sc1"]
            issued.append(("f", 0))
        rd = reads(st) if st <= 20 else []
        mf = mfmas(st - 1) if st >= 1 else []
        if not mf:
            for x in rd + pre: A(x)
        else:
            rdg = split(rd, 3) + [[]] if st > 6 else [rd, [], [], []]
            for g in range(4):
                A(mf[g])
                for x in rdg[g]: A(x)
                if g == (2 if st > 6 else 1):
                    for x in pre: A(x)
                gi = 4*(st - 8) + g
                if 0 <= gi < len(f2g):
                    for x in f2g[gi]: emit(x)
                gi = 4*(st - 15) + g
                if 0 <= gi < len(f1g):
                    for x in f1g[gi]: emit(x)
        if rd: A("s_waitcnt lgkmcnt(0)")
    if STAMP: A("s_memrealtime s[86:87]")
    A(f"""
    v_and_b32 v{T}, 15, v0
    v_bfe_u32 v{T+1}, v0, 4, 1
    v_lshlrev_b32 v{T}, 4, v{T}
    v_lshl_add_u32 v{T}, v{T+1}, 3, v{T}
    s_lshl_b32 s62, s54, 8
    s_add_u32 s62, s62, {15*8192}
    v_add_u32 v{T}, s62, v{T}
    v_lshrrev_b32 v{T+1}, 5, v0
    v_lshlrev_b32 v{T+1}, 5, v{T+1}
    v_add_u32 v{T+1}, s62, v{T+1}
    """)
    Lr = A.newlabel("k1re")
    Lgo = A.newlabel("k1go")
    A(f"s_waitcnt vmcnt({pending_after([('s', 6)])})")
    A.label(Lr)
    A(f"v_min_f32 v{T+2}, v{LD+1}, v{LD+3}")
    for i in range(1, 7):
        A(f"v_min3_f32 v{T+2}, v{T+2}, v{LD+4*i+1}, v{LD+4*i+3}")
    A(f"""
    v_cmp_gt_f32 vcc, 0, v{T+2}
    s_nop 1
    s_cmp_eq_u64 vcc, 0
    s_cbranch_scc1 {Lgo}
    s_sleep 4
    """)
    stat_loads()
    A(f"""
    s_sub_u32 s70, s70, 1
    s_cmp_gt_i32 s70, 0
    s_waitcnt vmcnt(0)
    s_cbranch_scc1 {Lr}
    """)
    A.label(Lgo)
    if STAMP: A("s_memrealtime s[92:93]")
    for i in range(1, 7):
        for k in range(4):
            A(f"v_add_f32 v{LD+k}, v{LD+k}, v{LD+4*i+k}")
    A(f"""
    v_permlane16_swap_b32 v{LD}, v{LD+2}
    v_permlane16_swap_b32 v{LD+1}, v{LD+3}
    v_add_f32 v{LD}, v{LD}, v{LD+2}
    v_add_f32 v{LD+1}, v{LD+1}, v{LD+3}
    v_mov_b32 v{LD+2}, v{LD}
    v_mov_b32 v{LD+3}, v{LD+1}
    v_permlane32_swap_b32 v{LD}, v{LD+2}
    v_permlane32_swap_b32 v{LD+1}, v{LD+3}
    v_add_f32 v{LD}, v{LD}, v{LD+2}
    v_add_f32 v{LD+1}, v{LD+1}, v{LD+3}
    v_mul_f32 v{LD}, {f32(1.0/896)}, v{LD}
    v_mul_f32 v{LD+1}, {f32(1.0/896)}, v{LD+1}
    v_fma_f32 v{LD+1}, -v{LD}, v{LD}, v{LD+1}
    v_max_f32 v{LD+1}, 0, v{LD+1}
    v_add_f32 v{LD+1}, {f32(1e-5)}, v{LD+1}
    v_rsq_f32 v{LD+2}, v{LD+1}
    s_nop 0
    v_mul_f32 v{LD+3}, v{LD}, v{LD+2}
    v_xor_b32 v{LD+3}, 0x80000000, v{LD+3}
    ds_write_b64 v{T}, {v(LD+2,2)}
    s_waitcnt lgkmcnt(0)
    """)
    NB = 48
    for g in range(4):
        for hh in range(2):
            A(f"ds_read_b128 {v(NB + 8*g + 4*hh, 4)}, v{T+1} offset:{64*g + 16*hh}")
    for x in pack_store(ACCA, ((0, 2), (1, 3)), T + 24, VBT, SBT, 76, SMA): A(x)
    for g in (0, 2, 1, 3):
        A(f"s_waitcnt lgkmcnt({2*(3-g) if g in (0,) else (2 if g == 2 else 0)})")
        for r in range(4):
            A(f"v_fma_f32 v{ACC2+4*g+r}, v{ACC2+4*g+r}, v{NB+8*g+2*r}, v{NB+8*g+2*r+1}")
    for x in pack_store(ACC2, ((0, 2), (1, 3)), T + 32, VBT, SBT, 75, SM2): A(x)
    if K2.ONE:
        assert SM1 == SMA == SM2 == HSM == "sc1"
        done_load(A)
    if STAMP:
        A(f"""
        s_waitcnt vmcnt(0)
        s_memrealtime s[88:89]
        s_waitcnt lgkmcnt(0)
        v_mov_b32 v8, s80
        v_mov_b32 v9, s82
        v_mov_b32 v10, s84
        v_mov_b32 v11, s86
        v_mov_b32 v12, s88
        v_mov_b32 v13, s70
        v_mov_b32 v14, s90
        v_mov_b32 v15, s92
        s_lshl_b32 s62, s2, 3
        s_add_u32 s62, s62, s54
        s_lshl_b32 s62, s62, 5
        s_add_u32 s62, s62, {WS_DBG + 0x100000}
        v_mov_b32 v7, s62
        global_store_dwordx4 v7, v[8:11], s[22:23]
        global_store_dwordx4 v7, v[12:15], s[22:23] offset:16
        """)
    if K2.ONE:
        A(f"""
        s_add_u32 s4, s22, {K2.WS_BF}
        s_addc_u32 s5, s23, 0
        s_mov_b32 s6, 32768
        s_mov_b32 s7, 0x20000
        s_lshl_b32 s62, s57, 4
        s_add_u32 s62, s62, s58
        s_lshl_b32 s62, s62, 7
        v_mov_b32 v22, 1
        v_mov_b32 v23, s62
        s_cmp_lg_u32 s54, 0
        s_waitcnt vmcnt({2 if STAMP else 0})
        s_barrier
        s_cbranch_scc1 L_k2entry
        s_mov_b64 exec, 1
        buffer_store_dword v22, v23, s[4:7], 0 offen sc1
        s_mov_b64 exec, -1
        s_branch L_k2entry
        """)
    else: A("s_endpgm")

    A.label(Lhelp)
    Lgate = A.newlabel("k1gate")
    A(f"""
    s_lshl_b32 s55, s52, 2
    s_add_u32 s55, s55, s53
    s_sub_u32 s55, s55, 28
    s_waitcnt lgkmcnt(0)
    s_mov_b32 s24, s4
    s_mov_b32 s25, s5
    s_mov_b32 s26, {2048*896}
    s_mov_b32 s27, 0x20000
    s_mov_b32 s28, s18
    s_mov_b32 s29, s19
    s_mov_b32 s30, 896
    s_mov_b32 s31, 0x20000
    s_mov_b32 s32, s16
    s_mov_b32 s33, s17
    s_mov_b32 s34, {896*896}
    s_mov_b32 s35, 0x20000
    s_add_u32 s36, s22, {WS_WOT}
    s_addc_u32 s37, s23, 0
    s_mov_b32 s38, {WOT_BYTES}
    s_mov_b32 s39, 0x20000
    s_add_u32 s40, s22, {WS_G}
    s_addc_u32 s41, s23, 0
    s_mov_b32 s42, 8192
    s_mov_b32 s43, 0x20000
    v_lshrrev_b32 v1, 3, v0
    s_lshl_b32 s56, s55, 6
    s_lshl_b32 s57, s54, 3
    s_add_u32 s56, s56, s57
    v_add_u32 v1, s56, v1
    v_and_b32 v2, 7, v0
    v_lshlrev_b32 v2, 4, v2
    v_mul_u32_u24 v3, 896, v1
    v_add_u32 v3, v3, v2
    """)
    def helper_pf():
        A(f"""
        s_load_dwordx4 s[64:67], s[0:1], 8
        s_load_dwordx2 s[68:69], s[0:1], 56
        s_lshl_b32 s62, s55, 18
        s_lshl_b32 s63, s54, 7
        s_add_u32 s62, s62, s63
        v_lshlrev_b32 v7, 12, v0
        s_mov_b32 s46, 0x800000
        s_mov_b32 s47, 0x20000
        s_waitcnt lgkmcnt(0)
        """)
        Lpfe = A.newlabel("k1pfe")
        for i in range((PFN + 7) // 8):
            if PFN - 8*i < 8:
                A(f"s_cmp_ge_u32 s54, {PFN - 8*i}\ns_cbranch_scc1 {Lpfe}")
            for b in (68, 64, 66):
                A(f"""
                s_mov_b32 s44, s{b}
                s_mov_b32 s45, s{b+1}
                buffer_load_dword v100, v7, s[44:47], s62 offen offset:{1024*i}
                """)
        A.label(Lpfe)
    A(f"""
    s_mul_i32 s56, s55, 14336
    s_mul_i32 s57, s54, 1792
    s_add_u32 s56, s56, s57
    s_add_u32 s56, s56, {WS_ST}
    s_add_u32 s44, s22, s56
    s_addc_u32 s45, s23, 0
    s_movk_i32 s46, 1792
    s_mov_b32 s47, 0x20000
    v_lshlrev_b32 v4, 4, v0
    v_mov_b32 v8, -1.0
    v_mov_b32 v9, -1.0
    v_mov_b32 v10, -1.0
    v_mov_b32 v11, -1.0
    buffer_store_dwordx4 v[8:11], v4, s[44:47], 0 offen sc1
    s_mov_b32 exec_hi, 0xffff
    buffer_store_dwordx4 v[8:11], v4, s[44:47], 0 offen offset:1024 sc1
    s_mov_b32 exec_hi, -1
    """)
    if K2.ONE: A(f"""
    s_add_u32 s44, s22, {K2.WS_BF}
    s_addc_u32 s45, s23, 0
    s_mov_b32 s46, 32768
    s_lshl_b32 s56, s55, 3
    s_add_u32 s56, s56, s54
    s_lshl_b32 s56, s56, 7
    v_mov_b32 v12, 0
    v_mov_b32 v13, s56
    s_mov_b64 exec, 1
    buffer_store_dword v12, v13, s[44:47], 0 offen sc1
    s_mov_b64 exec, -1
    """)
    for i in range(7):
        A(f"buffer_load_dwordx4 {v(16+4*i,4)}, v3, s[24:27], 0 offen offset:{128*i}")
        A(f"buffer_load_dwordx4 {v(48+4*i,4)}, v2, s[28:31], 0 offen offset:{128*i}")
    Lhf = A.newlabel("k1hf")
    A(f"""
    s_mov_b32 s48, s20
    s_mov_b32 s49, s21
    s_movk_i32 s50, 256
    s_mov_b32 s51, 0x20000
    v_mov_b32 v12, 1
    v_mov_b32 v13, s55
    s_waitcnt vmcnt(14)
    s_barrier
    s_cmp_lg_u32 s54, 0
    s_cbranch_scc1 {Lhf}
    s_mov_b64 exec, 1
    buffer_store_byte v12, v13, s[48:51], 0 offen sc1
    s_mov_b64 exec, -1
    """)
    A.label(Lhf)
    Lhz = A.newlabel("k1hz")
    A(f"""
    s_cmp_lg_u32 s55, 31
    s_cbranch_scc1 {Lhz}
    s_add_u32 s48, s22, {WS_FL}
    s_addc_u32 s49, s23, 0
    s_mov_b32 s50, {16*FLSTRIDE}
    v_mov_b32 v14, 0
    v_mov_b32 v15, 0
    """)
    if K2.FM:
        A("""
        s_lshl_b32 s56, s54, 12
        v_lshlrev_b32 v13, 4, v0
        v_mov_b32 v200, 0
        v_mov_b32 v201, 0
        v_mov_b32 v202, 0
        v_mov_b32 v203, 0
        """)
        for i in range(4): A(f"buffer_store_dwordx4 v[200:203], v13, s[48:51], s56 offen offset:{1024*i} {HSM}")
    else: A("""
    s_lshl_b32 s56, s54, 9
    v_lshlrev_b32 v13, 3, v0
    buffer_store_dwordx2 v[14:15], v13, s[48:51], s56 offen
    """)
    A.label(Lhz)
    A(f"""
    s_cmp_ge_u32 s55, 28
    s_cbranch_scc1 {Lgate}
    s_mul_i32 s58, s55, 28672
    s_lshl_b32 s59, s54, 10
    s_add_u32 s58, s58, s59
    v_lshlrev_b32 v4, 4, v0
    """)
    L3 = A.newlabel("k1h3")
    for p in range(4):
        if p == 3:
            A(f"s_cmp_ge_u32 s54, 4\ns_cbranch_scc1 {L3}")
        A(f"""
        s_add_u32 m0, s59, {8192*p}
        s_nop 0
        buffer_load_dwordx4 v4, s[32:35], s58 offen {LMOD} lds
        s_add_u32 s58, s58, 8192
        """)
    A.label(L3)
    A(f"""
    v_lshrrev_b32 v5, 2, v0
    v_mul_u32_u24 v5, 896, v5
    v_and_b32 v6, 3, v0
    v_lshl_add_u32 v5, v6, 4, v5
    s_lshr_b32 s60, s54, 1
    s_lshl_b32 s60, s60, 6
    s_and_b32 s61, s54, 1
    s_lshl_b32 s61, s61, 3
    s_add_u32 s60, s60, s61
    v_add_u32 v5, s60, v5
    s_mul_i32 s60, s54, 28
    s_add_u32 s60, s60, s55
    s_lshl_b32 s60, s60, 10
    s_waitcnt vmcnt(0)
    s_barrier
    """)
    for p in range(4):
        A(f"ds_read_b64_tr_b16 {v(80+4*p,2)}, v5 offset:{256*p}")
        A(f"ds_read_b64_tr_b16 {v(82+4*p,2)}, v5 offset:{256*p + 16*896}")
    for p in range(4):
        A(f"s_waitcnt lgkmcnt({2*(3-p)})")
        if p == 3:
            A(f"s_cmp_ge_u32 s54, 4\ns_cbranch_scc1 {Lgate}")
        A(f"buffer_store_dwordx4 {v(80+4*p,4)}, v4, s[36:39], s60 offen {HSM}")
        A(f"s_add_u32 s60, s60, {8*28*1024}")
    A.label(Lgate)
    A("s_waitcnt vmcnt(0)")
    A("v_mov_b32 v8, 0\nv_mov_b32 v9, 0")
    for i in range(28):
        A(f"v_dot2c_f32_bf16 v{8 + (i&1)}, v{16+i}, v{48+i}")
    A(f"""
    s_nop 2
    v_add_f32 v8, v8, v9
    s_nop 1
    v_add_f32_dpp v8, v8, v8 quad_perm:[1,0,3,2] row_mask:0xf bank_mask:0xf
    s_nop 1
    v_add_f32_dpp v8, v8, v8 quad_perm:[2,3,0,1] row_mask:0xf bank_mask:0xf
    s_nop 1
    v_add_f32_dpp v8, v8, v8 row_half_mirror row_mask:0xf bank_mask:0xf
    v_mul_f32 v8, {f32(-LOG2E)}, v8
    v_exp_f32 v8, v8
    s_nop 0
    v_add_f32 v8, 1.0, v8
    v_rcp_f32 v8, v8
    v_lshlrev_b32 v1, 2, v1
    buffer_store_dword v8, v1, s[40:43], 0 offen {HSM}
    """)
    if PF == "h1": helper_pf()
    if PFX:
        A(PFX_LOAD)
        A("s_waitcnt lgkmcnt(0)")
        pfx(0, PF0N, 0, PF1N)
        if PFB: pfx(PF0N, min(2*PFB, 32 - PF0N), PF1N, PFB)
    if K2.SV >= 2:
        A(f"""
        s_add_u32 s48, s22, {K2.WS_H}
        s_addc_u32 s49, s23, 0
        s_mov_b32 s50, {K2.WS_Y - K2.WS_H + ZH_BYTES}
        s_mov_b32 s51, 0x20000
        s_lshl_b32 s56, s55, 3
        s_add_u32 s56, s56, s54
        s_mul_i32 s56, s56, 14336
        v_lshlrev_b32 v13, 4, v0
        v_add_u32 v13, s56, v13
        v_mov_b32 v200, -1
        v_mov_b32 v201, -1
        v_mov_b32 v202, -1
        v_mov_b32 v203, -1
        """)
        for ar in range(K2.SV - 1):
            if ar: A(f"v_add_u32 v13, {K2.WS_Y - K2.WS_H - 0x3000}, v13")
            for i in range(14):
                A(f"buffer_store_dwordx4 v[200:203], v13, s[48:51], 0 offen offset:{1024*(i&3)} {FILLMOD}")
                if i & 3 == 3: A("v_add_u32 v13, 0x1000, v13")
    if K2.ONE:
        done_load(A)
        A(f"""
        s_mov_b32 s48, s20
        s_mov_b32 s49, s21
        s_movk_i32 s50, 256
        s_mov_b32 s51, 0x20000
        s_add_u32 s56, s55, 32
        v_mov_b32 v22, 1
        v_mov_b32 v23, s56
        s_cmp_lg_u32 s54, 0
        s_waitcnt vmcnt(0)
        s_barrier
        s_cbranch_scc1 L_k2entry
        s_mov_b64 exec, 1
        buffer_store_byte v22, v23, s[48:51], 0 offen sc1
        s_mov_b64 exec, -1
        s_branch L_k2entry
        """)
    A.label(Lend)
    A("s_endpgm")
    return kernel_desc(name, 256, 102, 256)
```

```python
from asmlib import *

WS_BT = 0x0
WS_Z1 = 0x800000
WS_H  = 0xC00000
WS_Y  = 0x1000000
WS_WOT = 0x1400000
WS_G  = 0x1500000
WS_ST = 0x1600000
WS_FL = 0x1700000
import os
FM = int(os.environ.get("K2_FM", "1"))
FLSTRIDE = 2048 if FM else 256
ONE = os.environ.get("ONE", "0") == "1"
WS_BF = 0x1710000
BSLP = int(os.environ.get("K2_BSLP", "1"))
BT_BYTES = 16 * 32 * 14336
ZH_BYTES = 128 * 28 * 1024
WOT_BYTES = 28 * 28 * 1024

STAGE = 30720
NSLOT = 5
K2_LDS = STAGE * NSLOT

import os
ROT = os.environ.get("K2_ROT", "lat")
SKIP = os.environ.get("K2_SKIP", "")
STAMP = os.environ.get("STAMP", "") == "1"
WS_DBG = 0x1800000
K2PF = int(os.environ.get("K2_PF", "0"))
K2PFMOD = os.environ.get("K2_PFMOD", "")
AMOD = os.environ.get("K2_AMOD", "")
BMOD = os.environ.get("K2_BMOD", "")
MAP1 = "" if os.environ.get("K2_MAP", "1") == "0" else """
    s_and_b32 s41, s34, 1
    s_lshl_b32 s41, s41, 3
    s_lshr_b32 s42, s35, 2
    s_add_u32 s41, s41, s42
    s_and_b32 s42, s34, 2
    s_lshl_b32 s42, s42, 1
    s_and_b32 s43, s35, 3
    s_add_u32 s42, s42, s43
    s_cmp_lg_u32 s38, 0
    s_cselect_b32 s36, s41, s36
    s_cselect_b32 s37, s42, s37
"""
MAP2 = os.environ.get("K2_MAP", "1") == "2"
if MAP2:
    MAP1 = MAP1.replace("s_cmp_lg_u32 s38, 0", "s_cmp_eq_u32 s38, s38")
SMOD2 = os.environ.get("K2_SMOD", "")
WPF = os.environ.get("K2_WPF", "1")
FUSE = os.environ.get("FUSE", "1") == "1"
if FUSE:
    SMOD2 = "sc1"; WPF = ""
K2PF0 = int(os.environ.get("K2_PF0", "8"))
SBL = int(os.environ.get("K2_SBL", "4"))
LG = int(os.environ.get("K2_G", "4"))
ZC = int(os.environ.get("K2_ZC", "3"))
WLE = int(os.environ.get("K2_WLE", "28"))
WFL = os.environ.get("K2_WF", "0") == "1"
SV = int(os.environ.get("K2_SV", "2"))
FC = int(os.environ.get("K2_FC", "12"))
HEADV = """
    v_lshrrev_b32 v1, 6, v0
    v_and_b32 v0, 63, v0
    s_nop 0
    v_readfirstlane_b32 s40, v1
"""
def gen_k2(A, name="k2_kernel"):
    Lend = A.newlabel("k2end")
    Lload = A.newlabel("k2load")
    if ONE:
        A.label("L_k2entry")
        A("s_mov_b32 s40, s54")
    else:
        kernel_header(A, name)
        A(f"s_cmp_ge_u32 s2, 256\ns_cbranch_scc1 {Lend}")
    A(f"""
    {"s_memrealtime s[54:55]" if STAMP else ""}
    s_load_dwordx4 s[4:7], s[0:1], 8
    s_load_dwordx4 s[28:31], s[0:1], 56
    s_load_dwordx2 s[32:33], s[0:1], 104
    s_and_b32 s34, s2, 7
    s_lshr_b32 s35, s2, 3
    s_and_b32 s36, s34, 3
    s_lshl_b32 s36, s36, 2
    s_lshr_b32 s37, s35, 3
    s_add_u32 s36, s36, s37
    s_and_b32 s37, s35, 7
    s_lshr_b32 s38, s34, 2
    {MAP1}
    s_lshl_b32 s39, s38, 3
    s_add_u32 s39, s39, s37
    {"" if ONE else HEADV}
    s_waitcnt lgkmcnt(0)
    s_cmp_lt_u32 s37, 4
    s_cselect_b32 s4, s4, s6
    s_cselect_b32 s5, s5, s7
    s_cmp_eq_u32 s38, 0
    s_cselect_b32 s4, s28, s4
    s_cselect_b32 s5, s29, s5
    s_lshl_b32 s41, s36, 19
    s_add_u32 s8, s4, s41
    s_addc_u32 s9, s5, 0
    s_mov_b32 s10, 0x80000
    s_mov_b32 s11, 0x20000
    s_mul_i32 s41, s39, {32*14336}
    s_add_u32 s12, s32, s41
    s_addc_u32 s13, s33, 0
    s_mov_b32 s14, {32*14336}
    s_mov_b32 s15, 0x20000
    s_cmp_ge_u32 s40, 4
    s_cbranch_scc1 {Lload}
    """)
    FA = [[8 + 16*st + 4*m for m in range(4)] for st in range(2)]
    FB = [[40 + 28*st + 4*n for n in range(7)] for st in range(2)]
    Z1 = 96
    BS = 124
    ACC = 144
    def acc(n, m): return ACC + 4*(n*4 + m)
    VAL, VAH, VB = 2, 3, 4
    WAL, WAH, WB = 5, 6, 7
    VLANE16 = 126
    VPF = 127
    if K2PF:
        A(f"""
        s_lshl_b32 s42, s37, 4
        s_lshl_b32 s43, s40, 2
        s_add_u32 s42, s42, s43
        s_and_b32 s44, s37, 3
        s_lshl_b32 s44, s44, 5
        s_lshl_b32 s43, s40, 3
        s_add_u32 s44, s44, s43
        s_cmp_lg_u32 s38, 0
        s_cselect_b32 s42, s44, s42
        s_cselect_b32 s43, 7, 3
        v_lshrrev_b32 v1, 1, v0
        v_and_b32 v1, s43, v1
        v_add_u32 v1, s42, v1
        v_lshlrev_b32 v1, 12, v1
        v_and_b32 v5, 1, v0
        v_lshl_add_u32 v{VPF}, v5, 7, v1
        s_movk_i32 s66, {128*K2PF0}
        """)
        for i in range((K2PF - K2PF0) // 2):
            A(f"buffer_load_dword v128, v{VPF}, s[8:11], s66 offen {K2PFMOD}")
            A("s_add_u32 s66, s66, 256")
    A(f"""
    s_lshr_b32 s42, s40, 1
    s_and_b32 s43, s40, 1
    v_and_b32 v1, 15, v0
    v_lshrrev_b32 v5, 4, v0
    s_lshl_b32 s44, s43, 2
    v_add_u32 v5, s44, v5
    v_lshrrev_b32 v6, 1, v1
    v_xor_b32 v5, v5, v6
    v_lshlrev_b32 v5, 4, v5
    v_lshl_add_u32 v5, v1, 7, v5
    s_lshl_b32 s44, s42, 13
    s_lshl_b32 s45, s43, 12
    s_add_u32 s46, s44, s45
    s_xor_b32 s47, s46, 0x1000
    v_add_u32 v{VAL}, s46, v5
    v_add_u32 v{VAH}, s47, v5
    s_mul_i32 s44, s43, 7168
    s_add_u32 s44, s44, 16384
    v_lshlrev_b32 v{VLANE16}, 4, v0
    v_add_u32 v{VB}, s44, v{VLANE16}
    """)
    A(f"""
    s_lshl_b32 s44, s36, 3
    s_lshl_b32 s45, s42, 2
    s_add_u32 s44, s44, s45
    s_lshl_b32 s45, s43, 1
    s_add_u32 s44, s44, s45
    s_mul_i32 s45, s37, 7
    s_add_u32 s45, s45, 1
    s_lshr_b32 s45, s45, 1
    s_mul_i32 s46, s44, 28
    s_add_u32 s46, s46, s45
    s_lshl_b32 s48, s46, 10
    s_add_u32 s49, s48, {28*1024}
    s_and_b32 s47, s37, 1
    s_movk_i32 s46, 3072
    s_cmp_eq_u32 s47, 0
    s_cselect_b32 s47, s46, -1016
    s_add_u32 s50, s48, s47
    s_add_u32 s51, s49, s47
    s_add_u32 s16, s32, {WS_Z1}
    s_addc_u32 s17, s33, 0
    s_mov_b32 s18, {ZH_BYTES}
    s_mov_b32 s19, 0x20000
    s_mov_b32 s46, {WS_H}
    s_cmp_eq_u32 s38, 0
    s_cselect_b32 s47, s46, {WS_Y}
    s_add_u32 s20, s32, s47
    s_addc_u32 s21, s33, 0
    s_mov_b32 s22, {ZH_BYTES}
    s_mov_b32 s23, 0x20000
    s_mov_b32 s24, s30
    s_mov_b32 s25, s31
    s_mov_b32 s26, 4096
    s_mov_b32 s27, 0x20000
    """)
    Lnoz = A.newlabel("k2noz")
    A(f"""
    v_lshrrev_b32 v5, 2, v1
    v_lshlrev_b32 v5, 3, v5
    v_and_b32 v6, 3, v1
    v_add_u32 v5, v5, v6
    s_lshl_b32 s47, s44, 4
    v_add_u32 v5, s47, v5
    v_lshlrev_b32 v129, 1, v5
    s_cmp_lg_u32 s38, 0
    s_cselect_b32 s67, 0, {ZC}
    """)
    def zloads():
        A(f"""
        buffer_load_ushort v{BS}, v129, s[24:27], 0 offen
        buffer_load_ushort v{BS+1}, v129, s[24:27], 0 offen offset:8
        """)
        for mm in range(2):
            so = 48 + mm
            for p in range(3):
                A(f"buffer_load_dwordx4 {v(Z1 + 14*mm + 4*p, 4)}, v{VLANE16}, s[16:19], s{so} offen offset:{1024*p}")
            A(f"buffer_load_dwordx2 {v(Z1 + 14*mm + 12, 2)}, v{VLANE16}, s[16:19], s{50+mm} offen")
    if ZC == 0:
        A(f"s_cbranch_scc1 {Lnoz}")
        zloads()
        A.label(Lnoz)
    if SV == 1:
        for r in range(132, 136): A(f"v_mov_b32 v{r}, -1")
    for r in range(112):
        A(f"v_mov_b32 v{ACC + r}, 0")
    A("s_mov_b32 s52, 0")
    def reads(st):
        r = []
        for m in range(4):
            base = WAL if m < 2 else WAH
            r.append(f"ds_read_b128 {v(FA[st][m],4)}, v{base} offset:{2048*(m&1)}")
        for n in range(7):
            r.append(f"ds_read_b128 {v(FB[st][n],4)}, v{WB} offset:{1024*n}")
        return [r[0], r[4], r[1], r[2], r[3]] + r[5:]
    def addr_update():
        return f"""
        v_add_u32 v{WAL}, s52, v{VAL}
        v_add_u32 v{WAH}, s52, v{VAH}
        v_add_u32 v{WB}, s52, v{VB}
        s_add_u32 s52, s52, {STAGE}
        s_cmp_eq_u32 s52, {STAGE*NSLOT}
        s_cselect_b32 s52, 0, s52
        """
    def mfmas(st):
        if "mfma" in SKIP: return ["s_nop 0"] * 28
        return [f"v_mfma_f32_16x16x32_bf16 {v(acc(n,m),4)}, {v(FB[st][n],4)}, {v(FA[st][m],4)}, {v(acc(n,m),4)}"
                for n in range(7) for m in range(4)]
    def iteration(st, with_reads=True):
        if with_reads:
            A("s_barrier")
            A(addr_update())
            for ins in interleave(mfmas(st), reads(st ^ 1), start=0, every=2):
                A(ins)
            A("s_waitcnt lgkmcnt(0)")
        else:
            for ins in mfmas(st):
                A(ins)
    if ONE: A("s_barrier")
    A("s_barrier")
    if STAMP: A("s_memrealtime s[56:57]\ns_memtime s[62:63]")
    A(addr_update())
    for ins in reads(0):
        A(ins)
    A("s_waitcnt lgkmcnt(0)")
    A("s_mov_b32 s53, 15")
    Lloop = A.newlabel("k2loop")
    A.label(Lloop)
    iteration(0)
    if SV == 1:
        Lnf = A.newlabel("k2nf")
        A(f"s_cmp_lg_u32 s53, {FC}\ns_cbranch_scc1 {Lnf}")
        for mm in range(2):
            for p in range(3):
                A(f"buffer_store_dwordx4 v[132:135], v{VLANE16}, s[20:23], s{48+mm} offen offset:{1024*p} {SMOD2}")
            A(f"buffer_store_dwordx2 v[132:133], v{VLANE16}, s[20:23], s{50+mm} offen {SMOD2}")
        A.label(Lnf)
    if ZC:
        A(f"s_cmp_lg_u32 s53, s67\ns_cbranch_scc1 {Lnoz}")
        zloads()
        A.label(Lnoz)
    if K2PF:
        Lsk = A.newlabel("k2pfs")
        A(f"""
        s_cmp_ge_u32 s66, 4096
        s_cbranch_scc1 {Lsk}
        buffer_load_dword v128, v{VPF}, s[8:11], s66 offen {K2PFMOD}
        s_add_u32 s66, s66, 256
        """)
        A.label(Lsk)
    iteration(1)
    A(f"""
    s_sub_u32 s53, s53, 1
    s_cmp_lg_u32 s53, 0
    s_cbranch_scc1 {Lloop}
    """)
    iteration(0)
    iteration(1, with_reads=False)
    if STAMP: A("s_memrealtime s[58:59]\ns_memtime s[64:65]\ns_waitcnt lgkmcnt(0)\ns_sub_u32 s62, s64, s62")
    XB = 2 * STAGE
    A(f"""
    s_mul_i32 s47, s40, 14336
    s_add_u32 s47, s47, {XB}
    v_add_u32 v5, s47, v{VLANE16}
    s_xor_b32 s46, s40, 1
    s_mul_i32 s46, s46, 14336
    s_add_u32 s46, s46, {XB}
    v_add_u32 v6, s46, v{VLANE16}
    s_nop 4
    """)
    for n in range(7):
        for mm in range(2):
            A(f"ds_write_b128 v5, {v(acc(n, 2+mm),4)} offset:{(n*2+mm)*1024}")
    A("s_waitcnt lgkmcnt(0)")
    A("s_barrier")
    RX = 8
    for n in range(7):
        for mm in range(2):
            A(f"ds_read_b128 {v(RX + 4*(n*2+mm),4)}, v6 offset:{(n*2+mm)*1024}")
    Ly = A.newlabel("k2y")
    Lfin = A.newlabel("k2fin")
    A(f"""
    s_cmp_lg_u32 s38, 0
    s_waitcnt vmcnt(0)
    s_cbranch_scc1 {Ly}
    v_lshlrev_b32 v{BS}, 16, v{BS}
    v_lshlrev_b32 v{BS+1}, 16, v{BS+1}
    """)
    OUT = 64
    def epi(g2):
        cnt = 14
        for n in range(7):
            for mm in range(2):
                cnt -= 1
                A(f"s_waitcnt lgkmcnt({cnt})")
                rx = RX + 4*(n*2+mm)
                zr = Z1 + 14*mm + 2*n
                o = OUT + 14*mm + 2*n
                for r in range(4):
                    A(f"v_add_f32 v{rx+r}, v{rx+r}, v{acc(n,mm)+r}")
                if g2:
                    for r in range(4):
                        A(f"v_add_f32 v{rx+r}, v{rx+r}, v{BS+mm}")
                    A(f"""
                    v_lshlrev_b32 v92, 16, v{zr}
                    v_and_b32 v93, 0xffff0000, v{zr}
                    v_lshlrev_b32 v94, 16, v{zr+1}
                    v_and_b32 v95, 0xffff0000, v{zr+1}
                    v_mul_f32 v{rx}, v{rx}, v92
                    v_mul_f32 v{rx+1}, v{rx+1}, v93
                    v_mul_f32 v{rx+2}, v{rx+2}, v94
                    v_mul_f32 v{rx+3}, v{rx+3}, v95
                    """)
                A(f"v_cvt_pk_bf16_f32 v{o}, v{rx}, v{rx+1}")
                A(f"v_cvt_pk_bf16_f32 v{o+1}, v{rx+2}, v{rx+3}")
                if n % 2 == 1:
                    p = n // 2
                    A(f"buffer_store_dwordx4 {v(OUT + 14*mm + 4*p,4)}, v{VLANE16}, s[20:23], s{48+mm} offen offset:{1024*p} {SMOD2}")
                if n == 6:
                    A(f"buffer_store_dwordx2 {v(OUT + 14*mm + 12,2)}, v{VLANE16}, s[20:23], s{50+mm} offen {SMOD2}")
    def stamp_out():
        if not STAMP: return
        A(f"""
        s_waitcnt vmcnt(0)
        s_memrealtime s[60:61]
        s_waitcnt lgkmcnt(0)
        v_mov_b32 v8, s54
        v_mov_b32 v13, s62
        v_mov_b32 v9, s56
        v_mov_b32 v10, s58
        v_mov_b32 v11, s60
        s_lshl_b32 s46, s2, 2
        s_add_u32 s46, s46, s40
        s_lshl_b32 s46, s46, 4
        s_add_u32 s46, s46, {WS_DBG}
        v_mov_b32 v12, s46
        global_store_dwordx4 v12, v[8:11], s[32:33]
        v_lshrrev_b32 v12, 2, v12
        v_add_u32 v12, {WS_DBG + 0x10000 - WS_DBG//4}, v12
        global_store_dword v12, v13, s[32:33]
        """)
    def fin(g2):
        if FUSE and WLE < 28: A("s_barrier")
        if FUSE and WFL:
            A(f"""
            s_add_u32 s68, s32, {WS_FL}
            s_addc_u32 s69, s33, 0
            s_mov_b32 s70, {16*FLSTRIDE}
            s_mov_b32 s71, 0x20000
            s_mul_i32 s72, s36, {FLSTRIDE}
            s_lshl_b32 s73, s39, {7 if FM == 2 else 2}
            s_add_u32 s72, s72, s73
            s_add_u32 s72, s72, s40
            v_mov_b32 v10, 1
            v_lshlrev_b32 v11, 3, v{VLANE16}
            v_add_u32 v11, s72, v11
            s_mov_b64 exec, {0x3fff if FM == 1 else 1}
            s_waitcnt vmcnt(0)
            buffer_store_byte v10, v11, s[68:71], 0 offen sc1
            s_mov_b64 exec, -1
            """)
        elif FUSE and (SV in (1, 3) or (SV == 2 and g2)): A("s_barrier")
        elif FUSE: A("s_waitcnt vmcnt(0)\ns_barrier")
        stamp_out()
        A(f"s_endpgm")
    epi(True)
    fin(True)
    A.label(Ly)
    epi(False)
    fin(False)
    A.label(Lload)
    A(f"""
    s_sub_u32 s42, s40, 4
    v_lshrrev_b32 v1, 5, v0
    v_lshlrev_b32 v1, 3, v1
    v_bfe_u32 v2, v0, 3, 2
    v_add_u32 v1, v1, v2
    s_lshl_b32 s43, s42, 5
    v_add_u32 v1, s43, v1
    v_lshlrev_b32 v1, 12, v1
    v_and_b32 v2, 7, v0
    v_lshrrev_b32 v3, 4, v0
    v_xor_b32 v2, v2, v3
    v_lshlrev_b32 v2, 4, v2
    v_xor_b32 v3, 64, v2
    v_add_u32 v4, v1, v2
    v_add_u32 v5, v1, v3
    v_add_u32 v5, {16*4096 - 1024}, v5
    v_add_u32 v6, {4*4096 - 2048}, v4
    v_add_u32 v7, {4*4096 - 2048}, v5
    s_lshl_b32 s43, s42, 2
    s_cmp_eq_u32 s42, 3
    s_cselect_b32 s43, 11, s43
    s_lshl_b32 s43, s43, 10
    v_lshlrev_b32 v8, 4, v0
    v_add_u32 v8, s43, v8
    s_lshl_b32 s44, s42, 12
    s_add_u32 s45, s43, 16384
    s_mov_b32 s46, 0
    """)
    if ROT == "none":
        A("s_mov_b32 s50, 0")
    elif ROT == "xcd":
        A("s_lshl_b32 s50, s34, 2")
    elif ROT == "mi":
        A("s_lshl_b32 s50, s36, 1\ns_add_u32 s50, s50, s38")
    elif ROT == "h2":
        A("s_and_b32 s50, s37, 1\ns_lshl_b32 s50, s50, 4")
    elif ROT == "h4":
        A("s_and_b32 s50, s37, 3\ns_lshl_b32 s50, s50, 3")
    elif ROT == "h8":
        A("s_and_b32 s50, s37, 3\ns_lshl_b32 s50, s50, 3\ns_lshl_b32 s51, s37, 2\ns_cmp_eq_u32 s38, 0\ns_cselect_b32 s50, s51, s50")
    elif ROT == "wg":
        A("s_mul_i32 s50, s2, 5\ns_and_b32 s50, s50, 31")
    elif ROT == "lat":
        A("s_add_u32 s50, s36, s37")
        if LG == 8 and MAP2: A("s_add_u32 s50, s50, s37")
        elif LG == 8: A("s_cmp_eq_u32 s38, 0\ns_cselect_b32 s51, s36, s37\ns_add_u32 s50, s50, s51")
        A(f"""
        s_and_b32 s50, s50, {LG-1}
        s_mul_i32 s50, s50, {SBL//LG}
        s_mov_b32 s51, 0
        """)
    A(f"""
    s_lshl_b32 s47, s50, 7
    s_mul_i32 s48, s50, 14336
    s_cmp_ge_u32 s42, 2
    """)
    Lcls = A.newlabel("k2ldB")
    A(f"s_cbranch_scc1 {Lcls}")
    def issue(nb, skip=SKIP):
        SKIP = skip
        A(f"""
        s_add_u32 m0, s46, s44
        s_nop 0
        """)
        if "A" not in SKIP: A(f"""
        buffer_load_dwordx4 v4, s[8:11], s47 offen {AMOD} lds
        buffer_load_dwordx4 v5, s[8:11], s47 offen offset:1024 {AMOD} lds
        buffer_load_dwordx4 v6, s[8:11], s47 offen offset:2048 {AMOD} lds
        buffer_load_dwordx4 v7, s[8:11], s47 offen offset:3072 {AMOD} lds
        """)
        A(f"""
        s_add_u32 m0, s46, s45
        s_add_u32 s47, s47, 128
        """)
        for p in range(nb):
            if "B" not in SKIP: A(f"buffer_load_dwordx4 v8, s[12:15], s48 offen offset:{1024*p} {BMOD} lds")
        if ROT == "lat": A(f"""
        s_add_u32 s51, s51, 1
        s_add_u32 s47, s51, s50
        s_and_b32 s47, s47, {SBL-1}
        s_andn2_b32 s48, s51, {SBL-1}
        s_or_b32 s47, s47, s48
        s_mul_i32 s48, s47, 14336
        s_lshl_b32 s47, s47, 7
        """)
        else: A(f"""
        s_add_u32 s48, s48, 14336
        s_cmp_eq_u32 s47, 4096
        s_cselect_b32 s47, 0, s47
        s_cselect_b32 s48, 0, s48
        """)
        A(f"""
        s_add_u32 s46, s46, {STAGE}
        s_cmp_eq_u32 s46, {STAGE*NSLOT}
        s_cselect_b32 s46, 0, s46
        """)
    def bpoll():
        assert ROT == "lat"
        Lx = A.newlabel("k2bx"); Ld = A.newlabel("k2bd"); Ldo = A.newlabel("k2bdo"); Lb = A.newlabel("k2bb")
        A(f"""
        s_cmp_lg_u32 s42, 0
        s_cbranch_scc1 {Lx}
        s_add_u32 s16, s32, {WS_BF}
        s_addc_u32 s17, s33, 0
        s_mov_b32 s18, 32768
        s_mov_b32 s19, 0x20000
        s_movk_i32 s22, 256
        s_mov_b32 s23, 0x20000
        s_mul_i32 s24, s37, 7
        s_add_u32 s25, s24, 6
        s_lshr_b32 s24, s24, 2
        s_lshr_b32 s25, s25, 2
        v_and_b32 v10, 3, v0
        v_add_u32 v10, s24, v10
        v_min_u32 v10, s25, v10
        v_lshrrev_b32 v9, 2, v0
        v_lshl_add_u32 v9, v9, 4, v10
        v_lshlrev_b32 v9, 7, v9
        v_mov_b32 v14, 0x01010101
        s_mov_b32 s26, 20000
        """)
        A.label(Ld)
        A(f"""
        v_cmp_ne_u32 vcc, v14, v20
        s_cbranch_vccz {Lb}
        s_sleep 4
        buffer_load_dword v20, v21, s[20:23], 0 offen sc1
        s_sub_u32 s26, s26, 1
        s_cmp_gt_i32 s26, 0
        s_waitcnt vmcnt(0)
        s_cbranch_scc1 {Ld}
        """)
        A.label(Lb)
        A(f"""
        buffer_load_dword v12, v9, s[16:19], 0 offen sc1
        s_waitcnt vmcnt(0)
        v_cmp_ne_u32 vcc, 1, v12
        s_cbranch_vccz {Lx}
        s_sleep {BSLP}
        s_sub_u32 s26, s26, 1
        s_cmp_gt_i32 s26, 0
        s_cbranch_scc1 {Lb}
        """)
        A.label(Lx)
    def loader(nb):
        n = (0 if 'A' in SKIP else 4) + (0 if 'B' in SKIP else nb)
        def pro(skip):
            A("s_mov_b32 s49, 5")
            L0 = A.newlabel("k2pro")
            A.label(L0)
            issue(nb, skip)
            A(f"""
            s_sub_u32 s49, s49, 1
            s_cmp_lg_u32 s49, 0
            s_cbranch_scc1 {L0}
            """)
        pro("B" if ONE else SKIP)
        if FUSE: K23.setup(A)
        if ONE:
            if nb == 4: bpoll()
            A("""
            s_mov_b32 s46, 0
            s_mov_b32 s51, 0
            s_lshl_b32 s47, s50, 7
            s_mul_i32 s48, s50, 14336
            s_barrier
            """)
            pro("A")
            A(f"s_waitcnt vmcnt({4*nb})\ns_barrier")
            for b in (1, 2, 3):
                A(f"s_waitcnt vmcnt({(4-b)*nb + (b-1)*n})\ns_barrier")
                issue(nb)
            A("s_mov_b32 s49, 24")
        else: A(f"""
        s_waitcnt vmcnt({4*n})
        s_barrier
        s_mov_b32 s49, 27
        """)
        L1 = A.newlabel("k2ldloop")
        A.label(L1)
        A(f"s_waitcnt vmcnt({3*n})")
        A("s_barrier")
        issue(nb)
        A(f"""
        s_sub_u32 s49, s49, 1
        s_cmp_lg_u32 s49, 0
        s_cbranch_scc1 {L1}
        """)
        ex = 0
        if WPF:
            ex = 1
            A(f"""
            s_lshl_b32 s50, s35, 2
            s_add_u32 s50, s50, s42
            s_mul_i32 s50, s50, {49*128}
            s_add_u32 s16, s32, {WS_WOT}
            s_addc_u32 s17, s33, 0
            s_mov_b32 s18, {WOT_BYTES}
            s_mov_b32 s19, 0x20000
            v_min_u32 v9, 48, v0
            v_lshlrev_b32 v9, 7, v9
            buffer_load_dword v10, v9, s[16:19], s50 offen
            """)
        if FUSE:
            Lnt = A.newlabel("k2nt")
            A(f"s_cmp_ge_u32 s53, 7\ns_cbranch_scc1 {Lnt}")
            wl = K23.wot_loads()
            done = 0
            for i, w in enumerate((3, 2, 1, 0)):
                A(f"s_waitcnt vmcnt({w*n + done})")
                A("s_barrier")
                k = min(7, WLE - done)
                for x in wl[done:done+k]: A(x)
                done += k
            A(f"s_branch {L3}")
            A.label(Lnt)
        for w in (3, 2, 1, 0):
            A(f"s_waitcnt vmcnt({w*n + ex})")
            A("s_barrier")
        if FUSE:
            if WLE < 28: A("s_barrier")
            A("s_barrier")
            if not WFL:
                A("s_barrier")
                K23.flag_store(A)
        A("s_endpgm")
    if FUSE:
        import k23 as K23
    L3 = A.newlabel("k2p3")
    loader(4)
    A.label(Lcls)
    loader(3)
    if FUSE:
        A.label(L3)
        A("s_barrier")
        if WLE < 28:
            A("s_barrier")
            for x in K23.wot_loads()[WLE:]: A(x)
        if not WFL:
            A("s_barrier")
            K23.flag_store(A)
        K23.body(A)
    A.label(Lend)
    A("s_endpgm")
    return None if ONE else kernel_desc(name, 256, 102, 256)
```

```python
import os, struct
from asmlib import *
from k2 import WS_BT, WS_Z1, WS_WOT, WS_G, WS_ST, BT_BYTES, ZH_BYTES, WOT_BYTES, WS_DBG, WS_FL, FLSTRIDE
import k2 as K2

K1_LDS = 163840
STAMP = os.environ.get("STAMP", "") == "1"
PUB_STEP = int(os.environ.get("K1_PUB", "10"))
PF = os.environ.get("K1_PF", "")
LMOD = os.environ.get("K1_LMOD", "")
PFN = int(os.environ.get("K1_PFN", "8"))
PFX = int(os.environ.get("K1_PFX", "1"))
PFMOD = os.environ.get("K1_PFMOD", "")
PROMO = os.environ.get("K1_PROMO", "") == "1"
SMOD = os.environ.get("K1_SMOD", "sc1")
PFS = int(os.environ.get("K1_PFS", "9"))
SM1 = os.environ.get("K1_SM1", SMOD)
SMA = os.environ.get("K1_SMA", SMOD)
SM2 = os.environ.get("K1_SM2", SMOD)
BARS = [int(x) for x in os.environ.get("K1_BARS", "0,1,2,3,4,5,6,7,9,12,15").split(",")]
WSCH = [int(x) for x in os.environ.get("K1_WSCH", "5,5,5,6,6,6,6,7,7,7,7,8,8,8").split(",")]
CLS = int(os.environ.get("K1_CLS", "3"))
FLS = int(os.environ.get("K1_FLS", "6"))
FCS = int(os.environ.get("K1_FCS", "12"))
DS = int(os.environ.get("K1_DS", "18"))
PFB = int(os.environ.get("K1_PFB", "0"))
PFG = int(os.environ.get("K1_PFG", "1"))
CPF = os.environ.get("K1_CPF", "1") == "1"
KROT = os.environ.get("K1_KROT", "1") == "1"
STB = [int(x) for x in os.environ.get("K1_STB", "0,7,10").split(",")]
PF0N = int(os.environ.get("K1_PF0N", "8"))
PFSP = int(os.environ.get("K1_PFSP", "32"))
W0F = K2.ONE and os.environ.get("K1_W0F", "1") == "1"
PFLO = int(os.environ.get("K1_PFLO", "0"))
HSM = os.environ.get("K1_HSM", "sc1")
FILLMOD = "sc1" if K2.ONE else os.environ.get("K1_FILLMOD", "nt")
PF1N = int(os.environ.get("K1_PF1N", "8"))

def f32(x): return "0x%08x" % struct.unpack("<I", struct.pack("<f", x))[0]
C0 = -2.0 * 0.7978845608028654 * 1.4426950408889634
C1 = C0 * 0.044715
LOG2E = 1.4426950408889634

def slot(ci): return (ci + 14) % 20

def done_load(A, gemm=0):
    L = A.newlabel("k1dl")
    A(f"""
    s_cmp_lg_u32 s54, 4
    s_cbranch_scc1 {L}
    s_mov_b32 s48, s20
    s_mov_b32 s49, s21
    s_movk_i32 s50, 256
    s_mov_b32 s51, 0x20000
    v_min_u32 v21, 7, v0
    v_lshlrev_b32 v21, 2, v21
    v_add_u32 v21, {K2.DOFF}, v21
    buffer_load_dword v20, v21, s[48:51], 0 offen sc1
    """)
    A.label(L)

def gen_k1(A, name="k1_kernel"):
    kernel_header(A, name)
    Lend = A.newlabel("k1end")
    Lhelp = A.newlabel("k1help")
    SX, SW, SD, SBT, SZ1, SST, SDB = 24, 28, 32, 36, 40, 44, 48
    CPF_CODE = f"s_cbranch_scc1 {Lhelp}" if not CPF else f"""
    s_cbranch_scc0 L_k1gemm
    s_getpc_b64 s[60:61]
    L_cpf:
    s_sub_u32 s60, s60, L_cpf-k1_kernel
    s_subb_u32 s61, s61, 0
    s_lshl_b32 s55, s54, 13
    v_lshlrev_b32 v1, 7, v0
    v_add_u32 v1, s55, v1
    v_min_u32 v1, L_code_end-k1_kernel-4, v1
    global_load_dword v120, v1, s[60:61]
    s_branch {Lhelp}
    L_k1gemm:
    """
    A(f"""
    s_cmp_ge_u32 s2, 256
    s_cbranch_scc1 {Lend}
    """)
    if STAMP: A("s_memrealtime s[80:81]")
    A(f"""
    s_load_dwordx2 s[4:5], s[0:1], 0
    s_load_dwordx4 s[8:11], s[0:1], 24
    s_load_dwordx2 s[12:13], s[0:1], 48
    s_load_dwordx4 s[16:19], s[0:1], 72
    s_load_dwordx4 s[20:23], s[0:1], 96
    s_and_b32 s52, s2, 7
    s_lshr_b32 s53, s2, 3
    v_lshrrev_b32 v1, 6, v0
    v_and_b32 v0, 63, v0
    v_readfirstlane_b32 s54, v1
    s_cmp_ge_u32 s53, 28
    {CPF_CODE}
    s_mul_i32 s55, s53, 37
    s_lshr_b32 s55, s55, 8
    s_mul_i32 s56, s55, 7
    s_sub_u32 s56, s53, s56
    s_lshr_b32 s57, s52, 1
    s_lshl_b32 s57, s57, 2
    s_add_u32 s57, s57, s55
    s_and_b32 s59, s52, 1
    s_mul_i32 s58, s59, 7
    s_add_u32 s58, s58, s56
    """)
    VST, VSL = 2, 3
    VXA = [4, 5, 6, 7]
    VT2, VT1, VX0, VX1, VW, VD, VBT, VZ1 = 8, 9, 10, 11, 12, 13, 14, 15
    XF = 16
    WF = [128, 144]
    ACC2, ACC1, ACCA = 160, 176, 192
    T = 208
    VC1 = 255
    A(f"""
    v_lshrrev_b32 v{T}, 3, v0
    v_lshrrev_b32 v{T+1}, 2, v{T}
    v_lshlrev_b32 v{T+1}, 3, v{T+1}
    v_and_b32 v{T+2}, 3, v{T}
    v_add_u32 v{T+1}, v{T+1}, v{T+2}
    v_and_b32 v{T+2}, 7, v0
    v_lshrrev_b32 v{T+3}, 1, v{T}
    v_xor_b32 v{T+4}, v{T+2}, v{T+3}
    v_lshlrev_b32 v{T+4}, 4, v{T+4}
    s_lshr_b32 s60, s54, 1
    s_and_b32 s61, s54, 1
    s_lshl_b32 s62, s60, 5
    s_lshl_b32 s63, s61, 2
    s_add_u32 s62, s62, s63
    v_add_u32 v{T+5}, s62, v{T+1}
    v_mul_u32_u24 v{T+5}, 896, v{T+5}
    v_add_u32 v{VX0}, v{T+5}, v{T+4}
    v_xor_b32 v{T+6}, 64, v{T+4}
    v_add_u32 v{VX1}, v{T+5}, v{T+6}
    v_add_u32 v{VX1}, {16*896 - 1024}, v{VX1}
    s_lshl_b32 s62, s54, 3
    v_add_u32 v{T+5}, s62, v{T}
    v_mul_u32_u24 v{T+5}, 3584, v{T+5}
    v_and_b32 v{T+6}, 1, v{T+3}
    v_lshlrev_b32 v{T+6}, 2, v{T+6}
    v_xor_b32 v{T+6}, v{T+2}, v{T+6}
    v_lshl_add_u32 v{VW}, v{T+6}, 4, v{T+5}
    s_waitcnt lgkmcnt(0)
    s_mul_i32 s62, s57, {128*896}
    s_add_u32 s{SX}, s4, s62
    s_addc_u32 s{SX+1}, s5, 0
    s_mov_b32 s{SX+2}, {128*896}
    s_mov_b32 s{SX+3}, 0x20000
    s_mov_b32 s{SW}, s12
    s_mov_b32 s{SW+1}, s13
    s_mov_b32 s{SW+2}, {448*3584}
    s_mov_b32 s{SW+3}, 0x20000
    s_lshl_b32 s64, s54, 11
    s_lshl_b32 s65, s54, 10
    s_lshl_b32 s66, s58, 7
    s_add_u32 s67, s66, 1792
    s_mov_b32 s68, 0
    s_add_u32 s69, s65, {14*8192}
    s_mov_b32 s70, 6
    """)
    issued = []
    def wrap(r, lim, n):
        if not KROT: return []
        return [f"s_cmp_ge_u32 s{r}, s{lim}", f"s_cselect_b32 s99, s{lim}, 0", f"s_sub_u32 s{r}, s{r}, s99"]
    def xdma(kc):
        issued.extend([("x", kc), ("x", kc)])
        return ["s_mov_b32 m0, s64", "s_add_u32 s64, s64, 16384",
                f"buffer_load_dwordx4 v{VX0}, s[{SX}:{SX+3}], s94 offen {LMOD} lds",
                f"buffer_load_dwordx4 v{VX1}, s[{SX}:{SX+3}], s94 offen offset:1024 {LMOD} lds",
                "s_add_u32 s94, s94, 128"] + wrap(94, 96, 896)
    def dma(ci):
        issued.append(("w", ci))
        part, kc = divmod(ci, 7)
        r = [f"s_add_u32 m0, s65, {slot(ci)*8192}"]
        if part == 0:
            r += ["s_nop 0", f"buffer_load_dwordx4 v{VW}, s[{SW}:{SW+3}], s67 offen {LMOD} lds", f"s_add_u32 s67, s67, {64*3584}"] + wrap(67, 97, 448*3584)
        elif part == 1:
            r += ["s_nop 0", f"buffer_load_dwordx4 v{VW}, s[{SW}:{SW+3}], s66 offen {LMOD} lds", f"s_add_u32 s66, s66, {64*3584}"] + wrap(66, 97, 448*3584)
        else:
            r += ["s_nop 0", f"buffer_load_dwordx4 v{VD}, s[{SD}:{SD+3}], s68 offen {LMOD} lds", "s_add_u32 s68, s68, 128"] + wrap(68, 96, 896)
        return r
    if KROT:
        A(f"""
        s_lshl_b32 s62, s57, 1
        s_add_u32 s62, s62, s58
        s_mul_i32 s63, s62, 37
        s_lshr_b32 s63, s63, 8
        s_mul_i32 s63, s63, 7
        s_sub_u32 s62, s62, s63
        s_lshl_b32 s94, s62, 7
        s_mov_b32 s98, s94
        s_mul_i32 s62, s62, {64*3584}
        s_add_u32 s66, s66, s62
        s_add_u32 s67, s67, s62
        s_movk_i32 s96, 896
        s_mov_b32 s97, {448*3584}
        """)
    else:
        A("s_mov_b32 s94, 0")
    for x in xdma(0) + dma(0) + xdma(1): A(x)
    A(f"""
    s_lshr_b32 s62, s54, 2
    s_lshl_b32 s62, s62, 5
    s_lshl_b32 s63, s61, 4
    s_add_u32 s62, s62, s63
    s_and_b32 s63, s60, 1
    s_lshl_b32 s63, s63, 2
    s_add_u32 s62, s62, s63
    v_add_u32 v{T+5}, s62, v{T+1}
    v_mul_u32_u24 v{T+5}, 896, v{T+5}
    s_lshl_b32 s63, s61, 6
    v_xor_b32 v{T+6}, s63, v{T+4}
    v_add_u32 v{VD}, v{T+5}, v{T+6}
    s_cmp_eq_u32 s59, 0
    s_cselect_b32 s8, s8, s10
    s_cselect_b32 s9, s9, s11
    s_mul_i32 s62, s56, {64*896}
    s_add_u32 s{SD}, s8, s62
    s_addc_u32 s{SD+1}, s9, 0
    s_mov_b32 s{SD+2}, {64*896}
    s_mov_b32 s{SD+3}, 0x20000
    s_add_u32 s{SBT}, s22, {WS_BT}
    s_addc_u32 s{SBT+1}, s23, 0
    s_mov_b32 s{SBT+2}, {BT_BYTES}
    s_mov_b32 s{SBT+3}, 0x20000
    s_add_u32 s{SZ1}, s22, {WS_Z1}
    s_addc_u32 s{SZ1+1}, s23, 0
    s_mov_b32 s{SZ1+2}, {ZH_BYTES}
    s_mov_b32 s{SZ1+3}, 0x20000
    s_mul_i32 s62, s57, 28672
    s_add_u32 s62, s62, {WS_ST}
    s_add_u32 s{SST}, s22, s62
    s_addc_u32 s{SST+1}, s23, 0
    s_mov_b32 s{SST+2}, 28672
    s_mov_b32 s{SST+3}, 0x20000
    s_mov_b32 s{SDB}, s20
    s_mov_b32 s{SDB+1}, s21
    s_mov_b32 s{SDB+2}, 256
    s_mov_b32 s{SDB+3}, 0x20000
    s_mov_b32 s68, {"s98" if KROT else "0"}
    """)
    A(f"""
    v_and_b32 v{T}, 31, v0
    v_lshrrev_b32 v{T+1}, 5, v0
    v_bfe_u32 v{T+2}, v0, 1, 3
    v_xor_b32 v{T+2}, v{T+2}, v{T+1}
    v_lshlrev_b32 v{T+2}, 4, v{T+2}
    v_lshl_add_u32 v{T+2}, v{T}, 7, v{T+2}
    s_lshl_b32 s62, s60, 12
    v_add_u32 v{VXA[0]}, s62, v{T+2}
    v_xor_b32 v{VXA[1]}, 32, v{VXA[0]}
    v_xor_b32 v{VXA[2]}, 64, v{VXA[0]}
    v_xor_b32 v{VXA[3]}, 96, v{VXA[0]}
    v_bfe_u32 v{T+2}, v0, 2, 2
    v_lshl_add_u32 v{T+3}, v{T+1}, 3, v{T+2}
    v_lshlrev_b32 v{T+3}, 7, v{T+3}
    v_lshrrev_b32 v{T+2}, 1, v{T+2}
    v_xor_b32 v{T+2}, s61, v{T+2}
    v_lshl_add_u32 v{T+3}, v{T+2}, 6, v{T+3}
    v_bfe_u32 v{T+4}, v0, 4, 1
    v_and_b32 v{T+5}, 3, v0
    v_lshlrev_b32 v{T+6}, 5, v{T+4}
    v_lshl_add_u32 v{T+6}, v{T+5}, 3, v{T+6}
    v_add_u32 v{VT2}, v{T+3}, v{T+6}
    v_add_u32 v{VT2}, {14*8192}, v{VT2}
    v_lshrrev_b32 v{T+6}, 1, v{T+5}
    v_lshlrev_b32 v{T+6}, 5, v{T+6}
    v_lshl_add_u32 v{T+6}, v{T+4}, 4, v{T+6}
    v_and_b32 v{T+5}, 1, v{T+5}
    v_lshl_add_u32 v{T+6}, v{T+5}, 3, v{T+6}
    v_add_u32 v{VT1}, v{T+3}, v{T+6}
    """)
    def tile_off(dst, treg):
        return f"""
        s_mul_i32 s62, s{treg}, 37
        s_lshr_b32 s62, s62, 8
        s_mul_i32 s63, s62, 7
        s_sub_u32 s63, s{treg}, s63
        s_add_u32 s71, s63, 6
        s_cmp_ge_u32 s71, 7
        s_cselect_b32 s72, 7, 0
        s_sub_u32 s71, s71, s72
        s_bitcmp1_b32 s62, 0
        s_cselect_b32 s63, s71, s63
        s_mul_i32 s62, s62, {32*14336}
        s_lshl_b32 s63, s63, 10
        s_add_u32 s{dst}, s62, s63
        """
    A(f"""
    s_lshl_b32 s73, s58, 1
    s_add_u32 s73, s73, s61
    s_lshl_b32 s74, s73, 1
    """)
    A(tile_off(75, 74))
    A("s_add_u32 s74, s74, 1")
    A(tile_off(76, 74))
    A(f"""
    s_sub_u32 s76, s76, s75
    v_and_b32 v{T+5}, 15, v0
    v_lshl_add_u32 v{T+5}, v{T+1}, 4, v{T+5}
    v_lshlrev_b32 v{T+5}, 4, v{T+5}
    v_mul_lo_u32 v{T+6}, v{T+4}, s76
    v_add3_u32 v{VBT}, v{T+5}, v{T+6}, s75
    v_mul_u32_u24 v{T+6}, 28672, v{T+4}
    v_add_u32 v{VZ1}, v{T+5}, v{T+6}
    s_lshl_b32 s62, s57, 2
    s_add_u32 s62, s62, s60
    s_mul_i32 s75, s62, 7168
    s_add_u32 s76, s75, {8*32*14336}
    s_mul_i32 s77, s62, {2*28*1024}
    s_lshl_b32 s63, s73, 10
    s_add_u32 s77, s77, s63
    v_bfe_u32 v{T+5}, v0, 2, 2
    v_lshlrev_b32 v{T+5}, 6, v{T+5}
    v_lshl_add_u32 v{T+5}, v{T+1}, 5, v{T+5}
    v_lshl_add_u32 v{T+5}, v{T+4}, 4, v{T+5}
    s_lshl_b32 s62, s60, 8
    s_add_u32 s63, s63, s62
    v_add_u32 v{VST}, s63, v{T+5}
    v_lshrrev_b32 v{T+5}, 4, v0
    v_lshlrev_b32 v{T+5}, 10, v{T+5}
    v_and_b32 v{T+6}, 15, v0
    v_lshl_add_u32 v{T+5}, v{T+6}, 4, v{T+5}
    v_add_u32 v{VSL}, s62, v{T+5}
    v_mov_b32 v{VC1}, {f32(C1)}
    s_mov_b32 s78, 0x11111111
    s_mov_b32 s79, 0x11111111
    s_sub_u32 s73, s61, s60
    s_lshl_b32 s73, s73, 12
    """)

    PFX_LOAD = """
    s_load_dwordx4 s[4:7], s[0:1], 8
    s_load_dwordx2 s[8:9], s[0:1], 56
    """
    def pfx(lo0, n0, lo1, n1):
        mod = PFMOD
        def seg(n):
            if PFG == 1: return ""
            per = n // PFG
            lg = per.bit_length() - 1
            assert per == 1 << lg
            sh = (PFSP // PFG).bit_length() - 1
            return f"v_lshrrev_b32 v1, {lg}, v253\nv_and_b32 v253, {per-1}, v253\nv_lshl_add_u32 v253, v1, {sh}, v253"
        Lr1 = A.newlabel("k1pr1"); Lpe = A.newlabel("k1pe")
        A(f"""
        s_lshl_b32 s62, s53, 3
        s_add_u32 s62, s62, s54
        s_mov_b32 s10, 0x800000
        s_mov_b32 s11, 0x20000
        s_cmp_ge_u32 s52, {0 if K2.MAP2 else 4}
        s_cbranch_scc1 {Lr1}
        s_lshl_b32 s62, s62, 13
        s_lshl_b32 s63, s52, 21
        s_add_u32 s62, s62, s63
        v_and_b32 v253, 31, v0
        v_min_u32 v253, {n0 - 1}, v253
        {seg(n0)}
        v_lshrrev_b32 v1, 5, v0
        v_lshlrev_b32 v1, 12, v1
        v_lshl_add_u32 v1, v253, 7, v1
        buffer_load_dword v254, v1, s[8:11], s62 offen offset:{128*lo0} {mod}
        s_branch {Lpe}
        """)
        A.label(Lr1)
        A(f"""
        s_bitcmp1_b32 s52, 1
        s_cselect_b32 s4, s6, s4
        s_cselect_b32 s5, s7, s5
        s_cmp_ge_u32 s52, 4
        s_cselect_b32 s8, s4, s8
        s_cselect_b32 s9, s5, s9
        s_lshl_b32 s62, s62, 14
        s_and_b32 s63, s52, 1
        s_lshl_b32 s63, s63, 22
        s_add_u32 s62, s62, s63
        v_and_b32 v253, 15, v0
        v_min_u32 v253, {n1 - 1}, v253
        {seg(n1)}
        v_lshrrev_b32 v1, 4, v0
        v_lshlrev_b32 v1, 12, v1
        v_lshl_add_u32 v1, v253, 7, v1
        buffer_load_dword v254, v1, s[8:11], s62 offen offset:{128*lo1} {mod}
        """)
        A.label(Lpe)
        issued.append(("pf", 0))
    def reads(ci):
        part, kc = divmod(ci, 7)
        wf = WF[ci & 1]
        r = []
        for ks in range(4):
            if part == 0:
                r.append(f"ds_read_b128 {v(XF + 16*kc + 4*ks, 4)}, v{VXA[ks]} offset:{(kc & 3)*16384}")
            if part < 2:
                base = VT2 if part == 0 else VT1
                so = (ci * 8192 if ci < 6 else 0) if part == 0 else slot(ci) * 8192
                for hf in range(2):
                    r.append(f"ds_read_b64_tr_b16 {v(wf + 4*ks + 2*hf, 2)}, v{base} offset:{so + ks*2048 + hf*512}")
            else:
                r.append(f"ds_read_b128 {v(wf + 4*ks, 4)}, v{VXA[ks]} offset:{(slot(ci) - 8)*8192}")
        return r
    def mfmas(ci):
        part, kc = divmod(ci, 7)
        wf = WF[ci & 1]
        acc = (ACC2, ACC1, ACCA)[part]
        r = []
        for ks in range(4):
            xf = v(XF + 16*kc + 4*ks, 4); w = v(wf + 4*ks, 4)
            c = "0" if (kc == 0 and ks == 0) else v(acc, 16)
            a_, b_ = (w, xf) if part == 1 else (xf, w)
            r.append(f"v_mfma_f32_32x32x16_bf16 {v(acc,16)}, {a_}, {b_}, {c}")
        return r
    def gelu(acc, tmp):
        r = []
        for g in range(4):
            vs = [acc + 4*g + k for k in range(4)]
            ts = [tmp + (4*g + k) % 8 for k in range(4)]
            r += [f"v_mul_f32 v{t}, v{x}, v{x}" for x, t in zip(vs, ts)]
            r += [f"v_fmaak_f32 v{t}, v{VC1}, v{t}, {f32(C0)}" for t in ts]
            r += [f"v_mul_f32 v{t}, v{t}, v{x}" for x, t in zip(vs, ts)]
            r += [f"v_exp_f32 v{t}, v{t}" for t in ts]
            r += [f"v_add_f32 v{t}, 1.0, v{t}" for t in ts]
            r += [f"v_rcp_f32 v{t}, v{t}" for t in ts]
            r += [f"v_mul_f32 v{x}, v{x}, v{t}" for x, t in zip(vs, ts)]
        return r
    def reduce16(src, tmp):
        r = []
        d = "row_mask:0xf bank_mask:"
        for k in range(8):
            r.append(f"v_add_f32_dpp v{tmp+k}, v{src+k}, v{src+k} row_ror:8 {d}0x3")
        for k in range(8):
            r.append(f"v_add_f32_dpp v{tmp+k}, v{src+k+8}, v{src+k+8} row_ror:8 {d}0xc")
        for k in range(4):
            r.append(f"v_add_f32_dpp v{tmp+k}, v{tmp+k}, v{tmp+k} row_half_mirror {d}0x5")
        for k in range(4):
            r.append(f"v_add_f32_dpp v{tmp+k}, v{tmp+k+4}, v{tmp+k+4} row_half_mirror {d}0xa")
        for k in range(2):
            r.append(f"v_permlane16_swap_b32 v{tmp+k}, v{tmp+k+2}")
        for k in range(2):
            r.append(f"v_add_f32 v{tmp+k}, v{tmp+k}, v{tmp+k+2}")
        return r
    def quad(regs):
        r = []
        for qp in ("[1,0,3,2]", "[2,3,0,1]"):
            for x in regs:
                r.append(f"v_add_f32_dpp v{x}, v{x}, v{x} quad_perm:{qp} row_mask:0xf bank_mask:0xf")
        return r
    def pack_store(acc, order, out, vaddr, srd, so, smod):
        r = []
        for half in range(2):
            ga, gb = order[half]
            o = out + 4*half
            r += [f"v_cvt_pk_bf16_f32 v{o}, v{acc+4*ga}, v{acc+4*ga+1}",
                  f"v_cvt_pk_bf16_f32 v{o+1}, v{acc+4*ga+2}, v{acc+4*ga+3}",
                  f"v_cvt_pk_bf16_f32 v{o+2}, v{acc+4*gb}, v{acc+4*gb+1}",
                  f"v_cvt_pk_bf16_f32 v{o+3}, v{acc+4*gb+2}, v{acc+4*gb+3}",
                  f"buffer_store_dwordx4 {v(o,4)}, v{vaddr}, s[{srd}:{srd+3}], s{so} offen offset:{512*half} {smod}"]
        return r
    SQ = T + 8
    RS = T + 24
    RQ = T + 32
    PK = T + 40
    F2 = gelu(ACC2, T)
    F2 += [f"v_mul_f32 v{SQ+k}, v{ACC2+k}, v{ACC2+k}" for k in range(16)]
    ra, rb_ = reduce16(ACC2, RS), reduce16(SQ, RQ)
    for x, y in zip(ra, rb_): F2 += [x, y]
    F2 += quad([RS, RQ, RS+1, RQ+1])
    F2 += [f"v_mov_b32 v{PK}, v{RS}", f"v_mov_b32 v{PK+1}, v{RQ}", f"v_mov_b32 v{PK+2}, v{RS+1}", f"v_mov_b32 v{PK+3}, v{RQ+1}"]
    if not W0F: F2 += ["FLAGCHECK"]
    F2 += [f"s_mov_b64 exec, s[78:79]\nbuffer_store_dwordx4 {v(PK,4)}, v{VST}, s[{SST}:{SST+3}], 0 offen sc1\ns_mov_b64 exec, -1"]
    F1 = gelu(ACC1, T) + pack_store(ACC1, ((0, 1), (2, 3)), T + 8, VZ1, SZ1, 77, SM1)

    bars = sorted(set(BARS))
    assert DS > max(WSCH) and FLS < PUB_STEP
    def split(lst, n):
        k, m = divmod(len(lst), n)
        out, i = [], 0
        for g in range(n):
            e = i + k + (1 if g < m else 0)
            out.append(lst[i:e]); i = e
        return out
    def pending_after(tags):
        last = max(i for i, t in enumerate(issued) if t in tags)
        return len(issued) - 1 - last
    def emit(x):
        if x == "FLAGCHECK":
            if W0F: A(f"s_cmp_lg_u32 s54, 0\ns_cbranch_scc1 {Lok}")
            A(f"s_waitcnt vmcnt({pending_after([('f', 0)])})")
            A.label(Lp)
            if K2.ONE: A(f"""
            v_cmp_ne_u32 vcc, s95, v{FG}
            s_cbranch_vccz {Lok}
            s_sleep 8
            buffer_load_dword v{FG}, v{FG+1}, s[{SDB}:{SDB+3}], 0 offen sc1
            """)
            else: A(f"""
            v_readfirstlane_b32 s62, v{FG}
            s_cmp_eq_u32 s62, 0x0101
            s_cbranch_scc1 {Lok}
            s_sleep 8
            v_mov_b32 v{FG}, 0
            buffer_load_ushort v{FG}, v{FG}, s[{SDB}:{SDB+3}], s95 offen sc1
            """)
            A(f"""
            s_sub_u32 s70, s70, 1
            s_cmp_lg_u32 s70, 0
            s_waitcnt vmcnt(0)
            s_cbranch_scc1 {Lp}
            """)
            A.label(Lok)
            return
        if "buffer_store" in x: issued.append(("st", 0))
        A(x)
    n2 = 4 * (PUB_STEP - 8) - 1
    f2g = [[]] + split(F2, n2)
    f1g = [[]] + split(F1, 27)
    Lnf = A.newlabel("k1nf")
    Lp = A.newlabel("k1poll")
    Lok = A.newlabel("k1ok")
    LD = T + 16
    for x in dma(1): A(x)
    FG = ACCA
    def stat_loads():
        for i in range(7):
            so = "0" if i == 0 else f"s{62+i}"
            A(f"buffer_load_dwordx4 {v(LD+4*i,4)}, v{VSL}, s[{SST}:{SST+3}], {so} offen sc1")
    for st in range(22):
        if W0F and st == 9:
            assert st in bars and FLS < 9 <= PUB_STEP - 1
            emit("FLAGCHECK")
        if st in bars:
            nxt = min([b for b in bars if b > st] + [21])
            need = [("w", c) for c in range(st, nxt)] + ([("x", st)] if st < 7 else [])
            assert all(t in issued for t in need), (st, need)
            A(f"s_waitcnt vmcnt({pending_after(need)})")
            A("s_barrier")
        if st == 4:
            for r in VXA: A(f"v_add_u32 v{r}, 0x10000, v{r}")
        if st == 6: A(f"v_add_u32 v{VT2}, {-14*8192 & 0xffffffff:#x}, v{VT2}")
        if st == 7:
            for r in VXA: A(f"v_add_u32 v{r}, s73, v{r}")
        if STAMP and st == STB[0]: A("s_memrealtime s[82:83]")
        if STAMP and st == STB[1]: A("s_memrealtime s[84:85]")
        if STAMP and st == STB[2]: A("s_memrealtime s[90:91]")
        if PFX == 1 and st == PFS - 1: A(PFX_LOAD)
        if PFX == 1 and st == PFS: pfx(PFLO, PF0N, PFLO, PF1N)
        if st == DS:
            for i in range(1, 7): A(f"s_movk_i32 s{62+i}, {4096*i}")
            stat_loads()
            for i in range(7): issued.append(("s", i))
            if PFX and PFB:
                pfx(PF0N, min(2*PFB, 32 - PF0N), PF1N, PFB)
                A("s_movk_i32 s63, 4096")
        pre = []
        if st <= 4: pre = xdma(st + 2) + dma(st + 2)
        for c in range(7, 21):
            if WSCH[c - 7] == st:
                assert st >= ((c - 6) // 2 + 1 if c < 20 else 1) and (c == 20 or (c - 6) // 2 + 1 in bars)
                pre += dma(c)
        if st == FLS and K2.ONE:
            pre += ["s_mov_b32 s95, 0x01010101", "s_mov_b32 s70, 5000", f"v_and_b32 v{FG+1}, 7, v0", f"v_lshlrev_b32 v{FG+1}, 2, v{FG+1}"] + ([f"v_lshl_add_u32 v{FG+1}, s54, 8, v{FG+1}"] if W0F else []) + [
                    f"buffer_load_dword v{FG}, v{FG+1}, s[{SDB}:{SDB+3}], 0 offen sc1"]
            issued.append(("f", 0))
        elif st == FLS:
            pre += [f"s_lshl_b32 s95, s57, 1", "s_mov_b32 s70, 5000", f"v_mov_b32 v{FG}, 0",
                    f"buffer_load_ushort v{FG}, v{FG}, s[{SDB}:{SDB+3}], s95 offen sc1"]
            issued.append(("f", 0))
        rd = reads(st) if st <= 20 else []
        mf = mfmas(st - 1) if st >= 1 else []
        if not mf:
            for x in rd + pre: A(x)
        else:
            rdg = split(rd, 3) + [[]] if st > 6 else [rd, [], [], []]
            for g in range(4):
                A(mf[g])
                for x in rdg[g]: A(x)
                if g == (2 if st > 6 else 1):
                    for x in pre: A(x)
                gi = 4*(st - 8) + g
                if 0 <= gi < len(f2g):
                    for x in f2g[gi]: emit(x)
                gi = 4*(st - 15) + g
                if 0 <= gi < len(f1g):
                    for x in f1g[gi]: emit(x)
        if rd: A("s_waitcnt lgkmcnt(0)")
    if STAMP: A("s_memrealtime s[86:87]")
    A(f"""
    v_and_b32 v{T}, 15, v0
    v_bfe_u32 v{T+1}, v0, 4, 1
    v_lshlrev_b32 v{T}, 4, v{T}
    v_lshl_add_u32 v{T}, v{T+1}, 3, v{T}
    s_lshl_b32 s62, s54, 8
    s_add_u32 s62, s62, {15*8192}
    v_add_u32 v{T}, s62, v{T}
    v_lshrrev_b32 v{T+1}, 5, v0
    v_lshlrev_b32 v{T+1}, 5, v{T+1}
    v_add_u32 v{T+1}, s62, v{T+1}
    """)
    Lr = A.newlabel("k1re")
    Lgo = A.newlabel("k1go")
    A(f"s_waitcnt vmcnt({pending_after([('s', 6)])})")
    A.label(Lr)
    A(f"v_min_f32 v{T+2}, v{LD+1}, v{LD+3}")
    for i in range(1, 7):
        A(f"v_min3_f32 v{T+2}, v{T+2}, v{LD+4*i+1}, v{LD+4*i+3}")
    A(f"""
    v_cmp_gt_f32 vcc, 0, v{T+2}
    s_nop 1
    s_cmp_eq_u64 vcc, 0
    s_cbranch_scc1 {Lgo}
    s_sleep 4
    """)
    stat_loads()
    A(f"""
    s_sub_u32 s70, s70, 1
    s_cmp_gt_i32 s70, 0
    s_waitcnt vmcnt(0)
    s_cbranch_scc1 {Lr}
    """)
    A.label(Lgo)
    if STAMP: A("s_memrealtime s[92:93]")
    for i in range(1, 7):
        for k in range(4):
            A(f"v_add_f32 v{LD+k}, v{LD+k}, v{LD+4*i+k}")
    A(f"""
    v_permlane16_swap_b32 v{LD}, v{LD+2}
    v_permlane16_swap_b32 v{LD+1}, v{LD+3}
    v_add_f32 v{LD}, v{LD}, v{LD+2}
    v_add_f32 v{LD+1}, v{LD+1}, v{LD+3}
    v_mov_b32 v{LD+2}, v{LD}
    v_mov_b32 v{LD+3}, v{LD+1}
    v_permlane32_swap_b32 v{LD}, v{LD+2}
    v_permlane32_swap_b32 v{LD+1}, v{LD+3}
    v_add_f32 v{LD}, v{LD}, v{LD+2}
    v_add_f32 v{LD+1}, v{LD+1}, v{LD+3}
    v_mul_f32 v{LD}, {f32(1.0/896)}, v{LD}
    v_mul_f32 v{LD+1}, {f32(1.0/896)}, v{LD+1}
    v_fma_f32 v{LD+1}, -v{LD}, v{LD}, v{LD+1}
    v_max_f32 v{LD+1}, 0, v{LD+1}
    v_add_f32 v{LD+1}, {f32(1e-5)}, v{LD+1}
    v_rsq_f32 v{LD+2}, v{LD+1}
    s_nop 0
    v_mul_f32 v{LD+3}, v{LD}, v{LD+2}
    v_xor_b32 v{LD+3}, 0x80000000, v{LD+3}
    ds_write_b64 v{T}, {v(LD+2,2)}
    s_waitcnt lgkmcnt(0)
    """)
    NB = 48
    for g in range(4):
        for hh in range(2):
            A(f"ds_read_b128 {v(NB + 8*g + 4*hh, 4)}, v{T+1} offset:{64*g + 16*hh}")
    for x in pack_store(ACCA, ((0, 2), (1, 3)), T + 24, VBT, SBT, 76, SMA): A(x)
    for g in (0, 2, 1, 3):
        A(f"s_waitcnt lgkmcnt({2*(3-g) if g in (0,) else (2 if g == 2 else 0)})")
        for r in range(4):
            A(f"v_fma_f32 v{ACC2+4*g+r}, v{ACC2+4*g+r}, v{NB+8*g+2*r}, v{NB+8*g+2*r+1}")
    for x in pack_store(ACC2, ((0, 2), (1, 3)), T + 32, VBT, SBT, 75, SM2): A(x)
    if K2.ONE:
        assert SM1 == SMA == SM2 == HSM == "sc1" and not K2.MAP2
        A("v_mov_b32 v20, 0x01010101")
    if STAMP:
        A(f"""
        s_waitcnt vmcnt(0)
        s_memrealtime s[88:89]
        s_waitcnt lgkmcnt(0)
        v_mov_b32 v8, s80
        v_mov_b32 v9, s82
        v_mov_b32 v10, s84
        v_mov_b32 v11, s86
        v_mov_b32 v12, s88
        v_mov_b32 v13, s70
        v_mov_b32 v14, s90
        v_mov_b32 v15, s92
        s_lshl_b32 s62, s2, 3
        s_add_u32 s62, s62, s54
        s_lshl_b32 s62, s62, 5
        s_add_u32 s62, s62, {WS_DBG + 0x100000}
        v_mov_b32 v7, s62
        global_store_dwordx4 v7, v[8:11], s[22:23]
        global_store_dwordx4 v7, v[12:15], s[22:23] offset:16
        """)
    if K2.ONE:
        A(f"""
        s_add_u32 s4, s22, {K2.WS_BF}
        s_addc_u32 s5, s23, 0
        s_mov_b32 s6, 32768
        s_mov_b32 s7, 0x20000
        s_lshl_b32 s62, s57, 4
        s_add_u32 s62, s62, s58
        s_lshl_b32 s62, s62, 7
        v_mov_b32 v22, 1
        v_mov_b32 v23, s62
        s_cmp_lg_u32 s54, 0
        s_waitcnt vmcnt({2 if STAMP else 0})
        s_barrier
        s_cbranch_scc1 L_k2entry
        s_mov_b64 exec, 1
        buffer_store_dword v22, v23, s[4:7], 0 offen sc1
        s_mov_b64 exec, -1
        s_branch L_k2entry
        """)
    else: A("s_endpgm")

    A.label(Lhelp)
    Lgate = A.newlabel("k1gate")
    A(f"""
    s_lshl_b32 s55, s52, 2
    s_add_u32 s55, s55, s53
    s_sub_u32 s55, s55, 28
    s_waitcnt lgkmcnt(0)
    s_mov_b32 s24, s4
    s_mov_b32 s25, s5
    s_mov_b32 s26, {2048*896}
    s_mov_b32 s27, 0x20000
    s_mov_b32 s28, s18
    s_mov_b32 s29, s19
    s_mov_b32 s30, 896
    s_mov_b32 s31, 0x20000
    s_mov_b32 s32, s16
    s_mov_b32 s33, s17
    s_mov_b32 s34, {896*896}
    s_mov_b32 s35, 0x20000
    s_add_u32 s36, s22, {WS_WOT}
    s_addc_u32 s37, s23, 0
    s_mov_b32 s38, {WOT_BYTES}
    s_mov_b32 s39, 0x20000
    s_add_u32 s40, s22, {WS_G}
    s_addc_u32 s41, s23, 0
    s_mov_b32 s42, 8192
    s_mov_b32 s43, 0x20000
    v_lshrrev_b32 v1, 3, v0
    s_lshl_b32 s56, s55, 6
    s_lshl_b32 s57, s54, 3
    s_add_u32 s56, s56, s57
    v_add_u32 v1, s56, v1
    v_and_b32 v2, 7, v0
    v_lshlrev_b32 v2, 4, v2
    v_mul_u32_u24 v3, 896, v1
    v_add_u32 v3, v3, v2
    """)
    def helper_pf():
        A(f"""
        s_load_dwordx4 s[64:67], s[0:1], 8
        s_load_dwordx2 s[68:69], s[0:1], 56
        s_lshl_b32 s62, s55, 18
        s_lshl_b32 s63, s54, 7
        s_add_u32 s62, s62, s63
        v_lshlrev_b32 v7, 12, v0
        s_mov_b32 s46, 0x800000
        s_mov_b32 s47, 0x20000
        s_waitcnt lgkmcnt(0)
        """)
        Lpfe = A.newlabel("k1pfe")
        for i in range((PFN + 7) // 8):
            if PFN - 8*i < 8:
                A(f"s_cmp_ge_u32 s54, {PFN - 8*i}\ns_cbranch_scc1 {Lpfe}")
            for b in (68, 64, 66):
                A(f"""
                s_mov_b32 s44, s{b}
                s_mov_b32 s45, s{b+1}
                buffer_load_dword v100, v7, s[44:47], s62 offen offset:{1024*i}
                """)
        A.label(Lpfe)
    A(f"""
    s_mul_i32 s56, s55, 14336
    s_mul_i32 s57, s54, 1792
    s_add_u32 s56, s56, s57
    s_add_u32 s56, s56, {WS_ST}
    s_add_u32 s44, s22, s56
    s_addc_u32 s45, s23, 0
    s_movk_i32 s46, 1792
    s_mov_b32 s47, 0x20000
    v_lshlrev_b32 v4, 4, v0
    v_mov_b32 v8, -1.0
    v_mov_b32 v9, -1.0
    v_mov_b32 v10, -1.0
    v_mov_b32 v11, -1.0
    buffer_store_dwordx4 v[8:11], v4, s[44:47], 0 offen sc1
    s_mov_b32 exec_hi, 0xffff
    buffer_store_dwordx4 v[8:11], v4, s[44:47], 0 offen offset:1024 sc1
    s_mov_b32 exec_hi, -1
    """)
    if K2.ONE: A(f"""
    s_add_u32 s44, s22, {K2.WS_BF}
    s_addc_u32 s45, s23, 0
    s_mov_b32 s46, 32768
    s_lshl_b32 s56, s55, 3
    s_add_u32 s56, s56, s54
    s_lshl_b32 s56, s56, 7
    v_mov_b32 v12, 0
    v_mov_b32 v13, s56
    s_mov_b64 exec, 1
    buffer_store_dword v12, v13, s[44:47], 0 offen sc1
    s_mov_b64 exec, -1
    """)
    for i in range(7):
        A(f"buffer_load_dwordx4 {v(16+4*i,4)}, v3, s[24:27], 0 offen offset:{128*i}")
        A(f"buffer_load_dwordx4 {v(48+4*i,4)}, v2, s[28:31], 0 offen offset:{128*i}")
    Lhf = A.newlabel("k1hf")
    A(f"""
    s_mov_b32 s48, s20
    s_mov_b32 s49, s21
    s_movk_i32 s50, 256
    s_mov_b32 s51, 0x20000
    v_mov_b32 v12, 1
    v_mov_b32 v13, s55
    s_waitcnt vmcnt(14)
    s_barrier
    s_cmp_lg_u32 s54, 0
    s_cbranch_scc1 {Lhf}
    s_mov_b64 exec, 1
    buffer_store_byte v12, v13, s[48:51], 0 offen sc1
    s_mov_b64 exec, -1
    """)
    A.label(Lhf)
    Lhz = A.newlabel("k1hz")
    A(f"""
    s_cmp_lg_u32 s55, 31
    s_cbranch_scc1 {Lhz}
    s_add_u32 s48, s22, {WS_FL}
    s_addc_u32 s49, s23, 0
    s_mov_b32 s50, {16*FLSTRIDE}
    v_mov_b32 v14, 0
    v_mov_b32 v15, 0
    """)
    if K2.FM:
        A("""
        s_lshl_b32 s56, s54, 12
        v_lshlrev_b32 v13, 4, v0
        v_mov_b32 v200, 0
        v_mov_b32 v201, 0
        v_mov_b32 v202, 0
        v_mov_b32 v203, 0
        """)
        for i in range(4): A(f"buffer_store_dwordx4 v[200:203], v13, s[48:51], s56 offen offset:{1024*i} {HSM}")
    else: A("""
    s_lshl_b32 s56, s54, 9
    v_lshlrev_b32 v13, 3, v0
    buffer_store_dwordx2 v[14:15], v13, s[48:51], s56 offen
    """)
    A.label(Lhz)
    A(f"""
    s_cmp_ge_u32 s55, 28
    s_cbranch_scc1 {Lgate}
    s_mul_i32 s58, s55, 28672
    s_lshl_b32 s59, s54, 10
    s_add_u32 s58, s58, s59
    v_lshlrev_b32 v4, 4, v0
    """)
    L3 = A.newlabel("k1h3")
    for p in range(4):
        if p == 3:
            A(f"s_cmp_ge_u32 s54, 4\ns_cbranch_scc1 {L3}")
        A(f"""
        s_add_u32 m0, s59, {8192*p}
        s_nop 0
        buffer_load_dwordx4 v4, s[32:35], s58 offen {LMOD} lds
        s_add_u32 s58, s58, 8192
        """)
    A.label(L3)
    A(f"""
    v_lshrrev_b32 v5, 2, v0
    v_mul_u32_u24 v5, 896, v5
    v_and_b32 v6, 3, v0
    v_lshl_add_u32 v5, v6, 4, v5
    s_lshr_b32 s60, s54, 1
    s_lshl_b32 s60, s60, 6
    s_and_b32 s61, s54, 1
    s_lshl_b32 s61, s61, 3
    s_add_u32 s60, s60, s61
    v_add_u32 v5, s60, v5
    s_mul_i32 s60, s54, 28
    s_add_u32 s60, s60, s55
    s_lshl_b32 s60, s60, 10
    s_waitcnt vmcnt(0)
    s_barrier
    """)
    for p in range(4):
        A(f"ds_read_b64_tr_b16 {v(80+4*p,2)}, v5 offset:{256*p}")
        A(f"ds_read_b64_tr_b16 {v(82+4*p,2)}, v5 offset:{256*p + 16*896}")
    for p in range(4):
        A(f"s_waitcnt lgkmcnt({2*(3-p)})")
        if p == 3:
            A(f"s_cmp_ge_u32 s54, 4\ns_cbranch_scc1 {Lgate}")
        A(f"buffer_store_dwordx4 {v(80+4*p,4)}, v4, s[36:39], s60 offen {HSM}")
        A(f"s_add_u32 s60, s60, {8*28*1024}")
    A.label(Lgate)
    A("s_waitcnt vmcnt(0)")
    A("v_mov_b32 v8, 0\nv_mov_b32 v9, 0")
    for i in range(28):
        A(f"v_dot2c_f32_bf16 v{8 + (i&1)}, v{16+i}, v{48+i}")
    A(f"""
    s_nop 2
    v_add_f32 v8, v8, v9
    s_nop 1
    v_add_f32_dpp v8, v8, v8 quad_perm:[1,0,3,2] row_mask:0xf bank_mask:0xf
    s_nop 1
    v_add_f32_dpp v8, v8, v8 quad_perm:[2,3,0,1] row_mask:0xf bank_mask:0xf
    s_nop 1
    v_add_f32_dpp v8, v8, v8 row_half_mirror row_mask:0xf bank_mask:0xf
    v_mul_f32 v8, {f32(-LOG2E)}, v8
    v_exp_f32 v8, v8
    s_nop 0
    v_add_f32 v8, 1.0, v8
    v_rcp_f32 v8, v8
    v_lshlrev_b32 v1, 2, v1
    buffer_store_dword v8, v1, s[40:43], 0 offen {HSM}
    """)
    if PF == "h1": helper_pf()
    if PFX:
        A(PFX_LOAD)
        A("s_waitcnt lgkmcnt(0)")
        pfx(PFLO, PF0N, PFLO, PF1N)
        if PFB: pfx(PF0N, min(2*PFB, 32 - PF0N), PF1N, PFB)
    if K2.SV >= 2:
        A(f"""
        s_add_u32 s48, s22, {K2.WS_H}
        s_addc_u32 s49, s23, 0
        s_mov_b32 s50, {K2.WS_Y - K2.WS_H + ZH_BYTES}
        s_mov_b32 s51, 0x20000
        s_lshl_b32 s56, s55, 3
        s_add_u32 s56, s56, s54
        s_mul_i32 s56, s56, 14336
        v_lshlrev_b32 v13, 4, v0
        v_add_u32 v13, s56, v13
        v_mov_b32 v200, -1
        v_mov_b32 v201, -1
        v_mov_b32 v202, -1
        v_mov_b32 v203, -1
        """)
        for ar in range(K2.SV - 1):
            if ar: A(f"v_add_u32 v13, {K2.WS_Y - K2.WS_H - 0x3000}, v13")
            for i in range(14):
                A(f"buffer_store_dwordx4 v[200:203], v13, s[48:51], 0 offen offset:{1024*(i&3)} {FILLMOD}")
                if i & 3 == 3: A("v_add_u32 v13, 0x1000, v13")
    if K2.ONE:
        done_load(A)
        A(f"""
        s_mov_b32 s62, -1
        s_mov_b32 s48, s20
        s_mov_b32 s49, s21
        s_movk_i32 s50, 256
        s_mov_b32 s51, 0x20000
        s_add_u32 s56, s55, {K2.DOFF}
        v_mov_b32 v22, 1
        v_mov_b32 v23, s56
        s_cmp_lg_u32 s54, 0
        s_waitcnt vmcnt(0)
        s_barrier
        s_cbranch_scc1 L_k2entry
        s_mov_b64 exec, 1
        buffer_store_byte v22, v23, s[48:51], 0 offen sc1
        s_mov_b64 exec, -1
        s_branch L_k2entry
        """)
    A.label(Lend)
    A("s_endpgm")
    return kernel_desc(name, 256, 102, 256)
```

```python
from asmlib import *

WS_BT = 0x0
WS_Z1 = 0x800000
WS_H  = 0xC00000
WS_Y  = 0x1000000
WS_WOT = 0x1400000
WS_G  = 0x1500000
WS_ST = 0x1600000
WS_FL = 0x1700000
import os
FM = int(os.environ.get("K2_FM", "1"))
FLSTRIDE = 2048 if FM else 256
ONE = os.environ.get("ONE", "1") == "1"
WS_BF = 0x1710000
BSLP = int(os.environ.get("K2_BSLP", "1"))
LSLP = int(os.environ.get("K2_LSLP", "32"))
LTH = int(os.environ.get("K2_LTH", "48"))
DSLP = int(os.environ.get("K2_DSLP", "32"))
DOFF = int(os.environ.get("K2_DOFF", "128"))
PRE = os.environ.get("K2_PRE", "1") == "1"
BT_BYTES = 16 * 32 * 14336
ZH_BYTES = 128 * 28 * 1024
WOT_BYTES = 28 * 28 * 1024

STAGE = 30720
NSLOT = 5
K2_LDS = STAGE * NSLOT

import os
ROT = os.environ.get("K2_ROT", "stag")
SKIP = os.environ.get("K2_SKIP", "")
STAMP = os.environ.get("STAMP", "") == "1"
WS_DBG = 0x1800000
K2PF = int(os.environ.get("K2_PF", "0"))
K2PFMOD = os.environ.get("K2_PFMOD", "")
AMOD = os.environ.get("K2_AMOD", "")
BMOD = os.environ.get("K2_BMOD", "")
MAP1 = "" if os.environ.get("K2_MAP", "1") == "0" else """
    s_and_b32 s41, s34, 1
    s_lshl_b32 s41, s41, 3
    s_lshr_b32 s42, s35, 2
    s_add_u32 s41, s41, s42
    s_and_b32 s42, s34, 2
    s_lshl_b32 s42, s42, 1
    s_and_b32 s43, s35, 3
    s_add_u32 s42, s42, s43
    s_cmp_lg_u32 s38, 0
    s_cselect_b32 s36, s41, s36
    s_cselect_b32 s37, s42, s37
"""
MAP2 = os.environ.get("K2_MAP", "1") == "2"
if MAP2:
    MAP1 = MAP1.replace("s_cmp_lg_u32 s38, 0", "s_cmp_eq_u32 s38, s38")
SMOD2 = os.environ.get("K2_SMOD", "")
WPF = os.environ.get("K2_WPF", "1")
FUSE = os.environ.get("FUSE", "1") == "1"
if FUSE:
    SMOD2 = "sc1"; WPF = ""
K2PF0 = int(os.environ.get("K2_PF0", "8"))
SBL = int(os.environ.get("K2_SBL", "4"))
LG = int(os.environ.get("K2_G", "4"))
ZC = int(os.environ.get("K2_ZC", "3"))
WLE = int(os.environ.get("K2_WLE", "28"))
WFL = os.environ.get("K2_WF", "0") == "1"
SV = int(os.environ.get("K2_SV", "2"))
FC = int(os.environ.get("K2_FC", "12"))
BFADDR = """
    s_mul_i32 s24, NB, 7
    s_add_u32 s25, s24, 6
    s_lshr_b32 s24, s24, 2
    s_lshr_b32 s25, s25, 2
    v_and_b32 v25, 3, v0
    v_add_u32 v25, s24, v25
    v_min_u32 v25, s25, v25
    v_lshrrev_b32 v24, 2, v0
    v_lshl_add_u32 v24, v24, 4, v25
    v_lshlrev_b32 v24, 7, v24
"""
HEADV = """
    v_lshrrev_b32 v1, 6, v0
    v_and_b32 v0, 63, v0
    s_nop 0
    v_readfirstlane_b32 s40, v1
"""
SD = float(os.environ.get("K2_D", "4"))
def stag_codes():
    out = []
    for r in range(4):
        order = sorted(range(32), key=lambda k: (k - SD - 0.25 if k % 4 == r else k))
        out.append(sum(1 << t for t, k in enumerate(order) if k % 4 == r))
    return out
STAGNEXT = """
    s_bitcmp1_b32 s100, 0
    s_cselect_b32 s47, s101, s51
    s_cselect_b32 s48, 4, 0
    s_cselect_b32 s24, 0, 1
    s_add_u32 s101, s101, s48
    s_add_u32 s51, s51, s24
    s_and_b32 s24, s51, 3
    s_cmp_eq_u32 s24, s50
    s_addc_u32 s51, s51, 0
    s_lshr_b32 s100, s100, 1
    s_mul_i32 s48, s47, 14336
    s_lshl_b32 s47, s47, 7
"""
STAGINIT = "s_mov_b32 s100, s28\ns_mov_b32 s101, s50\ns_cmp_eq_u32 s50, 0\ns_cselect_b32 s51, 1, 0\n" + STAGNEXT
def gen_k2(A, name="k2_kernel"):
    Lend = A.newlabel("k2end")
    Lload = A.newlabel("k2load")
    if ONE:
        A.label("L_k2entry")
        A("s_mov_b32 s40, s54")
    else:
        kernel_header(A, name)
        A(f"s_cmp_ge_u32 s2, 256\ns_cbranch_scc1 {Lend}")
    A(f"""
    {"s_memrealtime s[54:55]" if STAMP else ""}
    s_load_dwordx4 s[4:7], s[0:1], 8
    s_load_dwordx4 s[28:31], s[0:1], 56
    s_load_dwordx2 s[32:33], s[0:1], 104
    s_and_b32 s34, s2, 7
    s_lshr_b32 s35, s2, 3
    s_and_b32 s36, s34, 3
    s_lshl_b32 s36, s36, 2
    s_lshr_b32 s37, s35, 3
    s_add_u32 s36, s36, s37
    s_and_b32 s37, s35, 7
    s_lshr_b32 s38, s34, 2
    {MAP1}
    s_lshl_b32 s39, s38, 3
    s_add_u32 s39, s39, s37
    {"" if ONE else HEADV}
    s_waitcnt lgkmcnt(0)
    s_cmp_lt_u32 s37, 4
    s_cselect_b32 s4, s4, s6
    s_cselect_b32 s5, s5, s7
    s_cmp_eq_u32 s38, 0
    s_cselect_b32 s4, s28, s4
    s_cselect_b32 s5, s29, s5
    s_lshl_b32 s41, s36, 19
    s_add_u32 s8, s4, s41
    s_addc_u32 s9, s5, 0
    s_mov_b32 s10, 0x80000
    s_mov_b32 s11, 0x20000
    s_mul_i32 s41, s39, {32*14336}
    s_add_u32 s12, s32, s41
    s_addc_u32 s13, s33, 0
    s_mov_b32 s14, {32*14336}
    s_mov_b32 s15, 0x20000
    s_cmp_ge_u32 s40, 4
    s_cbranch_scc1 {Lload}
    """)
    FA = [[8 + 16*st + 4*m for m in range(4)] for st in range(2)]
    FB = [[40 + 28*st + 4*n for n in range(7)] for st in range(2)]
    Z1 = 96
    BS = 124
    ACC = 144
    def acc(n, m): return ACC + 4*(n*4 + m)
    VAL, VAH, VB = 2, 3, 4
    WAL, WAH, WB = 5, 6, 7
    VLANE16 = 126
    VPF = 127
    if K2PF:
        A(f"""
        s_lshl_b32 s42, s37, 4
        s_lshl_b32 s43, s40, 2
        s_add_u32 s42, s42, s43
        s_and_b32 s44, s37, 3
        s_lshl_b32 s44, s44, 5
        s_lshl_b32 s43, s40, 3
        s_add_u32 s44, s44, s43
        s_cmp_lg_u32 s38, 0
        s_cselect_b32 s42, s44, s42
        s_cselect_b32 s43, 7, 3
        v_lshrrev_b32 v1, 1, v0
        v_and_b32 v1, s43, v1
        v_add_u32 v1, s42, v1
        v_lshlrev_b32 v1, 12, v1
        v_and_b32 v5, 1, v0
        v_lshl_add_u32 v{VPF}, v5, 7, v1
        s_movk_i32 s66, {128*K2PF0}
        """)
        for i in range((K2PF - K2PF0) // 2):
            A(f"buffer_load_dword v128, v{VPF}, s[8:11], s66 offen {K2PFMOD}")
            A("s_add_u32 s66, s66, 256")
    A(f"""
    s_lshr_b32 s42, s40, 1
    s_and_b32 s43, s40, 1
    v_and_b32 v1, 15, v0
    v_lshrrev_b32 v5, 4, v0
    s_lshl_b32 s44, s43, 2
    v_add_u32 v5, s44, v5
    v_lshrrev_b32 v6, 1, v1
    v_xor_b32 v5, v5, v6
    v_lshlrev_b32 v5, 4, v5
    v_lshl_add_u32 v5, v1, 7, v5
    s_lshl_b32 s44, s42, 13
    s_lshl_b32 s45, s43, 12
    s_add_u32 s46, s44, s45
    s_xor_b32 s47, s46, 0x1000
    v_add_u32 v{VAL}, s46, v5
    v_add_u32 v{VAH}, s47, v5
    s_mul_i32 s44, s43, 7168
    s_add_u32 s44, s44, 16384
    v_lshlrev_b32 v{VLANE16}, 4, v0
    v_add_u32 v{VB}, s44, v{VLANE16}
    """)
    A(f"""
    s_lshl_b32 s44, s36, 3
    s_lshl_b32 s45, s42, 2
    s_add_u32 s44, s44, s45
    s_lshl_b32 s45, s43, 1
    s_add_u32 s44, s44, s45
    s_mul_i32 s45, s37, 7
    s_add_u32 s45, s45, 1
    s_lshr_b32 s45, s45, 1
    s_mul_i32 s46, s44, 28
    s_add_u32 s46, s46, s45
    s_lshl_b32 s48, s46, 10
    s_add_u32 s49, s48, {28*1024}
    s_and_b32 s47, s37, 1
    s_movk_i32 s46, 3072
    s_cmp_eq_u32 s47, 0
    s_cselect_b32 s47, s46, -1016
    s_add_u32 s50, s48, s47
    s_add_u32 s51, s49, s47
    s_add_u32 s16, s32, {WS_Z1}
    s_addc_u32 s17, s33, 0
    s_mov_b32 s18, {ZH_BYTES}
    s_mov_b32 s19, 0x20000
    s_mov_b32 s46, {WS_H}
    s_cmp_eq_u32 s38, 0
    s_cselect_b32 s47, s46, {WS_Y}
    s_add_u32 s20, s32, s47
    s_addc_u32 s21, s33, 0
    s_mov_b32 s22, {ZH_BYTES}
    s_mov_b32 s23, 0x20000
    s_mov_b32 s24, s30
    s_mov_b32 s25, s31
    s_mov_b32 s26, 4096
    s_mov_b32 s27, 0x20000
    """)
    Lnoz = A.newlabel("k2noz")
    A(f"""
    v_lshrrev_b32 v5, 2, v1
    v_lshlrev_b32 v5, 3, v5
    v_and_b32 v6, 3, v1
    v_add_u32 v5, v5, v6
    s_lshl_b32 s47, s44, 4
    v_add_u32 v5, s47, v5
    v_lshlrev_b32 v129, 1, v5
    s_cmp_lg_u32 s38, 0
    s_cselect_b32 s67, 0, {ZC}
    """)
    def zloads():
        A(f"""
        buffer_load_ushort v{BS}, v129, s[24:27], 0 offen
        buffer_load_ushort v{BS+1}, v129, s[24:27], 0 offen offset:8
        """)
        for mm in range(2):
            so = 48 + mm
            for p in range(3):
                A(f"buffer_load_dwordx4 {v(Z1 + 14*mm + 4*p, 4)}, v{VLANE16}, s[16:19], s{so} offen offset:{1024*p}")
            A(f"buffer_load_dwordx2 {v(Z1 + 14*mm + 12, 2)}, v{VLANE16}, s[16:19], s{50+mm} offen")
    if ZC == 0:
        A(f"s_cbranch_scc1 {Lnoz}")
        zloads()
        A.label(Lnoz)
    if SV == 1:
        for r in range(132, 136): A(f"v_mov_b32 v{r}, -1")
    for r in range(112):
        A(f"v_mov_b32 v{ACC + r}, 0")
    A("s_mov_b32 s52, 0")
    def reads(st):
        r = []
        for m in range(4):
            base = WAL if m < 2 else WAH
            r.append(f"ds_read_b128 {v(FA[st][m],4)}, v{base} offset:{2048*(m&1)}")
        for n in range(7):
            r.append(f"ds_read_b128 {v(FB[st][n],4)}, v{WB} offset:{1024*n}")
        return [r[0], r[4], r[1], r[2], r[3]] + r[5:]
    def addr_update():
        return f"""
        v_add_u32 v{WAL}, s52, v{VAL}
        v_add_u32 v{WAH}, s52, v{VAH}
        v_add_u32 v{WB}, s52, v{VB}
        s_add_u32 s52, s52, {STAGE}
        s_cmp_eq_u32 s52, {STAGE*NSLOT}
        s_cselect_b32 s52, 0, s52
        """
    def mfmas(st):
        if "mfma" in SKIP: return ["s_nop 0"] * 28
        return [f"v_mfma_f32_16x16x32_bf16 {v(acc(n,m),4)}, {v(FB[st][n],4)}, {v(FA[st][m],4)}, {v(acc(n,m),4)}"
                for n in range(7) for m in range(4)]
    def iteration(st, with_reads=True):
        if with_reads:
            A("s_barrier")
            A(addr_update())
            for ins in interleave(mfmas(st), reads(st ^ 1), start=0, every=2):
                A(ins)
            A("s_waitcnt lgkmcnt(0)")
        else:
            for ins in mfmas(st):
                A(ins)
    if ONE: A("s_barrier")
    A("s_barrier")
    if STAMP: A("s_memrealtime s[56:57]\ns_memtime s[62:63]")
    A(addr_update())
    for ins in reads(0):
        A(ins)
    A("s_waitcnt lgkmcnt(0)")
    A("s_mov_b32 s53, 15")
    Lloop = A.newlabel("k2loop")
    A.label(Lloop)
    iteration(0)
    if SV == 1:
        Lnf = A.newlabel("k2nf")
        A(f"s_cmp_lg_u32 s53, {FC}\ns_cbranch_scc1 {Lnf}")
        for mm in range(2):
            for p in range(3):
                A(f"buffer_store_dwordx4 v[132:135], v{VLANE16}, s[20:23], s{48+mm} offen offset:{1024*p} {SMOD2}")
            A(f"buffer_store_dwordx2 v[132:133], v{VLANE16}, s[20:23], s{50+mm} offen {SMOD2}")
        A.label(Lnf)
    if ZC:
        A(f"s_cmp_lg_u32 s53, s67\ns_cbranch_scc1 {Lnoz}")
        zloads()
        A.label(Lnoz)
    if K2PF:
        Lsk = A.newlabel("k2pfs")
        A(f"""
        s_cmp_ge_u32 s66, 4096
        s_cbranch_scc1 {Lsk}
        buffer_load_dword v128, v{VPF}, s[8:11], s66 offen {K2PFMOD}
        s_add_u32 s66, s66, 256
        """)
        A.label(Lsk)
    iteration(1)
    A(f"""
    s_sub_u32 s53, s53, 1
    s_cmp_lg_u32 s53, 0
    s_cbranch_scc1 {Lloop}
    """)
    iteration(0)
    iteration(1, with_reads=False)
    if STAMP: A("s_memrealtime s[58:59]\ns_memtime s[64:65]\ns_waitcnt lgkmcnt(0)\ns_sub_u32 s62, s64, s62")
    XB = 2 * STAGE
    A(f"""
    s_mul_i32 s47, s40, 14336
    s_add_u32 s47, s47, {XB}
    v_add_u32 v5, s47, v{VLANE16}
    s_xor_b32 s46, s40, 1
    s_mul_i32 s46, s46, 14336
    s_add_u32 s46, s46, {XB}
    v_add_u32 v6, s46, v{VLANE16}
    s_nop 4
    """)
    for n in range(7):
        for mm in range(2):
            A(f"ds_write_b128 v5, {v(acc(n, 2+mm),4)} offset:{(n*2+mm)*1024}")
    A("s_waitcnt lgkmcnt(0)")
    A("s_barrier")
    RX = 8
    for n in range(7):
        for mm in range(2):
            A(f"ds_read_b128 {v(RX + 4*(n*2+mm),4)}, v6 offset:{(n*2+mm)*1024}")
    Ly = A.newlabel("k2y")
    Lfin = A.newlabel("k2fin")
    A(f"""
    s_cmp_lg_u32 s38, 0
    s_waitcnt vmcnt(0)
    s_cbranch_scc1 {Ly}
    v_lshlrev_b32 v{BS}, 16, v{BS}
    v_lshlrev_b32 v{BS+1}, 16, v{BS+1}
    """)
    OUT = 64
    def epi(g2):
        cnt = 14
        for n in range(7):
            for mm in range(2):
                cnt -= 1
                A(f"s_waitcnt lgkmcnt({cnt})")
                rx = RX + 4*(n*2+mm)
                zr = Z1 + 14*mm + 2*n
                o = OUT + 14*mm + 2*n
                for r in range(4):
                    A(f"v_add_f32 v{rx+r}, v{rx+r}, v{acc(n,mm)+r}")
                if g2:
                    for r in range(4):
                        A(f"v_add_f32 v{rx+r}, v{rx+r}, v{BS+mm}")
                    A(f"""
                    v_lshlrev_b32 v92, 16, v{zr}
                    v_and_b32 v93, 0xffff0000, v{zr}
                    v_lshlrev_b32 v94, 16, v{zr+1}
                    v_and_b32 v95, 0xffff0000, v{zr+1}
                    v_mul_f32 v{rx}, v{rx}, v92
                    v_mul_f32 v{rx+1}, v{rx+1}, v93
                    v_mul_f32 v{rx+2}, v{rx+2}, v94
                    v_mul_f32 v{rx+3}, v{rx+3}, v95
                    """)
                A(f"v_cvt_pk_bf16_f32 v{o}, v{rx}, v{rx+1}")
                A(f"v_cvt_pk_bf16_f32 v{o+1}, v{rx+2}, v{rx+3}")
                if n % 2 == 1:
                    p = n // 2
                    A(f"buffer_store_dwordx4 {v(OUT + 14*mm + 4*p,4)}, v{VLANE16}, s[20:23], s{48+mm} offen offset:{1024*p} {SMOD2}")
                if n == 6:
                    A(f"buffer_store_dwordx2 {v(OUT + 14*mm + 12,2)}, v{VLANE16}, s[20:23], s{50+mm} offen {SMOD2}")
    def stamp_out():
        if not STAMP: return
        A(f"""
        s_waitcnt vmcnt(0)
        s_memrealtime s[60:61]
        s_waitcnt lgkmcnt(0)
        v_mov_b32 v8, s54
        v_mov_b32 v13, s62
        v_mov_b32 v9, s56
        v_mov_b32 v10, s58
        v_mov_b32 v11, s60
        s_lshl_b32 s46, s2, 2
        s_add_u32 s46, s46, s40
        s_lshl_b32 s46, s46, 4
        s_add_u32 s46, s46, {WS_DBG}
        v_mov_b32 v12, s46
        global_store_dwordx4 v12, v[8:11], s[32:33]
        v_lshrrev_b32 v12, 2, v12
        v_add_u32 v12, {WS_DBG + 0x10000 - WS_DBG//4}, v12
        global_store_dword v12, v13, s[32:33]
        """)
    def fin(g2):
        if FUSE and WLE < 28: A("s_barrier")
        if FUSE and WFL:
            A(f"""
            s_add_u32 s68, s32, {WS_FL}
            s_addc_u32 s69, s33, 0
            s_mov_b32 s70, {16*FLSTRIDE}
            s_mov_b32 s71, 0x20000
            s_mul_i32 s72, s36, {FLSTRIDE}
            s_lshl_b32 s73, s39, {7 if FM == 2 else 2}
            s_add_u32 s72, s72, s73
            s_add_u32 s72, s72, s40
            v_mov_b32 v10, 1
            v_lshlrev_b32 v11, 3, v{VLANE16}
            v_add_u32 v11, s72, v11
            s_mov_b64 exec, {0x3fff if FM == 1 else 1}
            s_waitcnt vmcnt(0)
            buffer_store_byte v10, v11, s[68:71], 0 offen sc1
            s_mov_b64 exec, -1
            """)
        elif FUSE and (SV in (1, 3) or (SV == 2 and g2)): A("s_barrier")
        elif FUSE: A("s_waitcnt vmcnt(0)\ns_barrier")
        stamp_out()
        A(f"s_endpgm")
    epi(True)
    fin(True)
    A.label(Ly)
    epi(False)
    fin(False)
    A.label(Lload)
    A(f"""
    s_sub_u32 s42, s40, 4
    v_lshrrev_b32 v1, 5, v0
    v_lshlrev_b32 v1, 3, v1
    v_bfe_u32 v2, v0, 3, 2
    v_add_u32 v1, v1, v2
    s_lshl_b32 s43, s42, 5
    v_add_u32 v1, s43, v1
    v_lshlrev_b32 v1, 12, v1
    v_and_b32 v2, 7, v0
    v_lshrrev_b32 v3, 4, v0
    v_xor_b32 v2, v2, v3
    v_lshlrev_b32 v2, 4, v2
    v_xor_b32 v3, 64, v2
    v_add_u32 v4, v1, v2
    v_add_u32 v5, v1, v3
    v_add_u32 v5, {16*4096 - 1024}, v5
    v_add_u32 v6, {4*4096 - 2048}, v4
    v_add_u32 v7, {4*4096 - 2048}, v5
    s_lshl_b32 s43, s42, 2
    s_cmp_eq_u32 s42, 3
    s_cselect_b32 s43, 11, s43
    s_lshl_b32 s43, s43, 10
    v_lshlrev_b32 v8, 4, v0
    v_add_u32 v8, s43, v8
    s_lshl_b32 s44, s42, 12
    s_add_u32 s45, s43, 16384
    s_mov_b32 s46, 0
    """)
    if ROT == "none":
        A("s_mov_b32 s50, 0")
    elif ROT == "xcd":
        A("s_lshl_b32 s50, s34, 2")
    elif ROT == "mi":
        A("s_lshl_b32 s50, s36, 1\ns_add_u32 s50, s50, s38")
    elif ROT == "h2":
        A("s_and_b32 s50, s37, 1\ns_lshl_b32 s50, s50, 4")
    elif ROT == "h4":
        A("s_and_b32 s50, s37, 3\ns_lshl_b32 s50, s50, 3")
    elif ROT == "h8":
        A("s_and_b32 s50, s37, 3\ns_lshl_b32 s50, s50, 3\ns_lshl_b32 s51, s37, 2\ns_cmp_eq_u32 s38, 0\ns_cselect_b32 s50, s51, s50")
    elif ROT == "wg":
        A("s_mul_i32 s50, s2, 5\ns_and_b32 s50, s50, 31")
    elif ROT == "lat":
        A("s_add_u32 s50, s36, s37")
        if LG == 8 and MAP2: A("s_add_u32 s50, s50, s37")
        elif LG == 8: A("s_cmp_eq_u32 s38, 0\ns_cselect_b32 s51, s36, s37\ns_add_u32 s50, s50, s51")
        A(f"""
        s_and_b32 s50, s50, {LG-1}
        s_mul_i32 s50, s50, {SBL//LG}
        s_mov_b32 s51, 0
        """)
    if ROT == "stag":
        cs = stag_codes()
        A(f"s_add_u32 s50, s36, s37\ns_and_b32 s50, s50, 3\ns_mov_b32 s28, {cs[0]:#x}")
        for r in (1, 2, 3):
            A(f"s_cmp_eq_u32 s50, {r}\ns_cselect_b32 s28, {cs[r]:#x}, s28")
        A(STAGINIT)
    else: A(f"""
    s_lshl_b32 s47, s50, 7
    s_mul_i32 s48, s50, 14336
    """)
    A("s_cmp_ge_u32 s42, 2")
    Lcls = A.newlabel("k2ldB")
    A(f"s_cbranch_scc1 {Lcls}")
    def issue(nb, skip=SKIP):
        SKIP = skip
        A(f"""
        s_add_u32 m0, s46, s44
        s_nop 0
        """)
        if "A" not in SKIP: A(f"""
        buffer_load_dwordx4 v4, s[8:11], s47 offen {AMOD} lds
        buffer_load_dwordx4 v5, s[8:11], s47 offen offset:1024 {AMOD} lds
        buffer_load_dwordx4 v6, s[8:11], s47 offen offset:2048 {AMOD} lds
        buffer_load_dwordx4 v7, s[8:11], s47 offen offset:3072 {AMOD} lds
        """)
        A(f"""
        s_add_u32 m0, s46, s45
        s_add_u32 s47, s47, 128
        """)
        for p in range(nb):
            if "B" not in SKIP: A(f"buffer_load_dwordx4 v8, s[12:15], s48 offen offset:{1024*p} {BMOD} lds")
        if ROT == "stag": A(STAGNEXT)
        elif ROT == "lat": A(f"""
        s_add_u32 s51, s51, 1
        s_add_u32 s47, s51, s50
        s_and_b32 s47, s47, {SBL-1}
        s_andn2_b32 s48, s51, {SBL-1}
        s_or_b32 s47, s47, s48
        s_mul_i32 s48, s47, 14336
        s_lshl_b32 s47, s47, 7
        """)
        else: A(f"""
        s_add_u32 s48, s48, 14336
        s_cmp_eq_u32 s47, 4096
        s_cselect_b32 s47, 0, s47
        s_cselect_b32 s48, 0, s48
        """)
        A(f"""
        s_add_u32 s46, s46, {STAGE}
        s_cmp_eq_u32 s46, {STAGE*NSLOT}
        s_cselect_b32 s46, 0, s46
        """)
    def dcheck(reg, Lok):
        Ld = A.newlabel("k2bd")
        A.label(Ld)
        A(f"""
        v_cmp_ne_u32 vcc, v14, v{reg}
        s_cbranch_vccz {Lok}
        s_sleep {DSLP}
        buffer_load_dword v{reg}, v21, s[20:23], 0 offen sc1
        s_sub_u32 s26, s26, 1
        s_cmp_gt_i32 s26, 0
        s_waitcnt vmcnt(0)
        s_cbranch_scc1 {Ld}
        """)
    def bpoll0():
        assert ROT in ("lat", "stag")
        Lx = A.newlabel("k2bx"); Lb = A.newlabel("k2bb")
        A(f"""
        s_add_u32 s16, s32, {WS_BF}
        s_addc_u32 s17, s33, 0
        s_mov_b32 s18, 32768
        s_mov_b32 s19, 0x20000
        s_movk_i32 s22, 256
        s_mov_b32 s23, 0x20000
        {BFADDR.replace("NB", "s37")}
        v_cmp_eq_u32 vcc, s62, v24
        v_cndmask_b32 v27, 0, 1, vcc
        v_mov_b32 v14, 0x01010101
        v_min_u32 v21, 7, v0
        v_lshlrev_b32 v21, 2, v21
        v_add_u32 v21, {DOFF}, v21
        v_mov_b32 v26, 0
        s_mov_b32 s26, 20000
        s_cmp_lg_u32 s42, 0
        s_cbranch_scc1 {Lx}
        """)
        dcheck(20, Lb)
        A.label(Lb)
        if PRE: A("buffer_load_dword v26, v24, s[16:19], 0 offen sc1")
        A.label(Lx)
    def bpoll():
        Lx = A.newlabel("k2bx"); Lb = A.newlabel("k2bb"); Lc = A.newlabel("k2bc")
        A(f"""
        s_cmp_lg_u32 s42, 0
        s_cbranch_scc1 {Lx}
        s_waitcnt vmcnt(20)
        s_branch {Lc}
        """)
        A.label(Lb)
        A(f"""
        buffer_load_dword v26, v24, s[16:19], 0 offen sc1
        s_waitcnt vmcnt(0)
        """)
        A.label(Lc)
        A(f"""
        v_or_b32 v26, v26, v27
        v_cmp_ne_u32 vcc, 1, v26
        s_cbranch_vccz {Lx}
        s_sleep {BSLP}
        """)
        if LSLP:
            Ls = A.newlabel("k2bs")
            A(f"""
            s_bcnt1_i32_b64 s27, vcc
            s_cmp_le_u32 s27, {LTH}
            s_cbranch_scc1 {Ls}
            s_sleep {LSLP}
            """)
            A.label(Ls)
        A(f"""
        s_sub_u32 s26, s26, 1
        s_cmp_gt_i32 s26, 0
        s_cbranch_scc1 {Lb}
        """)
        A.label(Lx)
    def loader(nb):
        n = (0 if 'A' in SKIP else 4) + (0 if 'B' in SKIP else nb)
        def pro(skip):
            A("s_mov_b32 s49, 5")
            L0 = A.newlabel("k2pro")
            A.label(L0)
            issue(nb, skip)
            A(f"""
            s_sub_u32 s49, s49, 1
            s_cmp_lg_u32 s49, 0
            s_cbranch_scc1 {L0}
            """)
        if ONE and nb == 4: bpoll0()
        pro("B" if ONE else SKIP)
        if FUSE: K23.setup(A)
        if ONE:
            if nb == 4: bpoll()
            A(STAGINIT if ROT == "stag" else """
            s_mov_b32 s51, 0
            s_lshl_b32 s47, s50, 7
            s_mul_i32 s48, s50, 14336
            """)
            A("s_mov_b32 s46, 0\ns_barrier")
            pro("A")
            A(f"s_waitcnt vmcnt({4*nb})\ns_barrier")
            for b in (1, 2, 3):
                A(f"s_waitcnt vmcnt({(4-b)*nb + (b-1)*n})\ns_barrier")
                issue(nb)
            if nb == 4:
                Lq = A.newlabel("k2dq")
                A(f"s_cmp_lg_u32 s42, 0\ns_cbranch_scc1 {Lq}\nbuffer_load_dword v15, v21, s[20:23], 0 offen sc1")
                A.label(Lq)
            A("s_mov_b32 s49, 24")
        else: A(f"""
        s_waitcnt vmcnt({4*n})
        s_barrier
        s_mov_b32 s49, 27
        """)
        L1 = A.newlabel("k2ldloop")
        A.label(L1)
        A(f"s_waitcnt vmcnt({3*n})")
        A("s_barrier")
        issue(nb)
        A(f"""
        s_sub_u32 s49, s49, 1
        s_cmp_lg_u32 s49, 0
        s_cbranch_scc1 {L1}
        """)
        if ONE and nb == 4:
            Lq = A.newlabel("k2dq")
            A(f"s_cmp_lg_u32 s42, 0\ns_cbranch_scc1 {Lq}")
            dcheck(15, Lq)
            A.label(Lq)
        ex = 0
        if WPF:
            ex = 1
            A(f"""
            s_lshl_b32 s50, s35, 2
            s_add_u32 s50, s50, s42
            s_mul_i32 s50, s50, {49*128}
            s_add_u32 s16, s32, {WS_WOT}
            s_addc_u32 s17, s33, 0
            s_mov_b32 s18, {WOT_BYTES}
            s_mov_b32 s19, 0x20000
            v_min_u32 v9, 48, v0
            v_lshlrev_b32 v9, 7, v9
            buffer_load_dword v10, v9, s[16:19], s50 offen
            """)
        if FUSE:
            Lnt = A.newlabel("k2nt")
            A(f"s_cmp_ge_u32 s53, 7\ns_cbranch_scc1 {Lnt}")
            wl = K23.wot_loads()
            done = 0
            for i, w in enumerate((3, 2, 1, 0)):
                A(f"s_waitcnt vmcnt({w*n + done})")
                A("s_barrier")
                k = min(7, WLE - done)
                for x in wl[done:done+k]: A(x)
                done += k
            A(f"s_branch {L3}")
            A.label(Lnt)
        for w in (3, 2, 1, 0):
            A(f"s_waitcnt vmcnt({w*n + ex})")
            A("s_barrier")
        if FUSE:
            if WLE < 28: A("s_barrier")
            A("s_barrier")
            if not WFL:
                A("s_barrier")
                K23.flag_store(A)
        A("s_endpgm")
    if FUSE:
        import k23 as K23
    L3 = A.newlabel("k2p3")
    loader(4)
    A.label(Lcls)
    loader(3)
    if FUSE:
        A.label(L3)
        A("s_barrier")
        if WLE < 28:
            A("s_barrier")
            for x in K23.wot_loads()[WLE:]: A(x)
        if not WFL:
            A("s_barrier")
            K23.flag_store(A)
        K23.body(A)
    A.label(Lend)
    A("s_endpgm")
    return None if ONE else kernel_desc(name, 256, 102, 256)
```
